```python
import torch

def _softmax(x, axis=-1):
    return torch.softmax(x, dim=axis)
def _gelu(x):
    return torch.nn.functional.gelu(x, approximate="tanh")
def _silu(x):
    return torch.nn.functional.silu(x)
def _sigmoid(x):
    return torch.sigmoid(x)
def _layernorm(x, axis=-1, eps=1e-5):
    m = x.mean(dim=axis, keepdim=True)
    v = x.var(dim=axis, keepdim=True, unbiased=False)
    return (x - m) / torch.sqrt(v + eps)
def _scatter_add(tgt, idx, src, axis=0):
    return tgt.clone().index_add_(axis, idx, src)
def _segment_sum(src, seg, n):
    out = torch.zeros((n,) + src.shape[1:], dtype=src.dtype)
    return out.index_add_(0, seg, src)
def _pad(x, pw):
    flat = tuple(v for pair in reversed(pw) for v in pair)
    return torch.nn.functional.pad(x, flat)

kernel_name = 'standalone__gqa_softmax__near_ridge'

def setup_inputs():

    _w = (lambda a: (lambda t: t.to(torch.bfloat16) if t.is_floating_point() else t)(torch.as_tensor(a)))
    B, Hq, Hkv, Sq, Sk, D = 16, 32, 16, 288, 512, 128
    return {
        "q": _w((lambda *s: torch.randn(*s, dtype=torch.bfloat16) * 0.8)(B, Hq, Sq, D)),
        "k": _w((lambda *s: torch.randn(*s, dtype=torch.bfloat16) * 0.8)(B, Hkv, Sk, D)),
        "v": _w((lambda *s: torch.randn(*s, dtype=torch.bfloat16) * 0.05)(B, Hkv, Sk, D)),
    }

def reference(q, k, v):
    B, Hq, Sq, D = q.shape
    Hkv = k.shape[1]
    rep = Hq // Hkv
    k = (lambda x, n, axis: torch.repeat_interleave(x, n, dim=axis))(k, rep, axis=1)
    v = (lambda x, n, axis: torch.repeat_interleave(x, n, dim=axis))(v, rep, axis=1)
    scale = D ** -0.5
    scores = torch.einsum("bhqd,bhkd->bhqk", q, k) * scale
    p = _softmax(scores, axis=-1)
    return torch.einsum("bhqk,bhkd->bhqd", p, v)
```

```python
import sys, math, struct

OPT = dict(
    ld_nt=True, q_nt=True, st_nt=False, q0=2, budget=24,
)
for a in sys.argv[2:]:
    k, v = a.split("=")
    OPT[k] = type(OPT[k])(int(v)) if not isinstance(OPT[k], str) else v

NAME = "standalone__gqa_softmax__near_ridge_kernel"
QBYTES = 37748736
KBYTES = 33554432
SLOT = 32768

def f32bits(x):
    return struct.unpack("<I", struct.pack("<f", x))[0]

V_QA = 0
V_KF = 96
V_VF = 128
V_S = 160
V_P = 192
V_T = 208
V_NEGM = 216
V_L = 219
V_TS = 222
V_KA = 223
V_VA = 231
V_DK = 235
V_DV = 239
V_QO = 240
V_X = 242
V_LANE8 = 254
V_LANE16 = 255
A_O = 0
A_QB = 192
S_WG, S_W = 2, 3
SRD_Q, SRD_K, SRD_V, SRD_O = 12, 16, 20, 24
S_C, S_THR = 28, 29
S_RET = 30
S_N = 32
S_KV = 33
S_M0 = 34
S_RSLOT = 35
S_DELTA = 36
S_QA = 37
S_QH = 38
S_QB = 39
S_FIRST = 40
S_ROLE = 43
S_ITEM = 44
S_T0, S_T1, S_T2 = 45, 46, 47
S_WSLOT = 48
S_XME, S_XPART = 49, 50
S_MASKQ, S_MASKS = 51, 52
S_CPOS = 53

def vr(b, n=1):
    return f"v{b}" if n == 1 else f"v[{b}:{b+n-1}]"
def ar(b, n=1):
    return f"a{b}" if n == 1 else f"a[{b}:{b+n-1}]"
def rs(p, b, n):
    return {f"{p}{i}" for i in range(b, b + n)}

class Ins:
    __slots__ = ("text", "kind", "rd", "wr", "cost", "srcc", "tag", "skip")
    def __init__(self, text, kind, rd=(), wr=(), cost=4, srcc=(), tag=None):
        self.text, self.kind, self.rd, self.wr, self.cost, self.srcc, self.tag = text, kind, set(rd), set(wr), cost, set(srcc), tag
        self.skip = False

def R(kind, b, n=1):
    return (vr(b, n) if kind == "v" else ar(b, n)), rs(kind, b, n)

def mfma(dk, d, ak, a, bk, b, czero=False):
    dt, ds_ = R(dk, d, 16); at, as_ = R(ak, a, 4); bt, bs_ = R(bk, b, 4)
    c = "0" if czero else dt
    return Ins(f"v_mfma_f32_32x32x16_bf16 {dt}, {at}, {bt}, {c}", "mfma", as_ | bs_ | (set() if czero else ds_), ds_, 8,
               srcc=(set() if czero else ds_))
def valu(text, rd, wr, trans=False):
    return Ins(text, "trans" if trans else "valu", rd, wr, 8 if trans else 4)
def salu(text, rd=(), wr=()):
    return Ins(text, "salu", rd, wr, 4)
def other(text, cost=4):
    return Ins(text, "other", (), (), cost)
def label(name):
    return Ins(name + ":", "label", (), (), 0)

class Prog:
    def __init__(self):
        self.ins = []
        self.ldsq = []
    def states_back(self):
        d = 0
        for i in reversed(self.ins):
            if i.kind == "label":
                continue
            yield i, d
            if i.skip:
                continue
            if i.text.startswith("s_nop"):
                d += int(i.text.split()[1]) + 1
            else:
                d += 1
            if d > 24:
                return
    def need(self, x):
        n = 0
        for p, d in self.states_back():
            req = 0
            if p.kind == "mfma":
                if x.kind == "mfma":
                    if p.wr & (x.rd - x.srcc): req = 12
                    elif (p.wr & x.srcc) and (p.wr != x.srcc): req = 10
                    elif (p.wr & x.wr) and not (p.wr & x.srcc): req = 12
                elif x.kind in ("valu", "trans", "lds", "vmem", "perm"):
                    if p.wr & (x.rd | x.wr): req = 12
                    if x.kind in ("valu", "trans", "perm") and (p.srcc & x.wr): req = max(req, 7)
            elif p.kind in ("valu", "trans", "perm"):
                if x.kind == "mfma" and (p.wr & x.rd): req = 2
                if x.kind == "perm" and (p.wr & x.rd): req = 2
                if p.kind == "trans" and x.kind in ("valu", "perm") and (p.wr & x.rd): req = max(req, 1)
                if x.kind in ("valu", "trans") and any(r.startswith("s") or r == "vcc" for r in (p.wr & x.rd)): req = max(req, 2)
                if x.kind == "vmem" and any(r.startswith("s") for r in (p.wr & x.rd)): req = max(req, 5)
                if x.kind == "rfl" and (p.wr & x.rd): req = max(req, 1)
            elif p.kind == "rfl":
                if x.kind in ("valu", "trans") and (p.wr & x.rd): req = 2
                if x.kind == "vmem" and (p.wr & x.rd): req = 5
                if x.kind == "salu" and (p.wr & x.rd): req = 2
            elif p.kind == "vmem" and p.tag == "store":
                if x.kind in ("valu", "trans", "perm", "lds") and (p.rd & x.wr): req = 2
            elif p.kind == "salu" and "m0" in p.wr:
                if x.kind == "vmem" and "m0" in x.rd: req = 1
            if req > d:
                n = max(n, req - d)
        return n
    def add(self, x):
        if isinstance(x, (list, tuple)):
            for y in x: self.add(y)
            return
        if x.text == "s_waitcnt lgkmcnt(0)":
            self.ins.append(x); self.ldsq = []
            return
        if x.kind in ("mfma", "valu", "trans", "vmem", "perm", "lds"):
            use = x.rd | x.wr
            last = -1
            for i, (dst, tg) in enumerate(self.ldsq):
                if dst & use: last = i
            if last >= 0 and self.ldsq[last][1] is not None and x.kind == "mfma":
                tg = self.ldsq[last][1]
                while last + 1 < len(self.ldsq) and self.ldsq[last + 1][1] == tg: last += 1
            if last >= 0:
                n = len(self.ldsq) - 1 - last
                n = min(n, 15)
                self.ins.append(other(f"s_waitcnt lgkmcnt({n})"))
                self.ldsq = self.ldsq[len(self.ldsq) - n:] if n else []
        n = self.need(x)
        while n > 0:
            k = min(n, 16)
            self.ins.append(other(f"s_nop {k-1}", 4 * k))
            self.ins[-1].skip = x.skip
            n -= k
        self.ins.append(x)
        if x.kind == "lds":
            self.ldsq.append((set(x.wr), x.tag))
    def lgkm0(self):
        self.ins.append(other("s_waitcnt lgkmcnt(0)"))
        self.ldsq = []
    def text(self):
        out = []
        for i in self.ins:
            out.append(i.text if i.kind == "label" else "    " + i.text)
        return "\n".join(out)

def q_reg(typ, t):
    return ("v", V_QA + 32 * t) if typ == "A" else ("a", A_QB + 32 * t)

def qk_group(typ, t, sb):
    qk, qb = q_reg(typ, t)
    return [mfma("v", V_S + 16 * sb, "v", V_KF + 4 * s, qk, qb + 4 * s, czero=(s == 0)) for s in range(8)]

def pv_group(t, pb):
    out = []
    for ks in range(2):
        for dt in range(4):
            out.append(mfma("a", A_O + 64 * t + 16 * dt, "v", V_VF + 8 * dt + 4 * ks, "v", V_P + 8 * pb + 4 * ks))
    return out

def k_load(s, sub):
    return Ins(f"ds_read_b128 {vr(V_KF+4*s,4)}, {vr(V_KA+s)} offset:{sub*8192}", "lds", {f"v{V_KA+s}"}, rs("v", V_KF + 4 * s, 4), tag="K")

def v_load(dt, ks, e4, sub):
    d = V_VF + 8 * dt + 4 * ks + 2 * e4
    return Ins(f"ds_read_b64_tr_b16 {vr(d,2)}, {vr(V_VA+dt)} offset:{sub*8192+ks*4096+e4*2048}", "lds", {f"v{V_VA+dt}"}, rs("v", d, 2), tag="V")

def softmax_ops(t, sb):
    S = V_S + 16 * sb; P = V_P + 8 * sb; T = V_T; nm = V_NEGM + t; ts = V_TS
    ops = []
    for k in range(19):
        if k < 16:
            ops.append(valu(f"v_fma_f32 {vr(T+k%8)}, {vr(S+k)}, s{S_C}, {vr(nm)}", {f"v{S+k}", f"v{nm}", }, {f"v{T+k%8}"}))
        r = k - 1
        if 0 <= r < 16:
            ops.append(valu(f"v_exp_f32 {vr(T+r%8)}, {vr(T+r%8)}", {f"v{T+r%8}"}, {f"v{T+r%8}"}, trans=True))
        r = k - 3
        if 1 <= r < 16:
            if r == 1:
                ops.append(valu(f"v_add_f32 {vr(ts)}, {vr(T)}, {vr(T+1)}", {f"v{T}", f"v{T+1}"}, {f"v{ts}"}))
            else:
                ops.append(valu(f"v_add_f32 {vr(ts)}, {vr(ts)}, {vr(T+r%8)}", {f"v{ts}", f"v{T+r%8}"}, {f"v{ts}"}))
            if r % 2 == 1:
                a, b = T + (r - 1) % 8, T + r % 8
                ops.append(valu(f"v_cvt_pk_bf16_f32 {vr(P+r//2)}, {vr(a)}, {vr(b)}", {f"v{a}", f"v{b}"}, {f"v{P+r//2}"}))
    return ops

stubs = []
site_n = [0]
def check_ops(t, sb):
    k = site_n[0]; site_n[0] += 1
    stubs.append((f"L_stub{k}", f"L_slow_{t}_{sb}", f"L_ret{k}"))
    return [valu(f"v_cmp_lt_f32 vcc, s{S_THR}, {vr(V_TS)}", {f"v{V_TS}"}, {"vcc"}),
            other(f"s_cbranch_vccnz L_stub{k}"),
            label(f"L_ret{k}"),
            valu(f"v_add_f32 {vr(V_L+t)}, {vr(V_L+t)}, {vr(V_TS)}", {f"v{V_L+t}", f"v{V_TS}"}, {f"v{V_L+t}"})]

def dma_ops():
    nt = " nt" if OPT["ld_nt"] else ""
    ops = []
    ops.append(salu(f"s_mov_b32 m0, s{S_M0}", {f"s{S_M0}"}, {"m0"}))
    for a in range(4):
        ops.append(Ins(f"buffer_load_dwordx4 {vr(V_DK+a)}, s[{SRD_K}:{SRD_K+3}], s{S_KV} offen offset:{a*1024}{nt} lds", "vmem",
                       {f"v{V_DK+a}", "m0", f"s{S_KV}"}, (), 8))
    ops.append(salu(f"s_add_u32 m0, s{S_M0}, 16384", {f"s{S_M0}"}, {"m0"}))
    for a in range(4):
        ops.append(Ins(f"buffer_load_dwordx4 {vr(V_DV)}, s[{SRD_V}:{SRD_V+3}], s{S_KV} offen offset:{a*1024}{nt} lds", "vmem",
                       {f"v{V_DV}", "m0", f"s{S_KV}"}, (), 8))
    ops.append(salu(f"s_add_u32 s{S_KV}, s{S_KV}, 16384"))
    ops.append(salu(f"s_add_u32 s{S_WSLOT}, s{S_WSLOT}, 1"))
    ops.append(salu(f"s_cmp_ge_u32 s{S_WSLOT}, 16"))
    ops.append(salu(f"s_cselect_b32 s{S_KV}, 0x40000000, s{S_KV}"))
    ops.append(salu(f"s_add_u32 s{S_M0}, s{S_M0}, {SLOT}"))
    ops.append(salu(f"s_cmp_ge_u32 s{S_M0}, {5*SLOT}"))
    ops.append(salu(f"s_cselect_b32 s{S_T0}, {5*SLOT}, 0"))
    ops.append(salu(f"s_sub_u32 s{S_M0}, s{S_M0}, s{S_T0}"))
    return ops

def q_loads(typ):
    nt = " nt" if OPT["q_nt"] else ""
    ops = []
    tiles = [(0, S_QA, 0), (1, S_QA, 8192), (2, S_QH, 0)] if typ == "A" else [(0, S_QB, 0), (1, S_QB, 8192)]
    for t, sreg, add in tiles:
        qk, qb = q_reg(typ, t)
        so = f"s{sreg}"
        if add:
            ops.append(salu(f"s_add_u32 s{S_T1}, s{sreg}, {add}"))
            so = f"s{S_T1}"
        for s in range(8):
            dt_, ds_ = R(qk, qb + 4 * s, 4)
            ops.append(Ins(f"buffer_load_dwordx4 {dt_}, {vr(V_QO)}, s[{SRD_Q}:{SRD_Q+3}], {so} offen offset:{s*32}{nt}", "vmem",
                           {f"v{V_QO}"}, ds_, 8))
    return ops

def cond(ops):
    for o in ops: o.skip = True
    return ops

lbl_n = [0]
def newlbl(p="L"):
    lbl_n[0] += 1
    return f"{p}{lbl_n[0]}"

def barrier_block(typ, skip_dma_last):
    nq = 16 if typ == "A" else 24
    l1, l2, l3 = newlbl("L_w"), newlbl("L_w"), newlbl("L_w")
    pre = [other("s_waitcnt lgkmcnt(0)"), salu(f"s_bitcmp1_b32 s{S_MASKQ}, s{S_N}"), other(f"s_cbranch_scc1 {l1}"),
           ] + cond([salu(f"s_bitcmp1_b32 s{S_MASKS}, s{S_N}"), other(f"s_cbranch_scc1 {l2}"),
           other("s_waitcnt vmcnt(24)"), other(f"s_branch {l3}"),
           label(l1), other(f"s_waitcnt vmcnt({24+nq})"), other(f"s_branch {l3}"),
           label(l2), other("s_waitcnt vmcnt(40)")]) + [
           label(l3), other("s_barrier")]
    return pre

def slot_advance():
    return [salu(f"s_add_u32 s{S_RSLOT}, s{S_RSLOT}, 1"),
            salu(f"s_cmp_ge_u32 s{S_RSLOT}, 5"),
            salu(f"s_cselect_b32 s{S_DELTA}, {(-4*SLOT) & 0xffffffff}, s{S_CPOS}"),
            salu(f"s_cselect_b32 s{S_RSLOT}, 0, s{S_RSLOT}")]

def rebase(base, n):
    return [valu(f"v_add_u32 {vr(base+i)}, s{S_DELTA}, {vr(base+i)}", {f"v{base+i}"}, {f"v{base+i}"}) for i in range(n)]

def build_body(P, typ, steps):
    n = len(steps)
    assert n % 2 == 0
    def st(k): return steps[k % n]
    groups = []
    for k in range(n):
        r, sub, t = st(k - 1)
        g = dict(mf=pv_group(t, (k - 1) % 2), fixed=[[] for _ in range(8)], pre=[], kind="pv", k=k - 1)
        groups.append(g)
        r, sub, t = st(k + 1)
        g = dict(mf=qk_group(typ, t, (k + 1) % 2), fixed=[[] for _ in range(8)], pre=[], kind="qk", k=k + 1)
        groups.append(g)
    def step_id(k):
        r, sub, t = st(k)
        return (k // n, r, sub)
    for gi, g in enumerate(groups):
        j = g["k"]
        if g["kind"] == "pv" and step_id(j + 1) != step_id(j):
            nsub = st(j + 1)[1]
            if nsub == 0:
                g["pre"] += rebase(V_VA, 4)
            m = 0
            for ks in range(2):
                for dt in range(4):
                    g["fixed"][m] += [v_load(dt, ks, 0, nsub), v_load(dt, ks, 1, nsub)]
                    m += 1
        if g["kind"] == "qk" and step_id(j + 1) != step_id(j):
            nsub = st(j + 1)[1]
            if nsub == 1:
                for s in range(8):
                    g["fixed"][s] += [k_load(s, 1)]
            else:
                ng = groups[(gi + 1) % len(groups)]
                ng["barrier"] = True
    seen = set([0])
    nq = {"A": {1: 40, 2: 32}, "B": {1: 32}}[typ]
    for g in groups:
        if g["kind"] == "qk":
            t = st(g["k"])[2]
            if t not in seen:
                seen.add(t)
                l = newlbl("L_q")
                g["pre"] += [salu(f"s_cmp_lg_u32 s{S_N}, 0"), other(f"s_cbranch_scc1 {l}")] + cond([other(f"s_waitcnt vmcnt({nq[t]})")]) + [label(l)]
    nbar = 0
    for g in groups:
        if g.get("barrier"):
            last_of_item = (typ == "A" and nbar == 1)
            g["pre"] = barrier_block(typ, False) + slot_advance() + rebase(V_KA, 8) + g["pre"]
            for s in range(8):
                g["fixed"][s // 3] += [k_load(s, 0)]
            d = dma_ops()
            extra = []
            if typ == "A" and nbar == 1:
                l = newlbl("L_d")
                extra = [salu(f"s_and_b32 s{S_T2}, s{S_N}, 7"), salu(f"s_cmp_eq_u32 s{S_T2}, 7"), other(f"s_cbranch_scc1 {l}")] + cond(d) + [label(l)]
                g["block"] = extra
            else:
                g["block"] = d
            if (typ == "B") or nbar == (OPT["q0"] % 2):
                l = newlbl("L_qn")
                g["block"] = g["block"] + [salu(f"s_cmp_lg_u32 s{S_N}, {OPT['q0']}"), other(f"s_cbranch_scc1 {l}")] + \
                    cond(q_loads("B" if typ == "A" else "A")) + [label(l)]
            g["block"] = g["block"] + [salu(f"s_add_u32 s{S_N}, s{S_N}, 1")]
            nbar += 1
    for k in range(n):
        r, sub, t = st(k)
        ops = softmax_ops(t, k % 2)
        g0, g1 = groups[2 * k], groups[2 * k + 1]
        gaps = [(g0, i) for i in range(2, 8)] + [(g1, i) for i in range(8)]
        fixed = [sum(x.cost for x in g["fixed"][i]) for g, i in gaps]
        tot = sum(x.cost for x in ops) + 8 + sum(fixed)
        per = tot / len(gaps)
        cum = 0.0; placed = 0.0; oi = 0
        for gi, (g, i) in enumerate(gaps):
            cum += per
            placed += fixed[gi]
            lst = g.setdefault("flex", [[] for _ in range(8)])[i]
            while oi < len(ops) and (placed + ops[oi].cost / 2 <= cum or gi == len(gaps) - 1):
                lst.append(ops[oi]); placed += ops[oi].cost; oi += 1
        g1["flex"][7] += check_ops(t, k % 2)
    for g in groups:
        P.add(g["pre"])
        for i in range(8):
            P.add(g["mf"][i])
            P.add(g["fixed"][i])
            if i == 1 and g.get("block"):
                P.add(g["block"])
            P.add(g.get("flex", [[] for _ in range(8)])[i])

def slow_routine(P, t, sb):
    S = V_S + 16 * sb; nm = V_NEGM + t; X = V_X
    P.add(label(f"L_slow_{t}_{sb}"))
    P.add(other("s_nop 15", 64)); P.add(other("s_nop 15", 64))
    P.add(valu(f"v_max3_f32 {vr(X)}, {vr(S)}, {vr(S+1)}, {vr(S+2)}", rs("v", S, 3), {f"v{X}"}))
    for i in range(3, 15, 2):
        P.add(valu(f"v_max3_f32 {vr(X)}, {vr(X)}, {vr(S+i)}, {vr(S+i+1)}", {f"v{X}", f"v{S+i}", f"v{S+i+1}"}, {f"v{X}"}))
    P.add(valu(f"v_max_f32 {vr(X)}, {vr(X)}, {vr(S+15)}", {f"v{X}", f"v{S+15}"}, {f"v{X}"}))
    P.add(valu(f"v_mov_b32 {vr(X+1)}, {vr(X)}", {f"v{X}"}, {f"v{X+1}"}))
    P.add(Ins(f"v_permlane32_swap_b32 {vr(X)}, {vr(X+1)}", "perm", {f"v{X}", f"v{X+1}"}, {f"v{X}", f"v{X+1}"}))
    P.add(other("s_nop 1", 8))
    P.add(valu(f"v_max_f32 {vr(X)}, {vr(X)}, {vr(X+1)}", {f"v{X}", f"v{X+1}"}, {f"v{X}"}))
    P.add(valu(f"v_mul_f32 {vr(X)}, s{S_C}, {vr(X)}", {f"v{X}"}, {f"v{X}"}))
    P.add(valu(f"v_min_f32 {vr(X)}, {vr(nm)}, -{vr(X)}", {f"v{X}", f"v{nm}"}, {f"v{X}"}))
    P.add(valu(f"v_sub_f32 {vr(X+1)}, {vr(X)}, {vr(nm)}", {f"v{X}", f"v{nm}"}, {f"v{X+1}"}))
    P.add(valu(f"v_exp_f32 {vr(X+1)}, {vr(X+1)}", {f"v{X+1}"}, {f"v{X+1}"}, trans=True))
    P.add(valu(f"v_mov_b32 {vr(nm)}, {vr(X)}", {f"v{X}"}, {f"v{nm}"}))
    P.add(valu(f"v_mul_f32 {vr(V_L+t)}, {vr(V_L+t)}, {vr(X+1)}", {f"v{V_L+t}", f"v{X+1}"}, {f"v{V_L+t}"}))
    l = newlbl("L_sk")
    P.add(salu(f"s_cmp_lg_u32 s{S_FIRST+t}, 0")); P.add(other(f"s_cbranch_scc1 {l}"))
    for i in range(0, 64, 4):
        for j in range(4):
            P.add(valu(f"v_accvgpr_read_b32 {vr(X+2+j)}, {ar(A_O+64*t+i+j)}", {f"a{A_O+64*t+i+j}"}, {f"v{X+2+j}"}))
        for j in range(4):
            P.add(valu(f"v_mul_f32 {vr(X+2+j)}, {vr(X+2+j)}, {vr(X+1)}", {f"v{X+2+j}", f"v{X+1}"}, {f"v{X+2+j}"}))
        for j in range(4):
            P.add(valu(f"v_accvgpr_write_b32 {ar(A_O+64*t+i+j)}, {vr(X+2+j)}", {f"v{X+2+j}"}, {f"a{A_O+64*t+i+j}"}))
    P.add(label(l))
    P.add(salu(f"s_mov_b32 s{S_FIRST+t}, 0"))
    P.add(softmax_ops(t, sb))
    P.add(other("s_nop 3", 16))
    P.add(other(f"s_setpc_b64 s[{S_RET}:{S_RET+1}]"))

def item_init(P, typ):
    nt = 3 if typ == "A" else 2
    for t in range(nt):
        P.add(valu(f"v_mov_b32 {vr(V_NEGM+t)}, 0x7f800000", (), {f"v{V_NEGM+t}"}))
        P.add(valu(f"v_mov_b32 {vr(V_L+t)}, 0", (), {f"v{V_L+t}"}))
        P.add(salu(f"s_mov_b32 s{S_FIRST+t}, 1"))
    for i in range(64 * nt):
        P.add(valu(f"v_accvgpr_write_b32 {ar(A_O+i)}, 0", (), {f"a{A_O+i}"}))
    for i in range(8):
        P.add(valu(f"v_mov_b32 {vr(V_P+8+i)}, 0", (), {f"v{V_P+8+i}"}))

def lsum_inv(P, lreg, dst, X):
    P.add(valu(f"v_mov_b32 {vr(X)}, {vr(lreg)}", {f"v{lreg}"}, {f"v{X}"}))
    P.add(valu(f"v_mov_b32 {vr(X+1)}, {vr(lreg)}", {f"v{lreg}"}, {f"v{X+1}"}))
    P.add(Ins(f"v_permlane32_swap_b32 {vr(X)}, {vr(X+1)}", "perm", {f"v{X}", f"v{X+1}"}, {f"v{X}", f"v{X+1}"}))
    P.add(other("s_nop 1", 8))
    P.add(valu(f"v_add_f32 {vr(dst)}, {vr(X)}, {vr(X+1)}", {f"v{X}", f"v{X+1}"}, {f"v{dst}"}))

def store_unit(P, t, dt, kp, scale, B, soff, addsrc=None):
    nt = " nt" if OPT["st_nt"] else ""
    a0 = A_O + 64 * t + 16 * dt + 8 * kp
    for j in range(8):
        P.add(valu(f"v_accvgpr_read_b32 {vr(B+j)}, {ar(a0+j)}", {f"a{a0+j}"}, {f"v{B+j}"}))
    for j in range(8):
        if addsrc is None:
            P.add(valu(f"v_mul_f32 {vr(B+j)}, {vr(B+j)}, {vr(scale)}", {f"v{B+j}", f"v{scale}"}, {f"v{B+j}"}))
        else:
            P.add(valu(f"v_fma_f32 {vr(B+j)}, {vr(B+j)}, {vr(scale)}, {vr(addsrc+j)}", {f"v{B+j}", f"v{scale}", f"v{addsrc+j}"}, {f"v{B+j}"}))
    for j in range(4):
        P.add(valu(f"v_cvt_pk_bf16_f32 {vr(B+8+j)}, {vr(B+2*j)}, {vr(B+2*j+1)}", {f"v{B+2*j}", f"v{B+2*j+1}"}, {f"v{B+8+j}"}))
    P.add(Ins(f"v_permlane32_swap_b32 {vr(B+8)}, {vr(B+10)}", "perm", {f"v{B+8}", f"v{B+10}"}, {f"v{B+8}", f"v{B+10}"}))
    P.add(Ins(f"v_permlane32_swap_b32 {vr(B+9)}, {vr(B+11)}", "perm", {f"v{B+9}", f"v{B+11}"}, {f"v{B+9}", f"v{B+11}"}))
    P.add(Ins(f"buffer_store_dwordx4 {vr(B+8,4)}, {vr(V_QO)}, s[{SRD_O}:{SRD_O+3}], {soff} offen offset:{64*dt+32*kp}{nt}", "vmem",
              rs("v", B + 8, 4) | {f"v{V_QO}"}, (), 8, tag="store"))

def epilogue_full(P, t, sreg, add):
    X = V_X
    lsum_inv(P, V_L + t, X + 2, X)
    P.add(valu(f"v_rcp_f32 {vr(X+2)}, {vr(X+2)}", {f"v{X+2}"}, {f"v{X+2}"}, trans=True))
    so = f"s{sreg}"
    if add:
        P.add(salu(f"s_add_u32 s{S_T1}, s{sreg}, {add}")); so = f"s{S_T1}"
    u = 0
    for dt in range(4):
        for kp in range(2):
            store_unit(P, t, dt, kp, X + 2, V_S + 12 * (u % 4), so)
            u += 1

def epilogue_H(P, par):
    X = V_X; t = 2
    P.add(salu(f"s_lshl_b32 s{S_T0}, s{S_W}, 12"))
    P.add(salu(f"s_sub_u32 s{S_T0}, s{S_M0}, s{S_T0}"))
    P.add(salu(f"s_lshl_b32 s{S_T1}, s{S_W}, 13"))
    P.add(salu(f"s_add_u32 s{S_XME}, s{S_T0}, s{S_T1}"))
    P.add(salu(f"s_xor_b32 s{S_T1}, s{S_T1}, 8192"))
    P.add(salu(f"s_add_u32 s{S_XPART}, s{S_T0}, s{S_T1}"))
    lsum_inv(P, V_L + t, X + 3, X)
    P.add(valu(f"v_mov_b32 {vr(X+2)}, {vr(V_NEGM+t)}", {f"v{V_NEGM+t}"}, {f"v{X+2}"}))
    P.add(valu(f"v_add_u32 {vr(X+4)}, s{S_XPART}, {vr(V_LANE8)}", {f"v{V_LANE8}"}, {f"v{X+4}"}))
    P.add(valu(f"v_add_u32 {vr(X+5)}, s{S_XME}, {vr(V_LANE8)}", {f"v{V_LANE8}"}, {f"v{X+5}"}))
    P.add(Ins(f"ds_write_b64 {vr(X+4)}, {vr(X+2,2)}", "lds", {f"v{X+4}", f"v{X+2}", f"v{X+3}"}, ()))
    P.lgkm0()
    P.add(other("s_barrier"))
    P.add(Ins(f"ds_read_b64 {vr(X+6,2)}, {vr(X+5)}", "lds", {f"v{X+5}"}, {f"v{X+6}", f"v{X+7}"}))
    P.add(valu(f"v_min_f32 {vr(X)}, {vr(X+2)}, {vr(X+6)}", {f"v{X+2}", f"v{X+6}"}, {f"v{X}"}))
    P.add(valu(f"v_sub_f32 {vr(X+1)}, {vr(X)}, {vr(X+2)}", {f"v{X}", f"v{X+2}"}, {f"v{X+1}"}))
    P.add(valu(f"v_sub_f32 {vr(X)}, {vr(X)}, {vr(X+6)}", {f"v{X}", f"v{X+6}"}, {f"v{X}"}))
    P.add(valu(f"v_exp_f32 {vr(X+1)}, {vr(X+1)}", {f"v{X+1}"}, {f"v{X+1}"}, trans=True))
    P.add(valu(f"v_exp_f32 {vr(X)}, {vr(X)}", {f"v{X}"}, {f"v{X}"}, trans=True))
    P.add(valu(f"v_mul_f32 {vr(X+3)}, {vr(X+3)}, {vr(X+1)}", {f"v{X+3}", f"v{X+1}"}, {f"v{X+3}"}))
    P.add(valu(f"v_fma_f32 {vr(X+3)}, {vr(X+7)}, {vr(X)}, {vr(X+3)}", {f"v{X+7}", f"v{X}", f"v{X+3}"}, {f"v{X+3}"}))
    P.add(valu(f"v_rcp_f32 {vr(X+3)}, {vr(X+3)}", {f"v{X+3}"}, {f"v{X+3}"}, trans=True))
    P.add(valu(f"v_mul_f32 {vr(X+2)}, {vr(X+3)}, {vr(X+1)}", {f"v{X+3}", f"v{X+1}"}, {f"v{X+2}"}))
    P.add(valu(f"v_add_u32 {vr(X+4)}, s{S_XPART}, {vr(V_LANE16)}", {f"v{V_LANE16}"}, {f"v{X+4}"}))
    P.add(valu(f"v_add_u32 {vr(X+5)}, s{S_XME}, {vr(V_LANE16)}", {f"v{V_LANE16}"}, {f"v{X+5}"}))
    send = [2 * (1 - par), 2 * (1 - par) + 1]
    keep = [2 * par, 2 * par + 1]
    u = 0
    for dt in send:
        for q4 in range(4):
            B = V_S + 4 * (u % 8)
            a0 = A_O + 64 * t + 16 * dt + 4 * q4
            for j in range(4):
                P.add(valu(f"v_accvgpr_read_b32 {vr(B+j)}, {ar(a0+j)}", {f"a{a0+j}"}, {f"v{B+j}"}))
            for j in range(4):
                P.add(valu(f"v_mul_f32 {vr(B+j)}, {vr(B+j)}, {vr(X+2)}", {f"v{B+j}", f"v{X+2}"}, {f"v{B+j}"}))
            P.add(Ins(f"ds_write_b128 {vr(X+5)}, {vr(B,4)} offset:{u*1024}", "lds", rs("v", B, 4) | {f"v{X+5}"}, ()))
            u += 1
    P.lgkm0()
    P.add(other("s_barrier"))
    for u in range(8):
        P.add(Ins(f"ds_read_b128 {vr(V_S+4*u,4)}, {vr(X+4)} offset:{u*1024}", "lds", {f"v{X+4}"}, rs("v", V_S + 4 * u, 4)))
    P.lgkm0()
    P.add(other("s_barrier"))
    P.add(dma_ops())
    u = 0
    for di, dt in enumerate(keep):
        for kp in range(2):
            store_unit(P, t, dt, kp, X + 2, V_P if u % 2 == 0 else V_T - 4, f"s{S_QH}", addsrc=V_S + 16 * di + 8 * kp)
            u += 1

def item_code(P, typ, par):
    tag = f"{typ}{par}" if typ == "A" else "B"
    if typ == "A":
        if par == 0:
            ring = [(0, 0), (0, 1), (0, 2), (1, 0), (1, 1)]
        else:
            ring = [(0, 0), (0, 1), (1, 0), (1, 1), (1, 2)]
        steps = [(0, s, t) for s, t in ring] + [(1, s, t) for s, t in ring]
        iters = 4
    else:
        steps = [(0, 0, 0), (0, 0, 1), (0, 1, 0), (0, 1, 1)]
        iters = 8
    P.add(label(f"L_item_{tag}"))
    item_init(P, typ)
    P.lgkm0()
    P.add(qk_group(typ, 0, 0))
    P.add(label(f"L_loop_{tag}"))
    assert not P.ldsq
    build_body(P, typ, steps)
    assert not P.ldsq, P.ldsq
    P.add(salu(f"s_and_b32 s{S_T2}, s{S_N}, 7"))
    P.add(salu(f"s_cmp_lg_u32 s{S_T2}, 0"))
    P.add(other(f"s_cbranch_scc1 L_loop_{tag}"))
    r, sub, t = steps[-1]
    P.add(pv_group(t, (len(steps) - 1) % 2))
    P.add(other("s_nop 15", 64))
    P.lgkm0()
    if typ == "A":
        epilogue_H(P, par)
        epilogue_full(P, 0, S_QA, 0)
        epilogue_full(P, 1, S_QA, 8192)
    else:
        epilogue_full(P, 0, S_QB, 0)
        epilogue_full(P, 1, S_QB, 8192)
    P.add(salu(f"s_add_u32 s{S_ITEM}, s{S_ITEM}, 1"))
    P.add(salu(f"s_cmp_ge_u32 s{S_ITEM}, 2"))
    P.add(other("s_cbranch_scc1 L_done"))
    P.add(other("s_branch L_go_B" if typ == "A" else "s_branch L_go_A"))

def prologue(P):
    P.add(salu(f"s_cmp_ge_u32 s{S_WG}, 256")); P.add(other("s_cbranch_scc1 L_done"))
    P.add(other("s_load_dwordx4 s[4:7], s[0:1], 0")); P.add(other("s_load_dwordx4 s[8:11], s[0:1], 16"))
    X = V_X
    lane, key, h = X, X + 1, X + 2
    P.add(valu(f"v_lshrrev_b32 {vr(X+3)}, 6, v0", {"v0"}, {f"v{X+3}"}))
    P.add(valu(f"v_and_b32 {vr(lane)}, 63, v0", {"v0"}, {f"v{lane}"}))
    P.add(Ins(f"v_readfirstlane_b32 s{S_W}, {vr(X+3)}", "rfl", {f"v{X+3}"}, {f"s{S_W}"}))
    def V(text, rd, wr): P.add(valu(text, {f"v{r}" for r in rd}, {f"v{w}" for w in wr}))
    V(f"v_and_b32 {vr(key)}, 31, {vr(lane)}", [lane], [key])
    V(f"v_lshrrev_b32 {vr(h)}, 5, {vr(lane)}", [lane], [h])
    V(f"v_lshlrev_b32 {vr(V_LANE8)}, 3, {vr(lane)}", [lane], [V_LANE8])
    V(f"v_lshlrev_b32 {vr(V_LANE16)}, 4, {vr(lane)}", [lane], [V_LANE16])
    V(f"v_lshlrev_b32 {vr(X+3)}, 8, {vr(key)}", [key], [X + 3])
    V(f"v_lshl_add_u32 {vr(V_QO)}, {vr(h)}, 4, {vr(X+3)}", [h, X + 3], [V_QO])
    V(f"v_and_b32 {vr(X+4)}, 15, {vr(key)}", [key], [X + 4])
    V(f"v_xor_b32 {vr(X+4)}, {vr(X+4)}, {vr(h)}", [X + 4, h], [X + 4])
    for s in range(8):
        V(f"v_xor_b32 {vr(X+5)}, {2*s}, {vr(X+4)}", [X + 4], [X + 5])
        V(f"v_lshl_add_u32 {vr(V_KA+s)}, {vr(X+5)}, 4, {vr(X+3)}", [X + 5, X + 3], [V_KA + s])
    r_, cq, dsel = X + 4, X + 5, X + 6
    V(f"v_bfe_u32 {vr(r_)}, {vr(lane)}, 2, 2", [lane], [r_])
    V(f"v_and_b32 {vr(cq)}, 3, {vr(lane)}", [lane], [cq])
    V(f"v_bfe_u32 {vr(dsel)}, {vr(lane)}, 4, 1", [lane], [dsel])
    V(f"v_lshl_add_u32 {vr(X+7)}, {vr(h)}, 2, {vr(r_)}", [h, r_], [X + 7])
    V(f"v_lshlrev_b32 {vr(X+7)}, 8, {vr(X+7)}", [X + 7], [X + 7])
    V(f"v_lshl_add_u32 {vr(X+7)}, {vr(dsel)}, 5, {vr(X+7)}", [dsel, X + 7], [X + 7])
    V(f"v_lshl_add_u32 {vr(X+7)}, {vr(cq)}, 3, {vr(X+7)}", [cq, X + 7], [X + 7])
    V(f"v_add_u32 {vr(X+7)}, 16384, {vr(X+7)}", [X + 7], [X + 7])
    for dt in range(4):
        V(f"v_xor_b32 {vr(X+8)}, {dt}, {vr(r_)}", [r_], [X + 8])
        V(f"v_lshl_add_u32 {vr(V_VA+dt)}, {vr(X+8)}, 6, {vr(X+7)}", [X + 8, X + 7], [V_VA + dt])
    rr, pp = X + 4, X + 5
    V(f"v_lshrrev_b32 {vr(rr)}, 4, {vr(lane)}", [lane], [rr])
    V(f"v_and_b32 {vr(pp)}, 15, {vr(lane)}", [lane], [pp])
    V(f"v_lshlrev_b32 {vr(X+6)}, 8, {vr(rr)}", [rr], [X + 6])
    V(f"v_xor_b32 {vr(X+7)}, {vr(pp)}, {vr(rr)}", [pp, rr], [X + 7])
    for a in range(4):
        V(f"v_xor_b32 {vr(X+8)}, {4*a}, {vr(X+7)}", [X + 7], [X + 8])
        V(f"v_lshl_add_u32 {vr(V_DK+a)}, {vr(X+8)}, 4, {vr(X+6)}", [X + 8, X + 6], [V_DK + a])
    V(f"v_lshlrev_b32 {vr(X+7)}, 2, {vr(rr)}", [rr], [X + 7])
    V(f"v_xor_b32 {vr(X+7)}, {vr(pp)}, {vr(X+7)}", [pp, X + 7], [X + 7])
    V(f"v_lshl_add_u32 {vr(V_DV)}, {vr(X+7)}, 4, {vr(X+6)}", [X + 7, X + 6], [V_DV])
    P.add(salu(f"s_and_b32 s{S_T0}, s{S_WG}, 7"))
    P.add(salu(f"s_lshr_b32 s{S_T1}, s{S_WG}, 4"))
    P.add(salu(f"s_lshl_b32 s{S_T1}, s{S_T1}, 3"))
    P.add(salu(f"s_add_u32 s{S_T0}, s{S_T0}, s{S_T1}"))
    P.add(salu(f"s_lshr_b32 s{S_ROLE}, s{S_WG}, 3"))
    P.add(salu(f"s_and_b32 s{S_ROLE}, s{S_ROLE}, 1"))
    P.add(salu(f"s_lshl_b32 s{S_KV}, s{S_T0}, 18"))
    P.add(salu(f"s_lshl_b32 s{S_M0}, s{S_W}, 12"))
    P.add(salu(f"s_add_u32 s{S_KV}, s{S_KV}, s{S_M0}"))
    P.add(salu(f"s_lshl_b32 s{S_T0}, s{S_T0}, 1"))
    P.add(salu(f"s_add_u32 s{S_T1}, s{S_T0}, s{S_ROLE}"))
    P.add(salu(f"s_mul_i32 s{S_T1}, s{S_T1}, 147456"))
    P.add(salu(f"s_lshl_b32 s{S_T2}, s{S_W}, 14"))
    P.add(salu(f"s_add_u32 s{S_QA}, s{S_T1}, s{S_T2}"))
    P.add(salu(f"s_lshr_b32 s{S_QH}, s{S_W}, 1"))
    P.add(salu(f"s_lshl_b32 s{S_QH}, s{S_QH}, 13"))
    P.add(salu(f"s_add_u32 s{S_QH}, s{S_QH}, s{S_T1}"))
    P.add(salu(f"s_add_u32 s{S_QH}, s{S_QH}, {8*8192}"))
    P.add(salu(f"s_xor_b32 s{S_T1}, s{S_ROLE}, 1"))
    P.add(salu(f"s_add_u32 s{S_T1}, s{S_T0}, s{S_T1}"))
    P.add(salu(f"s_mul_i32 s{S_T1}, s{S_T1}, 147456"))
    P.add(salu(f"s_add_u32 s{S_QB}, s{S_T1}, s{S_T2}"))
    P.add(salu(f"s_add_u32 s{S_QB}, s{S_QB}, {10*8192}"))
    c = (128 ** -0.5) * math.log2(math.e)
    P.add(salu(f"s_mov_b32 s{S_C}, 0x{f32bits(c):08x}"))
    P.add(salu(f"s_mov_b32 s{S_THR}, 0x{f32bits(65536.0):08x}"))
    P.add(salu(f"s_mov_b32 s{S_N}, 0")); P.add(salu(f"s_mov_b32 s{S_RSLOT}, 0")); P.add(salu(f"s_mov_b32 s{S_WSLOT}, 0"))
    P.add(salu(f"s_mov_b32 s{S_ITEM}, 0"))
    P.add(salu(f"s_mov_b32 s{S_DELTA}, 0"))
    P.add(salu(f"s_mov_b32 s{S_CPOS}, {SLOT}"))
    q0 = OPT["q0"]
    P.add(salu(f"s_mov_b32 s{S_MASKQ}, {sum(1 << i for i in range(q0 + 1, q0 + 5))}"))
    P.add(salu(f"s_mov_b32 s{S_MASKS}, {sum(1 << i for i in (8, 9, 10))}"))
    for i in range(32):
        P.add(valu(f"v_mov_b32 {vr(V_VF+i)}, 0", (), {f"v{V_VF+i}"}))
    P.add(other("s_waitcnt lgkmcnt(0)"))
    for d, lo, n in ((SRD_Q, 4, QBYTES), (SRD_K, 6, KBYTES), (SRD_V, 8, KBYTES), (SRD_O, 10, QBYTES)):
        P.add(salu(f"s_mov_b32 s{d}, s{lo}")); P.add(salu(f"s_mov_b32 s{d+1}, s{lo+1}"))
        P.add(salu(f"s_mov_b32 s{d+2}, {n}")); P.add(salu(f"s_mov_b32 s{d+3}, 0x20000"))
    P.add(dma_ops())
    P.add(salu(f"s_cmp_lg_u32 s{S_ROLE}, 0")); P.add(other("s_cbranch_scc1 L_pro_B"))
    for typ in ("A", "B"):
        if typ == "B": P.add(label("L_pro_B"))
        nq = 24 if typ == "A" else 16
        P.add(q_loads(typ))
        for _ in range(4): P.add(dma_ops())
        P.add(other(f"s_waitcnt vmcnt({nq+32})"))
        P.add(other("s_barrier"))
        for s in range(8): P.add(k_load(s, 0))
        P.add(other(f"s_waitcnt vmcnt({nq+32-8})"))
        P.add(other(f"s_branch L_go_{typ}"))
    P.add(label("L_go_A"))
    P.add(salu(f"s_and_b32 s{S_T0}, s{S_W}, 1")); P.add(salu(f"s_cmp_lg_u32 s{S_T0}, 0"))
    P.add(other("s_cbranch_scc1 L_item_A1")); P.add(other("s_branch L_item_A0"))
    P.add(label("L_go_B")); P.add(other("s_branch L_item_B"))

def main():
    P = Prog()
    prologue(P)
    item_code(P, "A", 0)
    item_code(P, "A", 1)
    item_code(P, "B", 0)
    P.add(label("L_done")); P.add(other("s_endpgm"))
    for st, ro, rt in stubs:
        P.add(label(st)); P.add(other(f"s_call_b64 s[{S_RET}:{S_RET+1}], {ro}")); P.add(other(f"s_branch {rt}"))
    used = sorted(set(ro for _, ro, _ in stubs))
    for ro in used:
        _, _, t, sb = ro.split("_")
        slow_routine(P, int(t), int(sb))
    head = open("standalone__gqa_softmax__near_ridge.s.ref").read().split("; @launch")[0]
    out = head + "; @launch grid=(256,1,1) block=(256,1,1) lds=163840\n"
    out += '.amdgcn_target "amdgcn-amd-amdhsa--gfx950"\n.text\n.globl %s\n.p2align 8\n.type %s,@function\n%s:\n' % (NAME, NAME, NAME)
    out += P.text() + "\n"
    out += '''.section .rodata,"a"
.p2align 6
.amdhsa_kernel %s
  .amdhsa_next_free_vgpr 512
  .amdhsa_next_free_sgpr 64
  .amdhsa_accum_offset 256
  .amdhsa_group_segment_fixed_size 0
  .amdhsa_kernarg_size 48
  .amdhsa_user_sgpr_count 2
  .amdhsa_user_sgpr_kernarg_segment_ptr 1
  .amdhsa_system_sgpr_workgroup_id_x 1
.end_amdhsa_kernel
''' % NAME
    open(sys.argv[1] if len(sys.argv) > 1 else "k1.s", "w").write(out)

main()
```

```python
import sys, math, struct

OPT = dict(
    ld_nt=True, st_nt=False,
    no_sm=False, no_lds=False, no_exp=False, no_chk=False, no_dma=False, no_mfma=False, stamp=False,
)
for a in sys.argv[2:]:
    k, v = a.split("=")
    OPT[k] = type(OPT[k])(int(v)) if not isinstance(OPT[k], str) else v

NAME = "standalone__gqa_softmax__near_ridge_kernel"
QBYTES = 37748736
KBYTES = 33554432
SLOT = 32768

def f32bits(x):
    return struct.unpack("<I", struct.pack("<f", x))[0]

V_QA = 0
V_KF = 96
V_VF = 128
V_S = 160
V_P = 192
V_T = 208
V_NEGM = 216
V_L = 219
V_TS = 222
V_KA = 223
V_VA = 231
V_DK = 235
V_DV = 239
V_QBASE = 240
V_QXOR = 241
V_X = 242
V_TC = 253
V_LANE8 = 254
V_LANE16 = 255
A_O = 0
A_QB = 192
S_WG, S_W = 2, 3
S_PQ, S_PK, S_PV, S_PO = 4, 6, 8, 10
S_E1, S_E2, SRD_O = 12, 16, 24
S_O1, S_O2 = 20, 21
S_C = 28
S_LO, S_RANGE = 29, 22
S_RET = 30
S_N = 32
S_KV = 33
S_M0 = 34
S_RB = 35
S_DELTA = 36
S_QA = 37
S_QH = 38
S_QB = 39
S_KVN = 40
S_QPOS = 41
S_QLEFT = 42
S_ROLE = 43
S_ITEM = 44
S_T0, S_T1, S_T2 = 45, 46, 47
S_Q2 = 48
S_KCUR, S_VCUR = 51, 52
S_XME, S_XPART = 53, 54
S_W4K = 55
S_HI = 56
S_P0, S_P1, S_P2 = 60, 61, 62
S_STAMP = 64

def vr(b, n=1):
    return f"v{b}" if n == 1 else f"v[{b}:{b+n-1}]"
def ar(b, n=1):
    return f"a{b}" if n == 1 else f"a[{b}:{b+n-1}]"
def rs(p, b, n):
    return {f"{p}{i}" for i in range(b, b + n)}

class Ins:
    __slots__ = ("text", "kind", "rd", "wr", "cost", "srcc", "tag", "skip", "likely")
    def __init__(self, text, kind, rd=(), wr=(), cost=4, srcc=(), tag=None):
        self.text, self.kind, self.rd, self.wr, self.cost, self.srcc, self.tag = text, kind, set(rd), set(wr), cost, set(srcc), tag
        self.skip = False
        self.likely = True

def R(kind, b, n=1):
    return (vr(b, n) if kind == "v" else ar(b, n)), rs(kind, b, n)

def mfma(dk, d, ak, a, bk, b, czero=False):
    dt, ds_ = R(dk, d, 16); at, as_ = R(ak, a, 4); bt, bs_ = R(bk, b, 4)
    c = "0" if czero else dt
    return Ins(f"v_mfma_f32_32x32x16_bf16 {dt}, {at}, {bt}, {c}", "mfma", as_ | bs_ | (set() if czero else ds_), ds_, 8,
               srcc=(set() if czero else ds_))
def valu(text, rd, wr, trans=False, cost=None):
    return Ins(text, "trans" if trans else "valu", rd, wr, cost or (8 if trans else 4))
def salu(text, rd=(), wr=()):
    return Ins(text, "salu", rd, wr, 4)
def other(text, cost=4):
    return Ins(text, "other", (), (), cost)
def label(name):
    return Ins(name + ":", "label", (), (), 0)
def V(text, rd, wr, **kw):
    return valu(text, {f"v{r}" for r in rd}, {f"v{w}" for w in wr}, **kw)
def perm(a, b):
    return Ins(f"v_permlane32_swap_b32 {vr(a)}, {vr(b)}", "perm", {f"v{a}", f"v{b}"}, {f"v{a}", f"v{b}"})

class Prog:
    def __init__(self):
        self.ins = []
        self.ldsq = []
    def states_back(self, inrun=False):
        d = 0
        for i in reversed(self.ins):
            if i.kind == "label":
                inrun = False
                continue
            yield i, d
            if not i.skip:
                inrun = False
            if i.skip and not inrun:
                continue
            if i.text.startswith("s_nop"):
                d += int(i.text.split()[1]) + 1
            else:
                d += 1
            if d > 24:
                return
    def need(self, x):
        n = 0
        for p, d in self.states_back(x.skip):
            req = 0
            if p.kind == "mfma":
                if x.kind == "mfma":
                    if p.wr & (x.rd - x.srcc): req = 12
                    elif (p.wr & x.srcc) and (p.wr != x.srcc): req = 10
                    elif (p.wr & x.wr) and not (p.wr & x.srcc): req = 12
                elif x.kind in ("valu", "trans", "lds", "vmem", "perm"):
                    if p.wr & (x.rd | x.wr): req = 12
                    if x.kind in ("valu", "trans", "perm") and (p.srcc & x.wr): req = max(req, 7)
            elif p.kind in ("valu", "trans", "perm"):
                if x.kind == "mfma" and (p.wr & x.rd): req = 2
                if x.kind == "perm" and (p.wr & x.rd): req = 2
                if p.kind == "perm" and x.kind in ("valu", "trans") and (p.wr & x.rd): req = max(req, 2)
                if p.kind == "trans" and x.kind in ("valu", "perm") and (p.wr & x.rd): req = max(req, 1)
                if x.kind in ("valu", "trans") and any(r.startswith("s") or r == "vcc" for r in (p.wr & x.rd)): req = max(req, 2)
                if x.kind == "vmem" and any(r.startswith("s") for r in (p.wr & x.rd)): req = max(req, 5)
                if x.kind == "rfl" and (p.wr & x.rd): req = max(req, 1)
            elif p.kind == "rfl":
                if x.kind in ("valu", "trans") and (p.wr & x.rd): req = 2
                if x.kind == "vmem" and (p.wr & x.rd): req = 5
                if x.kind == "salu" and (p.wr & x.rd): req = 2
            elif p.kind == "vmem" and p.tag == "store":
                if x.kind in ("valu", "trans", "perm", "lds") and (p.rd & x.wr): req = 2
            elif p.kind == "salu" and "m0" in p.wr:
                if x.kind == "vmem" and "m0" in x.rd: req = 1
            if req > d:
                n = max(n, req - d)
        return n
    def add(self, x):
        if isinstance(x, (list, tuple)):
            for y in x: self.add(y)
            return
        if x.text == "s_waitcnt lgkmcnt(0)":
            self.ins.append(x); self.ldsq = []
            return
        if x.kind in ("mfma", "valu", "trans", "vmem", "perm", "lds"):
            use = x.rd | x.wr
            last = -1
            for i, (dst, tg) in enumerate(self.ldsq):
                if dst & use: last = i
            if last >= 0 and self.ldsq[last][1] is not None and x.kind == "mfma":
                tg = self.ldsq[last][1]
                while last + 1 < len(self.ldsq) and self.ldsq[last + 1][1] == tg: last += 1
            if last >= 0:
                n = len(self.ldsq) - 1 - last
                n = min(n, 15)
                self.ins.append(other(f"s_waitcnt lgkmcnt({n})"))
                self.ldsq = self.ldsq[len(self.ldsq) - n:] if n else []
        n = self.need(x)
        while n > 0:
            k = min(n, 16)
            self.ins.append(other(f"s_nop {k-1}", 4 * k))
            self.ins[-1].skip = x.skip
            n -= k
        self.ins.append(x)
        if x.kind == "lds":
            self.ldsq.append((set(x.wr), x.tag))
    def lgkm0(self):
        self.add(other("s_waitcnt lgkmcnt(0)"))
    def text(self):
        return "\n".join(i.text if i.kind == "label" else "    " + i.text for i in self.ins)

def cond(ops, likely=False):
    for o in ops:
        o.skip = True; o.likely = likely
    return ops
lbl_n = [0]
def newlbl(p="L"):
    lbl_n[0] += 1
    return f"{p}{lbl_n[0]}"

def q_reg(typ, t):
    return ("v", V_QA + 32 * t) if typ == "A" else ("a", A_QB + 32 * t)

def qk_group(typ, t, sb):
    qk, qb = q_reg(typ, t)
    return [mfma("v", V_S + 16 * sb, "v", V_KF + 4 * s, qk, qb + 4 * s, czero=(s == 0)) for s in range(8)]

def pv_group(t, pb):
    out = []
    for ks in range(2):
        for dt in range(4):
            out.append(mfma("a", A_O + 64 * t + 16 * dt, "v", V_VF + 8 * dt + 4 * ks, "v", V_P + 8 * pb + 4 * ks))
    return out

def k_load(s, sub):
    return Ins(f"ds_read_b128 {vr(V_KF+4*s,4)}, {vr(V_KA+s)} offset:{sub*8192}", "lds", {f"v{V_KA+s}"}, rs("v", V_KF + 4 * s, 4), 6, tag="K")

def v_load(dt, ks, e4, sub):
    d = V_VF + 8 * dt + 4 * ks + 2 * e4
    return Ins(f"ds_read_b64_tr_b16 {vr(d,2)}, {vr(V_VA+dt)} offset:{sub*8192+ks*4096+e4*2048}", "lds", {f"v{V_VA+dt}"}, rs("v", d, 2), 4, tag="V")

def softmax_ops(t, sb, with_cmp=True):
    S = V_S + 16 * sb; P = V_P + 8 * sb; T = V_T; nm = V_NEGM + t; ts = V_TS
    ops = []; tail = []
    for k in range(19):
        if k < 16:
            ops.append(V(f"v_fma_f32 {vr(T+k%8)}, {vr(S+k)}, s{S_C}, {vr(nm)}", [S + k, nm], [T + k % 8], cost=5))
        r = k - 1
        if 0 <= r < 16:
            ops.append(V(f"v_exp_f32 {vr(T+r%8)}, {vr(T+r%8)}", [T + r % 8], [T + r % 8], trans=True))
        r = k - 3
        if 1 <= r < 16:
            if r == 1:
                ops.append(V(f"v_add_f32 {vr(ts)}, {vr(T)}, {vr(T+1)}", [T, T + 1], [ts]))
            else:
                ops.append(V(f"v_add_f32 {vr(ts)}, {vr(ts)}, {vr(T+r%8)}", [ts, T + r % 8], [ts]))
            if r % 2 == 1:
                a, b = T + (r - 1) % 8, T + r % 8
                c = V(f"v_cvt_pk_bf16_f32 {vr(P+r//2)}, {vr(a)}, {vr(b)}", [a, b], [P + r // 2], cost=5)
                (tail if r >= 11 else ops).append(c)
    if with_cmp:
        ops.append(V(f"v_subrev_u32 {vr(V_TC)}, s{S_LO}, {vr(ts)}", [ts], [V_TC]))
        ops.append(valu(f"v_cmp_lt_u32 vcc, s{S_RANGE}, {vr(V_TC)}", {f"v{V_TC}"}, {"vcc"}))
    return ops + tail

stubs = []
site_n = [0]
def check_ops(t, sb):
    k = site_n[0]; site_n[0] += 1
    stubs.append((f"L_stub{k}", f"L_slow_{t}_{sb}", f"L_ret{k}"))
    return [other(f"s_cbranch_vccnz L_stub{k}", 10),
            label(f"L_ret{k}"),
            V(f"v_add_f32 {vr(V_L+t)}, {vr(V_L+t)}, {vr(V_TS)}", [V_L + t, V_TS], [V_L + t])]

def entry_issue():
    nt = " nt" if OPT["ld_nt"] else ""
    u = []
    for half, (e, so) in enumerate(((S_E1, S_O1), (S_E2, S_O2))):
        for a in range(4):
            vo = V_DK + a if half == 0 else V_DV
            x = []
            if a == 0:
                x.append(salu(f"s_mov_b32 m0, s{S_M0}", (), {"m0"}) if half == 0 else salu(f"s_add_u32 m0, s{S_M0}, 16384", (), {"m0"}))
            x.append(Ins(f"buffer_load_dwordx4 {vr(vo)}, s[{e}:{e+3}], s{so} offen offset:{a*1024}{nt} lds", "vmem", {f"v{vo}", "m0"}, (), 8))
            u.append(x)
    u.append([salu(f"s_add_u32 s{S_M0}, s{S_M0}, {SLOT}"),
              salu(f"s_cmp_ge_u32 s{S_M0}, {5*SLOT}"),
              salu(f"s_cselect_b32 s{S_P0}, {5*SLOT}, 0"),
              salu(f"s_sub_u32 s{S_M0}, s{S_M0}, s{S_P0}")])
    return u

def kv_next():
    return [salu(f"s_add_u32 s{S_O1}, s{S_O1}, 16384"), salu(f"s_add_u32 s{S_O2}, s{S_O2}, 16384")]

def set_q(sreg):
    return [salu(f"s_mov_b64 s[{S_E1}:{S_E1+1}], s[{S_PQ}:{S_PQ+1}]"), salu(f"s_mov_b64 s[{S_E2}:{S_E2+1}], s[{S_PQ}:{S_PQ+1}]"),
            salu(f"s_mov_b32 s{S_E1+2}, {QBYTES}"), salu(f"s_mov_b32 s{S_E2+2}, {QBYTES}"),
            salu(f"s_mov_b32 s{S_O1}, s{sreg}"), salu(f"s_add_u32 s{S_O2}, s{sreg}, 4096")]

def set_kv():
    return [salu(f"s_mov_b64 s[{S_E1}:{S_E1+1}], s[{S_PK}:{S_PK+1}]"), salu(f"s_mov_b64 s[{S_E2}:{S_E2+1}], s[{S_PV}:{S_PV+1}]"),
            salu(f"s_mov_b32 s{S_E1+2}, 262144"), salu(f"s_mov_b32 s{S_E2+2}, 262144"),
            salu(f"s_mov_b32 s{S_O1}, s{S_KV}"), salu(f"s_mov_b32 s{S_O2}, s{S_KV}")]

outline = []
def special_site(typ):
    lo, lr = newlbl("L_sp"), newlbl("L_spr")
    nq2 = 2 if typ == "A" else 3
    blk = [label(lo)]
    def case(p, ops):
        l = newlbl("L_c")
        return [salu(f"s_cmp_lg_u32 s{S_N}, {p}"), other(f"s_cbranch_scc1 {l}")] + ops + [other(f"s_branch {lr}"), label(l)]
    blk += case(3, [salu(f"s_mov_b32 s{S_KV}, s{S_O1}")] + set_q(S_Q2))
    for j in range(1, nq2):
        blk += case(3 + j, set_q(S_Q2 + j))
    blk += case(3 + nq2, set_kv())
    blk += [salu(f"s_mov_b32 s{S_LO}, 0"), salu(f"s_mov_b32 s{S_RANGE}, s{S_HI}"), other(f"s_branch {lr}")]
    outline.append(blk)
    msk = S_HI + 2 if typ == "A" else S_HI + 1
    return kv_next() + [salu(f"s_bitcmp1_b32 s{msk}, s{S_N}"), other(f"s_cbranch_scc1 {lo}", 10), label(lr)]

def extra_site():
    lo, lr = newlbl("L_ex"), newlbl("L_exr")
    outline.append([label(lo)] + sum(entry_issue(), []) + kv_next() + [other(f"s_branch {lr}")])
    return [salu(f"s_bitcmp1_b32 s{S_HI+3}, s{S_N}"), other(f"s_cbranch_scc1 {lo}", 10), label(lr)]

def rb_advance():
    return [salu(f"s_add_u32 s{S_RB}, s{S_RB}, {SLOT}"),
            salu(f"s_cmp_ge_u32 s{S_RB}, {5*SLOT}"),
            salu(f"s_cselect_b32 s{S_RB}, 0, s{S_RB}")]

def rebase(base, n, sreg=S_DELTA):
    return [V(f"v_add_u32 {vr(base+i)}, s{sreg}, {vr(base+i)}", [base + i], [base + i]) for i in range(n)]

def build_body(P, typ, steps):
    n = len(steps)
    assert n % 2 == 0
    def st(k): return steps[k % n]
    groups = []
    for k in range(n):
        r, sub, t = st(k - 1)
        groups.append(dict(mf=pv_group(t, (k - 1) % 2), fixed=[[] for _ in range(8)], pre=[], kind="pv", k=k - 1))
        r, sub, t = st(k + 1)
        groups.append(dict(mf=qk_group(typ, t, (k + 1) % 2), fixed=[[] for _ in range(8)], pre=[], kind="qk", k=k + 1))
    ng = len(groups)
    def step_id(k):
        r, sub, t = st(k)
        return (k // n, r, sub)
    bar_groups = []
    for gi, g in enumerate(groups):
        j = g["k"]
        if g["kind"] == "pv" and step_id(j + 1) != step_id(j):
            nsub = st(j + 1)[1]
            if nsub == 0:
                g["pre"] += rebase(V_VA, 4)
            m = 0
            for ks in range(2):
                for dt in range(4):
                    g["fixed"][m] += [v_load(dt, ks, 0, nsub), v_load(dt, ks, 1, nsub)]
                    m += 1
        if g["kind"] == "qk" and step_id(j + 1) != step_id(j):
            nsub = st(j + 1)[1]
            if nsub == 1:
                for s in range(8):
                    g["fixed"][s] += [k_load(s, 1)]
            else:
                bar_groups.append((gi + 1) % ng)
                adv = rb_advance() + [salu(f"s_sub_u32 s{S_DELTA}, s{S_RB}, s{S_KCUR}"), salu(f"s_mov_b32 s{S_KCUR}, s{S_RB}"),
                                      salu(f"s_mov_b32 s{S_VCUR}, s{S_RB}"), salu(f"s_add_u32 s{S_N}, s{S_N}, 1")]
                g["fixed"][0] += adv[:3]; g["fixed"][1] += adv[3:]
                rb = rebase(V_KA, 8)
                for i in range(8):
                    g["fixed"][2 + i * 6 // 8] += [rb[i]]
    nx = 3 if typ == "A" else 2
    for bi, gi in enumerate(bar_groups):
        g = groups[gi]
        g["pre"] = [other("s_waitcnt lgkmcnt(0)"), other("s_waitcnt vmcnt(24)"), other("s_barrier")] + g["pre"]
        for s_ in range(8):
            g["fixed"][s_ // 3] += [k_load(s_, 0)]
        last = (bi == len(bar_groups) - 1)
        e = entry_issue()
        units = [e[0] + e[1], e[2] + e[3], e[4] + e[5], e[6] + e[7], e[8], special_site(typ)]
        if last:
            units += [extra_site() for _ in range(nx)]
        slots = []
        cnt = (bar_groups[(bi + 1) % len(bar_groups)] - gi) % ng or ng
        for off in range(cnt):
            idx = (gi + off) % ng
            gg = groups[idx]
            if last and idx >= gi: continue
            if gg["kind"] == "pv":
                sl = [4] if off == 0 else [0, 1]
            else:
                sl = [3] if off + 1 < cnt else []
            slots += [(gg, i) for i in sl]
        assign = [[] for _ in slots]
        for ui, u_ in enumerate(units):
            assign[min(len(slots) - 1, ui * len(slots) // len(units))] += u_
        for (gg, i), blk in zip(slots, assign):
            gg["fixed"][i] += blk
    for k in range(n):
        r, sub, t = st(k)
        ops = softmax_ops(t, k % 2)
        g0, g1 = groups[2 * k], groups[2 * k + 1]
        gaps = [(g0, i) for i in range(2, 8)] + [(g1, i) for i in range(8)]
        fixed = [sum(x.cost for x in g["fixed"][i] if x.likely) for g, i in gaps]
        tot = sum(x.cost for x in ops) + 14 + sum(fixed)
        per = tot / len(gaps)
        cum = 0.0; placed = 0.0; oi = 0
        for gi, (g, i) in enumerate(gaps):
            cum += per
            placed += fixed[gi]
            lst = g.setdefault("flex", [[] for _ in range(8)])[i]
            while oi < len(ops) and (placed + ops[oi].cost / 2 <= cum or gi == len(gaps) - 1):
                lst.append(ops[oi]); placed += ops[oi].cost; oi += 1
        g1["flex"][7] += check_ops(t, k % 2)
    for gi, g in enumerate(groups):
        P.add(g["pre"])
        for i in range(8):
            if not OPT["no_mfma"]: P.add(g["mf"][i])
            fx = g["fixed"][i]
            if OPT["no_lds"]: fx = [x for x in fx if x.kind != "lds"]
            if OPT["no_dma"]: fx = [x for x in fx if x.kind != "vmem"]
            P.add(fx)
            fl = g.get("flex", [[] for _ in range(8)])[i]
            if OPT["no_sm"]: fl = [x for x in fl if x.kind == "label"]
            if OPT["no_exp"]: fl = [x for x in fl if x.kind != "trans"]
            if OPT["no_chk"]: fl = [x for x in fl if "vcc" not in x.text]
            P.add(fl)

def slow_routine(P, t, sb):
    S = V_S + 16 * sb; nm = V_NEGM + t; X = V_X
    P.add(label(f"L_slow_{t}_{sb}"))
    P.add(other("s_nop 15", 64))
    P.add(V(f"v_max3_f32 {vr(X)}, {vr(S)}, {vr(S+1)}, {vr(S+2)}", [S, S + 1, S + 2], [X]))
    for i in range(3, 15, 2):
        P.add(V(f"v_max3_f32 {vr(X)}, {vr(X)}, {vr(S+i)}, {vr(S+i+1)}", [X, S + i, S + i + 1], [X]))
    P.add(V(f"v_max_f32 {vr(X)}, {vr(X)}, {vr(S+15)}", [X, S + 15], [X]))
    P.add(V(f"v_mov_b32 {vr(X+1)}, {vr(X)}", [X], [X + 1]))
    P.add(perm(X, X + 1))
    P.add(V(f"v_max_f32 {vr(X)}, {vr(X)}, {vr(X+1)}", [X, X + 1], [X]))
    P.add(V(f"v_mul_f32 {vr(X)}, s{S_C}, {vr(X)}", [X], [X]))
    P.add(V(f"v_mov_b32 {vr(X+2)}, {vr(V_L+t)}", [V_L + t], [X + 2]))
    P.add(V(f"v_mov_b32 {vr(X+3)}, {vr(V_L+t)}", [V_L + t], [X + 3]))
    P.add(perm(X + 2, X + 3))
    P.add(V(f"v_add_f32 {vr(X+2)}, {vr(X+2)}, {vr(X+3)}", [X + 2, X + 3], [X + 2]))
    P.add(valu(f"v_cmp_neq_f32 vcc, 0, {vr(X+2)}", {f"v{X+2}"}, {"vcc"}))
    P.add(V(f"v_mov_b32 {vr(X+3)}, 0x7f800000", [], [X + 3]))
    P.add(valu(f"v_cndmask_b32 {vr(X+3)}, {vr(X+3)}, {vr(nm)}, vcc", {f"v{X+3}", f"v{nm}", "vcc"}, {f"v{X+3}"}))
    P.add(V(f"v_min_f32 {vr(X)}, {vr(X+3)}, -{vr(X)}", [X, X + 3], [X]))
    P.add(V(f"v_sub_f32 {vr(X+1)}, {vr(X)}, {vr(X+3)}", [X, X + 3], [X + 1]))
    P.add(V(f"v_exp_f32 {vr(X+1)}, {vr(X+1)}", [X + 1], [X + 1], trans=True))
    P.add(V(f"v_mov_b32 {vr(nm)}, {vr(X)}", [X], [nm]))
    P.add(V(f"v_mul_f32 {vr(V_L+t)}, {vr(V_L+t)}, {vr(X+1)}", [V_L + t, X + 1], [V_L + t]))
    l = newlbl("L_sk")
    P.add(other(f"s_cbranch_vccz {l}"))
    for i in range(0, 64, 4):
        for j in range(4):
            P.add(valu(f"v_accvgpr_read_b32 {vr(X+4+j)}, {ar(A_O+64*t+i+j)}", {f"a{A_O+64*t+i+j}"}, {f"v{X+4+j}"}))
        for j in range(4):
            P.add(V(f"v_mul_f32 {vr(X+4+j)}, {vr(X+4+j)}, {vr(X+1)}", [X + 4 + j, X + 1], [X + 4 + j]))
        for j in range(4):
            P.add(valu(f"v_accvgpr_write_b32 {ar(A_O+64*t+i+j)}, {vr(X+4+j)}", {f"v{X+4+j}"}, {f"a{A_O+64*t+i+j}"}))
    P.add(label(l))
    P.add(softmax_ops(t, sb, with_cmp=False))
    P.add(other("s_nop 3", 16))
    P.add(other(f"s_setpc_b64 s[{S_RET}:{S_RET+1}]"))

def stamp(P, idx_expr):
    if not OPT["stamp"]: return
    if isinstance(idx_expr, int):
        P.add(other(f"s_memtime s[{S_STAMP+2*idx_expr}:{S_STAMP+2*idx_expr+1}]"))
        P.add(other("s_waitcnt lgkmcnt(0)"))
    else:
        base = idx_expr[1]
        l1, l2 = newlbl("L_st"), newlbl("L_st")
        P.add(salu(f"s_cmp_lg_u32 s{S_ITEM}, 0")); P.add(other(f"s_cbranch_scc1 {l1}"))
        P.add(other(f"s_memtime s[{S_STAMP+2*base}:{S_STAMP+2*base+1}]")); P.add(other(f"s_branch {l2}"))
        P.add(label(l1)); P.add(other(f"s_memtime s[{S_STAMP+2*(base+4)}:{S_STAMP+2*(base+4)+1}]"))
        P.add(label(l2)); P.add(other("s_waitcnt lgkmcnt(0)"))

def stamp_out(P):
    if not OPT["stamp"]: return
    P.add(other("s_waitcnt vmcnt(0)"))
    stamp(P, 10)
    P.add(other("s_load_dwordx2 s[4:5], s[0:1], 40")); P.add(other("s_waitcnt lgkmcnt(0)"))
    P.add(salu("s_mov_b32 s6, 268435456")); P.add(salu("s_mov_b32 s7, 0x20000"))
    P.add(salu(f"s_lshl_b32 s8, s{S_WG}, 2")); P.add(salu(f"s_add_u32 s8, s8, s{S_W}")); P.add(salu("s_lshl_b32 s8, s8, 6"))
    P.add(valu("v_mov_b32 v1, 0", (), {"v1"}))
    for i in range(11):
        P.add(valu(f"v_mov_b32 v2, s{S_STAMP+2*i}", (), {"v2"}))
        P.add(Ins(f"buffer_store_dword v2, v1, s[4:7], s8 offen offset:{4*i}", "vmem", {"v1", "v2"}, ()))
        P.add(other("s_waitcnt vmcnt(0)"))

def img_addr(P, dst, chunk_even, sbase):
    P.add(V(f"v_xor_b32 {vr(dst)}, {chunk_even}, {vr(V_QXOR)}", [V_QXOR], [dst]))
    P.add(V(f"v_lshl_add_u32 {vr(dst)}, {vr(dst)}, 4, {vr(V_QBASE)}", [dst, V_QBASE], [dst]))
    P.add(V(f"v_add_u32 {vr(dst)}, s{sbase}, {vr(dst)}", [dst], [dst]))

def item_start(P, typ):
    nt = 3 if typ == "A" else 2
    X = V_X
    for i in range(8):
        P.add(V(f"v_mov_b32 {vr(V_P+8+i)}, 0", [], [V_P + 8 + i]))
    for s in range(8):
        P.add(V(f"v_xor_b32 {vr(V_S+s)}, {2*s}, {vr(V_QXOR)}", [V_QXOR], [V_S + s]))
        P.add(V(f"v_lshl_add_u32 {vr(V_S+s)}, {vr(V_S+s)}, 4, {vr(V_QBASE)}", [V_S + s, V_QBASE], [V_S + s]))
    for i in range(4 * nt):
        P.add(mfma("a", A_O + 16 * i, "v", V_VF, "v", V_P + 8, czero=True))
        if i % 4 == 0:
            t = i // 4
            qk, qb = q_reg(typ, t)
            for s in range(8):
                P.add(V(f"v_add_u32 {vr(V_S+8+s)}, s{S_RB}, {vr(V_S+s)}", [V_S + s], [V_S + 8 + s]))
            for s in range(8):
                dt_, ds_ = R(qk, qb + 4 * s, 4)
                P.add(Ins(f"ds_read_b128 {dt_}, {vr(V_S+8+s)}", "lds", {f"v{V_S+8+s}"}, ds_))
            P.add(rb_advance())
    P.add(salu(f"s_sub_u32 s{S_DELTA}, s{S_RB}, s{S_KCUR}")); P.add(salu(f"s_mov_b32 s{S_KCUR}, s{S_RB}"))
    P.add(rebase(V_KA, 8))
    for s in range(8): P.add(k_load(s, 0))
    P.add(salu(f"s_sub_u32 s{S_DELTA}, s{S_RB}, s{S_VCUR}")); P.add(salu(f"s_mov_b32 s{S_VCUR}, s{S_RB}"))
    for t in range(nt):
        P.add(V(f"v_mov_b32 {vr(V_NEGM+t)}, 0", [], [V_NEGM + t]))
        P.add(V(f"v_mov_b32 {vr(V_L+t)}, 0", [], [V_L + t]))
    lo = f32bits(2.0 ** -20); hi = f32bits(65536.0)
    P.add(salu(f"s_mov_b32 s{S_LO}, 0x{lo:08x}")); P.add(salu(f"s_mov_b32 s{S_RANGE}, 0x{hi-lo:08x}"))
    P.lgkm0()

def lsum(P, lreg, dst, X):
    P.add(V(f"v_mov_b32 {vr(X)}, {vr(lreg)}", [lreg], [X]))
    P.add(V(f"v_mov_b32 {vr(X+1)}, {vr(lreg)}", [lreg], [X + 1]))
    P.add(perm(X, X + 1))
    P.add(V(f"v_add_f32 {vr(dst)}, {vr(X)}, {vr(X+1)}", [X, X + 1], [dst]))

def pack_unit(P, t, dt, kp, scale, B, addr, addsrc=None):
    a0 = A_O + 64 * t + 16 * dt + 8 * kp
    for j in range(8):
        P.add(valu(f"v_accvgpr_read_b32 {vr(B+j)}, {ar(a0+j)}", {f"a{a0+j}"}, {f"v{B+j}"}))
    for j in range(8):
        if addsrc is None:
            P.add(V(f"v_mul_f32 {vr(B+j)}, {vr(B+j)}, {vr(scale)}", [B + j, scale], [B + j]))
        else:
            P.add(V(f"v_fma_f32 {vr(B+j)}, {vr(B+j)}, {vr(scale)}, {vr(addsrc+j)}", [B + j, scale, addsrc + j], [B + j]))
    for j in range(4):
        P.add(V(f"v_cvt_pk_bf16_f32 {vr(B+8+j)}, {vr(B+2*j)}, {vr(B+2*j+1)}", [B + 2 * j, B + 2 * j + 1], [B + 8 + j]))
    P.add(perm(B + 8, B + 10)); P.add(perm(B + 9, B + 11))
    P.add(Ins(f"ds_write_b128 {vr(addr)}, {vr(B+8,4)}", "lds", rs("v", B + 8, 4) | {f"v{addr}"}, ()))

def image_store(P, soff_reg, add, pieces, RB):
    nt = " nt" if OPT["st_nt"] else ""
    X = V_X
    P.add(V(f"v_add_u32 {vr(X+8)}, s{S_M0}, {vr(V_LANE16)}", [V_LANE16], [X + 8]))
    P.lgkm0()
    for i, a in enumerate(pieces):
        off = (a % 4) * 1024 + (16384 if a >= 4 else 0)
        P.add(Ins(f"ds_read_b128 {vr(RB+4*i,4)}, {vr(X+8)} offset:{off}", "lds", {f"v{X+8}"}, rs("v", RB + 4 * i, 4)))
    P.add(salu(f"s_add_u32 s{S_T1}, s{soff_reg}, {add}"))
    P.add(salu(f"s_add_u32 s{S_T2}, s{soff_reg}, {add+4096}"))
    for i, a in enumerate(pieces):
        vo = V_DK + a if a < 4 else V_DV
        so = S_T1 if a < 4 else S_T2
        P.add(Ins(f"buffer_store_dwordx4 {vr(RB+4*i,4)}, {vr(vo)}, s[{SRD_O}:{SRD_O+3}], s{so} offen offset:{(a%4)*1024}{nt}", "vmem",
                  rs("v", RB + 4 * i, 4) | {f"v{vo}"}, (), 8, tag="store"))

def slot_base(P, dst):
    P.add(salu(f"s_sub_u32 s{dst}, s{S_M0}, s{S_W4K}"))

def epilogue_full(P, t, sreg, add, RB):
    X = V_X
    lsum(P, V_L + t, X + 2, X)
    P.add(V(f"v_rcp_f32 {vr(X+2)}, {vr(X+2)}", [X + 2], [X + 2], trans=True))
    slot_base(P, S_T0)
    u = 0
    for dt in range(4):
        for kp in range(2):
            ad = X + 4 + (u % 2)
            img_addr(P, ad, 4 * dt + 2 * kp, S_T0)
            pack_unit(P, t, dt, kp, X + 2, V_S + 12 * (u % 4), ad)
            u += 1
    image_store(P, sreg, add, list(range(8)), RB)

def epilogue_H(P, par):
    X = V_X; t = 2
    P.add(salu(f"s_mov_b32 s{S_XME}, s{S_M0}"))
    P.add(salu(f"s_xor_b32 s{S_XPART}, s{S_M0}, 4096"))
    lsum(P, V_L + t, X + 3, X)
    P.add(V(f"v_mov_b32 {vr(X+2)}, {vr(V_NEGM+t)}", [V_NEGM + t], [X + 2]))
    P.add(V(f"v_add_u32 {vr(X+4)}, s{S_XPART}, {vr(V_LANE8)}", [V_LANE8], [X + 4]))
    P.add(V(f"v_add_u32 {vr(X+5)}, s{S_XME}, {vr(V_LANE8)}", [V_LANE8], [X + 5]))
    P.add(Ins(f"ds_write_b64 {vr(X+4)}, {vr(X+2,2)}", "lds", {f"v{X+4}", f"v{X+2}", f"v{X+3}"}, ()))
    P.lgkm0()
    P.add(other("s_barrier"))
    P.add(Ins(f"ds_read_b64 {vr(X+6,2)}, {vr(X+5)}", "lds", {f"v{X+5}"}, {f"v{X+6}", f"v{X+7}"}))
    P.add(V(f"v_min_f32 {vr(X)}, {vr(X+2)}, {vr(X+6)}", [X + 2, X + 6], [X]))
    P.add(V(f"v_sub_f32 {vr(X+1)}, {vr(X)}, {vr(X+2)}", [X, X + 2], [X + 1]))
    P.add(V(f"v_sub_f32 {vr(X)}, {vr(X)}, {vr(X+6)}", [X, X + 6], [X]))
    P.add(V(f"v_exp_f32 {vr(X+1)}, {vr(X+1)}", [X + 1], [X + 1], trans=True))
    P.add(V(f"v_exp_f32 {vr(X)}, {vr(X)}", [X], [X], trans=True))
    P.add(V(f"v_mul_f32 {vr(X+3)}, {vr(X+3)}, {vr(X+1)}", [X + 3, X + 1], [X + 3]))
    P.add(V(f"v_fma_f32 {vr(X+3)}, {vr(X+7)}, {vr(X)}, {vr(X+3)}", [X + 7, X, X + 3], [X + 3]))
    P.add(V(f"v_rcp_f32 {vr(X+3)}, {vr(X+3)}", [X + 3], [X + 3], trans=True))
    P.add(V(f"v_mul_f32 {vr(X+2)}, {vr(X+3)}, {vr(X+1)}", [X + 3, X + 1], [X + 2]))
    P.add(V(f"v_add_u32 {vr(X+4)}, s{S_XPART}, {vr(V_LANE16)}", [V_LANE16], [X + 4]))
    P.add(V(f"v_add_u32 {vr(X+5)}, s{S_XME}, {vr(V_LANE16)}", [V_LANE16], [X + 5]))
    send = [2 * (1 - par), 2 * (1 - par) + 1]
    keep = [2 * par, 2 * par + 1]
    def koff(u): return (u % 4) * 1024 + (16384 if u >= 4 else 0)
    u = 0
    for dt in send:
        for q4 in range(4):
            B = V_S + 4 * (u % 8)
            a0 = A_O + 64 * t + 16 * dt + 4 * q4
            for j in range(4):
                P.add(valu(f"v_accvgpr_read_b32 {vr(B+j)}, {ar(a0+j)}", {f"a{a0+j}"}, {f"v{B+j}"}))
            for j in range(4):
                P.add(V(f"v_mul_f32 {vr(B+j)}, {vr(B+j)}, {vr(X+2)}", [B + j, X + 2], [B + j]))
            P.add(Ins(f"ds_write_b128 {vr(X+5)}, {vr(B,4)} offset:{koff(u)}", "lds", rs("v", B, 4) | {f"v{X+5}"}, ()))
            u += 1
    P.lgkm0()
    P.add(other("s_barrier"))
    for u in range(8):
        P.add(Ins(f"ds_read_b128 {vr(V_S+4*u,4)}, {vr(X+4)} offset:{koff(u)}", "lds", {f"v{X+4}"}, rs("v", V_S + 4 * u, 4)))
    P.lgkm0()
    P.add(other("s_barrier"))
    P.add(salu(f"s_andn2_b32 s{S_T0}, s{S_M0}, 4096"))
    P.add(salu(f"s_sub_u32 s{S_T0}, s{S_T0}, s{S_W4K}"))
    u = 0
    for di, dt in enumerate(keep):
        for kp in range(2):
            ad = X + 4 + (u % 2)
            img_addr(P, ad, 4 * dt + 2 * kp, S_T0)
            pack_unit(P, t, dt, kp, X + 2, V_P if u % 2 == 0 else V_T - 4, ad, addsrc=V_S + 16 * di + 8 * kp)
            u += 1
    P.lgkm0()
    P.add(other("s_barrier"))
    nt = " nt" if OPT["st_nt"] else ""
    P.add(salu(f"s_andn2_b32 s{S_T0}, s{S_M0}, 4096"))
    P.add(V(f"v_add_u32 {vr(X+8)}, s{S_T0}, {vr(V_LANE16)}", [V_LANE16], [X + 8]))
    pieces = [0, 1, 2, 3] if par == 0 else [4, 5, 6, 7]
    for i, a in enumerate(pieces):
        P.add(Ins(f"ds_read_b128 {vr(V_S+4*i,4)}, {vr(X+8)} offset:{koff(a)}", "lds", {f"v{X+8}"}, rs("v", V_S + 4 * i, 4)))
    P.add(salu(f"s_add_u32 s{S_T1}, s{S_QH}, {0 if par == 0 else 4096}"))
    for i, a in enumerate(pieces):
        vo = V_DK + a if a < 4 else V_DV
        P.add(Ins(f"buffer_store_dwordx4 {vr(V_S+4*i,4)}, {vr(vo)}, s[{SRD_O}:{SRD_O+3}], s{S_T1} offen offset:{(a%4)*1024}{nt}", "vmem",
                  rs("v", V_S + 4 * i, 4) | {f"v{vo}"}, (), 8, tag="store"))
    P.lgkm0()
    P.add(other("s_barrier"))

def item_code(P, typ, par):
    tag = f"{typ}{par}" if typ == "A" else "B"
    if typ == "A":
        ring = [(0, 0), (0, 1), (0, 2), (1, 0), (1, 1)] if par == 0 else [(0, 0), (0, 1), (1, 0), (1, 1), (1, 2)]
        steps = [(0, s, t) for s, t in ring] + [(1, s, t) for s, t in ring]
    else:
        steps = [(0, 0, 0), (0, 0, 1), (0, 1, 0), (0, 1, 1)]
    P.add(label(f"L_item_{tag}"))
    stamp(P, ("item", 2))
    item_start(P, typ)
    P.add(qk_group(typ, 0, 0))
    stamp(P, ("item", 3))
    P.add(label(f"L_loop_{tag}"))
    assert not P.ldsq
    build_body(P, typ, steps)
    P.ldsq = []
    P.add(salu(f"s_and_b32 s{S_T2}, s{S_N}, 7"))
    P.add(salu(f"s_cmp_lg_u32 s{S_T2}, 0"))
    P.add(other(f"s_cbranch_scc1 L_loop_{tag}"))
    stamp(P, ("item", 4))
    r, sub, t = steps[-1]
    P.add(pv_group(t, (len(steps) - 1) % 2))
    P.add(other(f"s_waitcnt vmcnt({8 if typ == 'A' else 0})"))
    P.lgkm0()
    P.add(salu(f"s_sub_u32 s{S_VCUR}, s{S_VCUR}, s{S_DELTA}"))
    if typ == "A":
        epilogue_H(P, par)
        epilogue_full(P, 0, S_QA, 0, V_KF)
        epilogue_full(P, 1, S_QA, 8192, V_VF)
    else:
        P.add(other("s_barrier"))
        epilogue_full(P, 0, S_QB, 0, V_KF)
        epilogue_full(P, 1, S_QB, 8192, V_VF)
    P.lgkm0()
    stamp(P, ("item", 5))
    P.add(salu(f"s_add_u32 s{S_ITEM}, s{S_ITEM}, 1"))
    P.add(salu(f"s_cmp_ge_u32 s{S_ITEM}, 2"))
    P.add(other("s_cbranch_scc1 L_fin"))
    P.add(other("s_branch L_go_B" if typ == "A" else "s_branch L_go_A"))

def prologue(P):
    P.add(salu(f"s_cmp_ge_u32 s{S_WG}, 256")); P.add(other("s_cbranch_scc1 L_done"))
    stamp(P, 0)
    P.add(other("s_load_dwordx4 s[4:7], s[0:1], 0")); P.add(other("s_load_dwordx4 s[8:11], s[0:1], 16"))
    X = V_X
    lane, key, h = X, X + 1, X + 2
    P.add(V(f"v_lshrrev_b32 {vr(X+3)}, 6, v0", [0], [X + 3]))
    P.add(V(f"v_and_b32 {vr(lane)}, 63, v0", [0], [lane]))
    P.add(Ins(f"v_readfirstlane_b32 s{S_W}, {vr(X+3)}", "rfl", {f"v{X+3}"}, {f"s{S_W}"}))
    A = lambda text, rd, wr: P.add(V(text, rd, wr))
    rr, pp = X + 4, X + 5
    A(f"v_lshrrev_b32 {vr(rr)}, 4, {vr(lane)}", [lane], [rr])
    A(f"v_and_b32 {vr(pp)}, 15, {vr(lane)}", [lane], [pp])
    A(f"v_lshlrev_b32 {vr(X+6)}, 8, {vr(rr)}", [rr], [X + 6])
    A(f"v_xor_b32 {vr(X+7)}, {vr(pp)}, {vr(rr)}", [pp, rr], [X + 7])
    for a in range(4):
        A(f"v_xor_b32 {vr(X+8)}, {4*a}, {vr(X+7)}", [X + 7], [X + 8])
        A(f"v_lshl_add_u32 {vr(V_DK+a)}, {vr(X+8)}, 4, {vr(X+6)}", [X + 8, X + 6], [V_DK + a])
    A(f"v_lshlrev_b32 {vr(X+7)}, 2, {vr(rr)}", [rr], [X + 7])
    A(f"v_xor_b32 {vr(X+7)}, {vr(pp)}, {vr(X+7)}", [pp, X + 7], [X + 7])
    A(f"v_lshl_add_u32 {vr(V_DV)}, {vr(X+7)}, 4, {vr(X+6)}", [X + 7, X + 6], [V_DV])
    S = lambda t: P.add(salu(t))
    S(f"s_and_b32 s{S_T0}, s{S_WG}, 7"); S(f"s_lshr_b32 s{S_T1}, s{S_WG}, 4"); S(f"s_lshl_b32 s{S_T1}, s{S_T1}, 3")
    S(f"s_add_u32 s{S_T0}, s{S_T0}, s{S_T1}")
    S(f"s_lshr_b32 s{S_ROLE}, s{S_WG}, 3"); S(f"s_and_b32 s{S_ROLE}, s{S_ROLE}, 1")
    S(f"s_lshl_b32 s{S_KVN}, s{S_T0}, 18"); S(f"s_lshl_b32 s{S_W4K}, s{S_W}, 12"); S(f"s_mov_b32 s{S_M0}, s{S_W4K}")
    S(f"s_mov_b32 s{S_KV}, s{S_W4K}")
    S(f"s_lshl_b32 s{S_T0}, s{S_T0}, 1")
    S(f"s_add_u32 s{S_T1}, s{S_T0}, s{S_ROLE}"); S(f"s_mul_i32 s{S_T1}, s{S_T1}, 147456")
    S(f"s_lshl_b32 s{S_T2}, s{S_W}, 14"); S(f"s_add_u32 s{S_QA}, s{S_T1}, s{S_T2}")
    S(f"s_lshr_b32 s{S_QH}, s{S_W}, 1"); S(f"s_lshl_b32 s{S_QH}, s{S_QH}, 13"); S(f"s_add_u32 s{S_QH}, s{S_QH}, s{S_T1}")
    S(f"s_add_u32 s{S_QH}, s{S_QH}, {8*8192}")
    S(f"s_xor_b32 s{S_T1}, s{S_ROLE}, 1"); S(f"s_add_u32 s{S_T1}, s{S_T0}, s{S_T1}"); S(f"s_mul_i32 s{S_T1}, s{S_T1}, 147456")
    S(f"s_add_u32 s{S_QB}, s{S_T1}, s{S_T2}"); S(f"s_add_u32 s{S_QB}, s{S_QB}, {10*8192}")
    c = (128 ** -0.5) * math.log2(math.e)
    S(f"s_mov_b32 s{S_C}, 0x{f32bits(c):08x}")
    S(f"s_mov_b32 s{S_HI}, 0x{f32bits(65536.0):08x}")
    S(f"s_mov_b32 s{S_HI+1}, {sum(1 << i for i in (2, 3, 4, 5, 6, 10))}")
    S(f"s_mov_b32 s{S_HI+2}, {sum(1 << i for i in (2, 3, 4, 5, 10))}")
    S(f"s_mov_b32 s{S_HI+3}, 0x0101")
    for r_ in (S_N, S_RB, S_ITEM, S_DELTA, S_KCUR, S_VCUR): S(f"s_mov_b32 s{r_}, 0")
    S(f"s_mov_b32 s{S_E1+3}, 0x20000"); S(f"s_mov_b32 s{S_E2+3}, 0x20000")
    S(f"s_mov_b32 s{SRD_O+2}, {QBYTES}"); S(f"s_mov_b32 s{SRD_O+3}, 0x20000")
    P.add(other("s_waitcnt lgkmcnt(0)"))
    S(f"s_mov_b32 s{SRD_O}, s{S_PO}"); S(f"s_mov_b32 s{SRD_O+1}, s{S_PO+1}")
    S(f"s_add_u32 s{S_PK}, s{S_PK}, s{S_KVN}"); S(f"s_addc_u32 s{S_PK+1}, s{S_PK+1}, 0")
    S(f"s_add_u32 s{S_PV}, s{S_PV}, s{S_KVN}"); S(f"s_addc_u32 s{S_PV+1}, s{S_PV+1}, 0")
    def qlist(typ):
        if typ == "A":
            S(f"s_mov_b32 s{S_Q2}, s{S_QA}"); S(f"s_add_u32 s{S_Q2+1}, s{S_QA}, 8192"); S(f"s_mov_b32 s{S_Q2+2}, s{S_QH}"); S(f"s_mov_b32 s{S_QLEFT}, 3")
        else:
            S(f"s_mov_b32 s{S_Q2}, s{S_QB}"); S(f"s_add_u32 s{S_Q2+1}, s{S_QB}, 8192"); S(f"s_mov_b32 s{S_Q2+2}, s{S_QB}"); S(f"s_mov_b32 s{S_QLEFT}, 2")
    def rest():
        A(f"v_and_b32 {vr(key)}, 31, {vr(lane)}", [lane], [key])
        A(f"v_lshrrev_b32 {vr(h)}, 5, {vr(lane)}", [lane], [h])
        A(f"v_lshlrev_b32 {vr(V_LANE8)}, 3, {vr(lane)}", [lane], [V_LANE8])
        A(f"v_lshlrev_b32 {vr(V_LANE16)}, 4, {vr(lane)}", [lane], [V_LANE16])
        A(f"v_lshlrev_b32 {vr(X+3)}, 8, {vr(key)}", [key], [X + 3])
        A(f"v_and_b32 {vr(X+4)}, 15, {vr(key)}", [key], [X + 4])
        A(f"v_xor_b32 {vr(X+4)}, {vr(X+4)}, {vr(h)}", [X + 4, h], [X + 4])
        for s in range(8):
            A(f"v_xor_b32 {vr(X+5)}, {2*s}, {vr(X+4)}", [X + 4], [X + 5])
            A(f"v_lshl_add_u32 {vr(V_KA+s)}, {vr(X+5)}, 4, {vr(X+3)}", [X + 5, X + 3], [V_KA + s])
        A(f"v_and_b32 {vr(X+5)}, 15, {vr(key)}", [key], [X + 5])
        A(f"v_lshlrev_b32 {vr(X+6)}, 8, {vr(X+5)}", [X + 5], [X + 6])
        A(f"v_bfe_u32 {vr(X+7)}, {vr(key)}, 4, 1", [key], [X + 7])
        A(f"v_lshl_add_u32 {vr(X+6)}, {vr(X+7)}, 14, {vr(X+6)}", [X + 7, X + 6], [X + 6])
        A(f"v_add_u32 {vr(V_QBASE)}, s{S_W4K}, {vr(X+6)}", [X + 6], [V_QBASE])
        A(f"v_and_b32 {vr(X+6)}, 3, {vr(key)}", [key], [X + 6])
        A(f"v_lshlrev_b32 {vr(X+6)}, 2, {vr(X+6)}", [X + 6], [X + 6])
        P.add(valu(f"v_cmp_ne_u32 vcc, 0, {vr(X+7)}", {f"v{X+7}"}, {"vcc"}))
        P.add(valu(f"v_cndmask_b32 {vr(X+5)}, {vr(X+5)}, {vr(X+6)}, vcc", {f"v{X+5}", f"v{X+6}", "vcc"}, {f"v{X+5}"}))
        A(f"v_xor_b32 {vr(V_QXOR)}, {vr(X+5)}, {vr(h)}", [X + 5, h], [V_QXOR])
        r_, cq, dsel = X + 4, X + 5, X + 6
        A(f"v_bfe_u32 {vr(r_)}, {vr(lane)}, 2, 2", [lane], [r_])
        A(f"v_and_b32 {vr(cq)}, 3, {vr(lane)}", [lane], [cq])
        A(f"v_bfe_u32 {vr(dsel)}, {vr(lane)}, 4, 1", [lane], [dsel])
        A(f"v_lshl_add_u32 {vr(X+7)}, {vr(h)}, 2, {vr(r_)}", [h, r_], [X + 7])
        A(f"v_lshlrev_b32 {vr(X+7)}, 8, {vr(X+7)}", [X + 7], [X + 7])
        A(f"v_lshl_add_u32 {vr(X+7)}, {vr(dsel)}, 5, {vr(X+7)}", [dsel, X + 7], [X + 7])
        A(f"v_lshl_add_u32 {vr(X+7)}, {vr(cq)}, 3, {vr(X+7)}", [cq, X + 7], [X + 7])
        A(f"v_add_u32 {vr(X+7)}, 16384, {vr(X+7)}", [X + 7], [X + 7])
        for dt in range(4):
            A(f"v_xor_b32 {vr(X+8)}, {dt}, {vr(r_)}", [r_], [X + 8])
            A(f"v_lshl_add_u32 {vr(V_VA+dt)}, {vr(X+8)}, 6, {vr(X+7)}", [X + 8, X + 7], [V_VA + dt])
        for i in range(32):
            P.add(V(f"v_mov_b32 {vr(V_VF+i)}, 0", [], [V_VF + i]))
    S(f"s_cmp_lg_u32 s{S_ROLE}, 0"); P.add(other("s_cbranch_scc1 L_pro_B"))
    for typ in ("A", "B"):
        if typ == "B": P.add(label("L_pro_B"))
        nq = 3 if typ == "A" else 2
        qlist(typ)
        for e in range(nq):
            P.add(set_q(S_Q2 + e)); P.add(sum(entry_issue(), []))
        P.add(set_kv())
        for e in range(4 - nq):
            P.add(sum(entry_issue(), [])); P.add(kv_next())
            if e == 0: rest()
        qlist("B" if typ == "A" else "A")
        P.add(other(f"s_waitcnt vmcnt({(4-nq-1)*8})"))
        P.add(other("s_barrier"))
        stamp(P, 1)
        P.add(other(f"s_branch L_go_{typ}"))
    P.add(label("L_go_A"))
    S(f"s_and_b32 s{S_T0}, s{S_W}, 1"); S(f"s_cmp_lg_u32 s{S_T0}, 0")
    P.add(other("s_cbranch_scc1 L_item_A1")); P.add(other("s_branch L_item_A0"))
    P.add(label("L_go_B")); P.add(other("s_branch L_item_B"))

def main():
    P = Prog()
    prologue(P)
    item_code(P, "A", 0)
    item_code(P, "A", 1)
    item_code(P, "B", 0)
    P.add(label("L_fin"))
    stamp_out(P)
    P.add(label("L_done")); P.add(other("s_endpgm"))
    for blk in outline:
        P.add(blk)
    for st, ro, rt in stubs:
        P.add(label(st)); P.add(other(f"s_call_b64 s[{S_RET}:{S_RET+1}], {ro}")); P.add(other(f"s_branch {rt}"))
    used = sorted(set(ro for _, ro, _ in stubs))
    for ro in used:
        _, _, t, sb = ro.split("_")
        slow_routine(P, int(t), int(sb))
    head = open("standalone__gqa_softmax__near_ridge.s.ref").read().split("; @launch")[0]
    out = head + "; @launch grid=(256,1,1) block=(256,1,1) lds=163840\n"
    out += '.amdgcn_target "amdgcn-amd-amdhsa--gfx950"\n.text\n.globl %s\n.p2align 8\n.type %s,@function\n%s:\n' % (NAME, NAME, NAME)
    out += P.text() + "\n"
    out += '''.section .rodata,"a"
.p2align 6
.amdhsa_kernel %s
  .amdhsa_next_free_vgpr 512
  .amdhsa_next_free_sgpr 96
  .amdhsa_accum_offset 256
  .amdhsa_group_segment_fixed_size 0
  .amdhsa_kernarg_size 48
  .amdhsa_user_sgpr_count 2
  .amdhsa_user_sgpr_kernarg_segment_ptr 1
  .amdhsa_system_sgpr_workgroup_id_x 1
.end_amdhsa_kernel
''' % NAME
    open(sys.argv[1] if len(sys.argv) > 1 else "k2.s", "w").write(out)

main()
```

```python
import sys, math, struct

OPT = dict(
    ld_nt=True, st_nt=False, ldf='nt', stf='',
    no_sm=False, no_lds=False, no_exp=False, no_chk=False, no_dma=False, no_mfma=False, stamp=False, no_bar=False, no_sc=False, barstat=False,
)
for a in sys.argv[2:]:
    k, v = a.split("=")
    OPT[k] = type(OPT[k])(int(v)) if not isinstance(OPT[k], str) else v

NAME = "standalone__gqa_softmax__near_ridge_kernel"
QBYTES = 37748736
KBYTES = 33554432
SLOT = 32768

def f32bits(x):
    return struct.unpack("<I", struct.pack("<f", x))[0]

V_Q0 = 0
V_NB = 32
V_FREE = 80
V_KF = 96
V_VF = 128
V_S = 160
V_P = 192
V_T = 208
V_L = 219
V_TS = 222
V_KA = 223
V_VA = 231
V_DK = 235
V_DV = 239
V_QBASE = 240
V_QXOR = 241
V_X = 242
V_TC = 253
V_LANE8 = 254
V_LANE16 = 255
A_O = 0
A_Q1 = 192
S_WG, S_W = 2, 3
S_PQ, S_PK, S_PV, S_PO = 4, 6, 8, 10
S_E1, S_E2, SRD_O = 12, 16, 24
S_O1, S_O2 = 20, 21
S_C = 28
S_LO, S_RANGE = 29, 22
S_RET = 30
S_N = 32
S_KV = 33
S_M0 = 34
S_RB = 35
S_DELTA = 36
S_QA = 37
S_QH = 38
S_QB = 39
S_KVN = 40
S_QPOS = 41
S_QLEFT = 42
S_ROLE = 43
S_ITEM = 44
S_T0, S_T1, S_T2 = 45, 46, 47
S_Q2 = 48
S_KCUR, S_VCUR = 51, 52
S_XME, S_XPART = 53, 54
S_W4K = 55
S_HI = 56
S_P0, S_P1, S_P2 = 60, 61, 62
S_MASK = 63
S_SO = 96
S_C2 = 94
S_STAMP = 64

def vr(b, n=1):
    return f"v{b}" if n == 1 else f"v[{b}:{b+n-1}]"
def ar(b, n=1):
    return f"a{b}" if n == 1 else f"a[{b}:{b+n-1}]"
def rs(p, b, n):
    return {f"{p}{i}" for i in range(b, b + n)}

class Ins:
    __slots__ = ("text", "kind", "rd", "wr", "cost", "srcc", "tag", "skip", "likely")
    def __init__(self, text, kind, rd=(), wr=(), cost=4, srcc=(), tag=None):
        self.text, self.kind, self.rd, self.wr, self.cost, self.srcc, self.tag = text, kind, set(rd), set(wr), cost, set(srcc), tag
        self.skip = False
        self.likely = True

def R(kind, b, n=1):
    return (vr(b, n) if kind == "v" else ar(b, n)), rs(kind, b, n)

def mfma(dk, d, ak, a, bk, b, czero=False, cblk=None):
    dt, ds_ = R(dk, d, 16); at, as_ = R(ak, a, 4); bt, bs_ = R(bk, b, 4)
    if cblk is not None:
        c, cs = R(dk, cblk, 16)
    elif czero:
        c, cs = "0", set()
    else:
        c, cs = dt, ds_
    return Ins(f"v_mfma_f32_32x32x16_bf16 {dt}, {at}, {bt}, {c}", "mfma", as_ | bs_ | cs, ds_, 8, srcc=cs)
def valu(text, rd, wr, trans=False, cost=None):
    return Ins(text, "trans" if trans else "valu", rd, wr, cost or (8 if trans else 4))
def salu(text, rd=(), wr=()):
    return Ins(text, "salu", rd, wr, 4)
def other(text, cost=4):
    return Ins(text, "other", (), (), cost)
def label(name):
    return Ins(name + ":", "label", (), (), 0)
def V(text, rd, wr, **kw):
    return valu(text, {f"v{r}" for r in rd}, {f"v{w}" for w in wr}, **kw)
def perm(a, b):
    return Ins(f"v_permlane32_swap_b32 {vr(a)}, {vr(b)}", "perm", {f"v{a}", f"v{b}"}, {f"v{a}", f"v{b}"})

class Prog:
    def __init__(self):
        self.ins = []
        self.ldsq = []
    def states_back(self, inrun=False):
        d = 0
        for i in reversed(self.ins):
            if i.kind == "label":
                inrun = False
                continue
            yield i, d
            if not i.skip:
                inrun = False
            if i.skip and not inrun:
                continue
            if i.text.startswith("s_nop"):
                d += int(i.text.split()[1]) + 1
            else:
                d += 1
            if d > 24:
                return
    def need(self, x):
        n = 0
        for p, d in self.states_back(x.skip):
            req = 0
            if p.kind == "mfma":
                if x.kind == "mfma":
                    if p.wr & (x.rd - x.srcc): req = 12
                    elif (p.wr & x.srcc) and (p.wr != x.srcc): req = 10
                    elif (p.wr & x.wr) and not (p.wr & x.srcc): req = 12
                elif x.kind in ("valu", "trans", "lds", "vmem", "perm"):
                    if p.wr & (x.rd | x.wr): req = 12
                    if x.kind in ("valu", "trans", "perm") and (p.srcc & x.wr): req = max(req, 7)
            elif p.kind in ("valu", "trans", "perm"):
                if x.kind == "mfma" and (p.wr & x.rd): req = 2
                if x.kind == "perm" and (p.wr & x.rd): req = 2
                if p.kind == "perm" and x.kind in ("valu", "trans") and (p.wr & x.rd): req = max(req, 2)
                if p.kind == "trans" and x.kind in ("valu", "perm") and (p.wr & x.rd): req = max(req, 1)
                if x.kind in ("valu", "trans") and any(r.startswith("s") or r == "vcc" for r in (p.wr & x.rd)): req = max(req, 2)
                if x.kind == "vmem" and any(r.startswith("s") for r in (p.wr & x.rd)): req = max(req, 5)
                if x.kind == "rfl" and (p.wr & x.rd): req = max(req, 1)
            elif p.kind == "rfl":
                if x.kind in ("valu", "trans") and (p.wr & x.rd): req = 2
                if x.kind == "vmem" and (p.wr & x.rd): req = 5
                if x.kind == "salu" and (p.wr & x.rd): req = 2
            elif p.kind == "vmem" and p.tag == "store":
                if x.kind in ("valu", "trans", "perm", "lds") and (p.rd & x.wr): req = 2
            elif p.kind == "salu" and "m0" in p.wr:
                if x.kind == "vmem" and "m0" in x.rd: req = 1
            if req > d:
                n = max(n, req - d)
        return n
    def add(self, x):
        if isinstance(x, (list, tuple)):
            for y in x: self.add(y)
            return
        if x.text == "s_waitcnt lgkmcnt(0)":
            self.ins.append(x); self.ldsq = []
            return
        if x.kind in ("mfma", "valu", "trans", "vmem", "perm", "lds"):
            use = x.rd | x.wr
            last = -1
            for i, (dst, tg) in enumerate(self.ldsq):
                if dst & use: last = i
            if last >= 0 and self.ldsq[last][1] is not None and x.kind == "mfma":
                tg = self.ldsq[last][1]
                while last + 1 < len(self.ldsq) and self.ldsq[last + 1][1] == tg: last += 1
            if last >= 0:
                n = len(self.ldsq) - 1 - last
                n = min(n, 15)
                self.ins.append(other(f"s_waitcnt lgkmcnt({n})"))
                self.ldsq = self.ldsq[len(self.ldsq) - n:] if n else []
        n = self.need(x)
        while n > 0:
            k = min(n, 16)
            self.ins.append(other(f"s_nop {k-1}", 4 * k))
            self.ins[-1].skip = x.skip
            n -= k
        self.ins.append(x)
        if x.kind == "lds":
            self.ldsq.append((set(x.wr), x.tag))
    def lgkm0(self):
        self.add(other("s_waitcnt lgkmcnt(0)"))
    def text(self):
        return "\n".join(i.text if i.kind == "label" else "    " + i.text for i in self.ins)

class L:
    def __init__(self): self.ins = []
    def add(self, x):
        if isinstance(x, (list, tuple)):
            for y in x: self.add(y)
        else: self.ins.append(x)
    def lgkm0(self): self.add(other("s_waitcnt lgkmcnt(0)"))

def weave(stream, extras, lead=0.05, end=0.95):
    tot = sum(x.cost for x in stream) or 1
    out = []; acc = 0; k = 0; n = len(extras)
    for x in stream:
        while k < n and acc >= tot * (lead + (end - lead) * k / max(1, n)):
            out += extras[k]; k += 1
        out.append(x); acc += x.cost
    while k < n:
        out += extras[k]; k += 1
    return out

def cond(ops, likely=False):
    for o in ops:
        o.skip = True; o.likely = likely
    return ops
lbl_n = [0]
def newlbl(p="L"):
    lbl_n[0] += 1
    return f"{p}{lbl_n[0]}"

def q_reg(typ, t):
    return ("v", V_Q0) if t == 0 else ("a", A_Q1 + 32 * (t - 1))

def qk_group(typ, t, sb):
    qk, qb = q_reg(typ, t)
    return [mfma("v", V_S + 16 * sb, "v", V_KF + 4 * s, qk, qb + 4 * s, cblk=(V_NB + 16 * t if s == 0 else None)) for s in range(8)]

def pv_group(t, pb):
    out = []
    for ks in range(2):
        for dt in range(4):
            out.append(mfma("a", A_O + 64 * t + 16 * dt, "v", V_VF + 8 * dt + 4 * ks, "v", V_P + 8 * pb + 4 * ks))
    return out

def k_load(s, sub):
    return Ins(f"ds_read_b128 {vr(V_KF+4*s,4)}, {vr(V_KA+s)} offset:{sub*8192}", "lds", {f"v{V_KA+s}"}, rs("v", V_KF + 4 * s, 4), 6, tag="K")

def v_load(dt, ks, e4, sub):
    d = V_VF + 8 * dt + 4 * ks + 2 * e4
    return Ins(f"ds_read_b64_tr_b16 {vr(d,2)}, {vr(V_VA+dt)} offset:{sub*8192+ks*4096+e4*2048}", "lds", {f"v{V_VA+dt}"}, rs("v", d, 2), 4, tag="V")

def softmax_ops(t, sb, with_cmp=True, sub=None):
    S = V_S + 16 * sb; P = V_P + 8 * sb; T = V_T; ts = V_TS
    ops = []; tail = []
    for k in range(19):
        if k < 16:
            if sub is not None:
                ops.append(V(f"v_sub_f32 {vr(T+k%8)}, {vr(S+k)}, {vr(sub)}", [S + k, sub], [T + k % 8]))
                ops.append(V(f"v_exp_f32 {vr(T+k%8)}, {vr(T+k%8)}", [T + k % 8], [T + k % 8], trans=True))
            else:
                ops.append(V(f"v_exp_f32 {vr(T+k%8)}, {vr(S+k)}", [S + k], [T + k % 8], trans=True))
        r = k - 2
        if 1 <= r < 16:
            if r == 1:
                ops.append(V(f"v_add_f32 {vr(ts)}, {vr(T)}, {vr(T+1)}", [T, T + 1], [ts]))
            else:
                ops.append(V(f"v_add_f32 {vr(ts)}, {vr(ts)}, {vr(T+r%8)}", [ts, T + r % 8], [ts]))
            if r % 2 == 1:
                a, b = T + (r - 1) % 8, T + r % 8
                c = V(f"v_cvt_pk_bf16_f32 {vr(P+r//2)}, {vr(a)}, {vr(b)}", [a, b], [P + r // 2], cost=5)
                (tail if r >= 11 else ops).append(c)
    if with_cmp:
        ops.append(V(f"v_subrev_u32 {vr(V_TC)}, s{S_LO}, {vr(ts)}", [ts], [V_TC]))
        ops.append(valu(f"v_cmp_lt_u32 vcc, s{S_RANGE}, {vr(V_TC)}", {f"v{V_TC}"}, {"vcc"}))
    return ops + tail

stubs = []
site_n = [0]
def check_ops(t, sb):
    k = site_n[0]; site_n[0] += 1
    stubs.append((f"L_stub{k}", f"L_slow_{t}_{sb}", f"L_ret{k}"))
    return [other(f"s_cbranch_vccnz L_stub{k}", 10),
            label(f"L_ret{k}"),
            V(f"v_add_f32 {vr(V_L+t)}, {vr(V_L+t)}, {vr(V_TS)}", [V_L + t, V_TS], [V_L + t])]

def entry_issue():
    nt = (" " + OPT["ldf"].replace("_", " ")) if OPT["ldf"] else ""
    u = []
    for half, (e, so) in enumerate(((S_E1, S_O1), (S_E2, S_O2))):
        for a in range(4):
            vo = V_DK + a if half == 0 else V_DV
            x = []
            if a == 0:
                x.append(salu(f"s_mov_b32 m0, s{S_M0}", (), {"m0"}) if half == 0 else salu(f"s_add_u32 m0, s{S_M0}, 16384", (), {"m0"}))
            x.append(Ins(f"buffer_load_dwordx4 {vr(vo)}, s[{e}:{e+3}], s{so} offen offset:{a*1024}{nt} lds", "vmem", {f"v{vo}", "m0"}, (), 8))
            u.append(x)
    u.append([salu(f"s_add_u32 s{S_M0}, s{S_M0}, {SLOT}"),
              salu(f"s_cmp_ge_u32 s{S_M0}, {5*SLOT}"),
              salu(f"s_cselect_b32 s{S_P0}, {5*SLOT}, 0"),
              salu(f"s_sub_u32 s{S_M0}, s{S_M0}, s{S_P0}")])
    return u

def kv_next():
    return [salu(f"s_add_u32 s{S_O1}, s{S_O1}, 16384"), salu(f"s_add_u32 s{S_O2}, s{S_O2}, 16384")]

def set_q(sreg):
    return [salu(f"s_mov_b64 s[{S_E1}:{S_E1+1}], s[{S_PQ}:{S_PQ+1}]"), salu(f"s_mov_b64 s[{S_E2}:{S_E2+1}], s[{S_PQ}:{S_PQ+1}]"),
            salu(f"s_mov_b32 s{S_E1+2}, {QBYTES}"), salu(f"s_mov_b32 s{S_E2+2}, {QBYTES}"),
            salu(f"s_mov_b32 s{S_O1}, s{sreg}"), salu(f"s_add_u32 s{S_O2}, s{sreg}, 4096")]

def set_kv():
    return [salu(f"s_mov_b64 s[{S_E1}:{S_E1+1}], s[{S_PK}:{S_PK+1}]"), salu(f"s_mov_b64 s[{S_E2}:{S_E2+1}], s[{S_PV}:{S_PV+1}]"),
            salu(f"s_mov_b32 s{S_E1+2}, 262144"), salu(f"s_mov_b32 s{S_E2+2}, 262144"),
            salu(f"s_mov_b32 s{S_O1}, s{S_KV}"), salu(f"s_mov_b32 s{S_O2}, s{S_KV}")]

outline = []
def special_site(typ):
    lo, lr = newlbl("L_sp"), newlbl("L_spr")
    nq2 = 2 if typ == "A" else 3
    blk = [label(lo)]
    def case(p, ops):
        l = newlbl("L_c")
        return [salu(f"s_cmp_lg_u32 s{S_N}, {p}"), other(f"s_cbranch_scc1 {l}")] + ops + [other(f"s_branch {lr}"), label(l)]
    blk += case(3, [salu(f"s_mov_b32 s{S_KV}, s{S_O1}")] + set_q(S_Q2))
    for j in range(1, nq2):
        blk += case(3 + j, set_q(S_Q2 + j))
    blk += case(3 + nq2, set_kv())
    blk += [salu(f"s_mov_b32 s{S_LO}, 0"), salu(f"s_mov_b32 s{S_RANGE}, s{S_HI}"), other(f"s_branch {lr}")]
    outline.append(blk)
    msk = S_HI + 2 if typ == "A" else S_HI + 1
    return kv_next() + [salu(f"s_bitcmp1_b32 s{msk}, s{S_N}"), other(f"s_cbranch_scc1 {lo}", 10), label(lr)]

def extra_site():
    lo, lr = newlbl("L_ex"), newlbl("L_exr")
    outline.append([label(lo)] + sum(entry_issue(), []) + kv_next() + [other(f"s_branch {lr}")])
    return [salu(f"s_bitcmp1_b32 s{S_HI+3}, s{S_N}"), other(f"s_cbranch_scc1 {lo}", 10), label(lr)]

def rb_advance():
    return [salu(f"s_add_u32 s{S_RB}, s{S_RB}, {SLOT}"),
            salu(f"s_cmp_ge_u32 s{S_RB}, {5*SLOT}"),
            salu(f"s_cselect_b32 s{S_RB}, 0, s{S_RB}")]

def rebase(base, n, sreg=S_DELTA):
    return [V(f"v_add_u32 {vr(base+i)}, s{sreg}, {vr(base+i)}", [base + i], [base + i]) for i in range(n)]

def build_body(P, typ, steps):
    n = len(steps)
    assert n % 2 == 0
    def st(k): return steps[k % n]
    groups = []
    for k in range(n):
        r, sub, t = st(k - 1)
        groups.append(dict(mf=pv_group(t, (k - 1) % 2), fixed=[[] for _ in range(8)], pre=[], kind="pv", k=k - 1))
        r, sub, t = st(k + 1)
        groups.append(dict(mf=qk_group(typ, t, (k + 1) % 2), fixed=[[] for _ in range(8)], pre=[], kind="qk", k=k + 1))
    ng = len(groups)
    def step_id(k):
        r, sub, t = st(k)
        return (k // n, r, sub)
    bar_groups = []
    for gi, g in enumerate(groups):
        j = g["k"]
        if g["kind"] == "pv" and step_id(j + 1) != step_id(j):
            nsub = st(j + 1)[1]
            if nsub == 0:
                g["pre"] += rebase(V_VA, 4)
            m = 0
            for ks in range(2):
                for dt in range(4):
                    g["fixed"][m] += [v_load(dt, ks, 0, nsub), v_load(dt, ks, 1, nsub)]
                    m += 1
        if g["kind"] == "qk" and step_id(j + 1) != step_id(j):
            nsub = st(j + 1)[1]
            if nsub == 1:
                for s in range(8):
                    g["fixed"][s] += [k_load(s, 1)]
            else:
                bar_groups.append((gi + 1) % ng)
                adv = rb_advance() + [salu(f"s_sub_u32 s{S_DELTA}, s{S_RB}, s{S_KCUR}"), salu(f"s_mov_b32 s{S_KCUR}, s{S_RB}"),
                                      salu(f"s_mov_b32 s{S_VCUR}, s{S_RB}"), salu(f"s_add_u32 s{S_N}, s{S_N}, 1")]
                g["fixed"][0] += adv[:3]; g["fixed"][1] += adv[3:]
                rb = rebase(V_KA, 8)
                for i in range(8):
                    g["fixed"][2 + i * 6 // 8] += [rb[i]]
    nx = 2
    for bi, gi in enumerate(bar_groups):
        g = groups[gi]
        if OPT["barstat"]:
            g["pre"] = [other("s_waitcnt lgkmcnt(0)"), other("s_memtime s[88:89]"), other("s_waitcnt lgkmcnt(0)"), other("s_waitcnt vmcnt(24)"),
                        other("s_memtime s[90:91]"), other("s_waitcnt lgkmcnt(0)"), other("s_barrier"), other("s_memtime s[92:93]"), other("s_waitcnt lgkmcnt(0)"),
                        salu("s_sub_u32 s88, s90, s88"), salu("s_sub_u32 s90, s92, s90"),
                        salu(f"s_cmp_ge_u32 s{S_N}, 9"), salu("s_cselect_b32 s88, s88, 0"), salu("s_cselect_b32 s90, s90, 0"),
                        salu("s_add_u32 s86, s86, s88"), salu("s_add_u32 s87, s87, s90")] + g["pre"]
        else:
            g["pre"] = [other("s_waitcnt lgkmcnt(0)"), other("s_waitcnt vmcnt(24)"), other("s_barrier")] + g["pre"]
        for s_ in range(8):
            g["fixed"][s_ // 3] += [k_load(s_, 0)]
        last = (bi == len(bar_groups) - 1)
        e = entry_issue()
        units = [e[0] + e[1], e[2] + e[3], e[4] + e[5], e[6] + e[7], e[8], special_site(typ)]
        if last:
            units += [extra_site() for _ in range(nx)]
        slots = []
        cnt = (bar_groups[(bi + 1) % len(bar_groups)] - gi) % ng or ng
        for off in range(cnt):
            idx = (gi + off) % ng
            gg = groups[idx]
            if last and idx >= gi: continue
            if gg["kind"] == "pv":
                sl = [4] if off == 0 else [0, 1]
            else:
                sl = [3] if off + 1 < cnt else []
            slots += [(gg, i) for i in sl]
        assign = [[] for _ in slots]
        for ui, u_ in enumerate(units):
            assign[min(len(slots) - 1, ui * len(slots) // len(units))] += u_
        for (gg, i), blk in zip(slots, assign):
            gg["fixed"][i] += blk
    for k in range(n):
        r, sub, t = st(k)
        ops = softmax_ops(t, k % 2)
        g0, g1 = groups[2 * k], groups[2 * k + 1]
        gaps = [(g0, i) for i in range(2, 8)] + [(g1, i) for i in range(8)]
        fixed = [sum(x.cost for x in g["fixed"][i] if x.likely) for g, i in gaps]
        tot = sum(x.cost for x in ops) + 14 + sum(fixed)
        per = tot / len(gaps)
        cum = 0.0; placed = 0.0; oi = 0
        for gi, (g, i) in enumerate(gaps):
            cum += per
            placed += fixed[gi]
            lst = g.setdefault("flex", [[] for _ in range(8)])[i]
            while oi < len(ops) and (placed + ops[oi].cost / 2 <= cum or gi == len(gaps) - 1):
                lst.append(ops[oi]); placed += ops[oi].cost; oi += 1
        g1["flex"][7] += check_ops(t, k % 2)
    for gi, g in enumerate(groups):
        P.add([x for x in g["pre"] if not (OPT["no_bar"] and ("barrier" in x.text or "vmcnt" in x.text))])
        for i in range(8):
            if not OPT["no_mfma"]: P.add(g["mf"][i])
            fx = g["fixed"][i]
            if OPT["no_sc"]: fx = [x for x in fx if not (x.text.startswith("s_cbranch") or x.text.startswith("s_bitcmp"))]
            if OPT["no_lds"]: fx = [x for x in fx if x.kind != "lds"]
            if OPT["no_dma"]: fx = [x for x in fx if x.kind != "vmem"]
            P.add(fx)
            fl = g.get("flex", [[] for _ in range(8)])[i]
            if OPT["no_sm"]: fl = [x for x in fl if x.kind == "label"]
            if OPT["no_exp"]: fl = [x for x in fl if x.kind != "trans"]
            if OPT["no_chk"]: fl = [x for x in fl if "vcc" not in x.text]
            P.add(fl)

def slow_routine(P, t, sb):
    S = V_S + 16 * sb; nb = V_NB + 16 * t; X = V_X
    P.add(label(f"L_slow_{t}_{sb}"))
    P.add(other("s_nop 15", 64))
    P.add(V(f"v_max3_f32 {vr(X)}, {vr(S)}, {vr(S+1)}, {vr(S+2)}", [S, S + 1, S + 2], [X]))
    for i in range(3, 15, 2):
        P.add(V(f"v_max3_f32 {vr(X)}, {vr(X)}, {vr(S+i)}, {vr(S+i+1)}", [X, S + i, S + i + 1], [X]))
    P.add(V(f"v_max_f32 {vr(X)}, {vr(X)}, {vr(S+15)}", [X, S + 15], [X]))
    P.add(V(f"v_mov_b32 {vr(X+1)}, {vr(X)}", [X], [X + 1]))
    P.add(perm(X, X + 1))
    P.add(V(f"v_max_f32 {vr(X)}, {vr(X)}, {vr(X+1)}", [X, X + 1], [X]))
    P.add(V(f"v_mov_b32 {vr(X+2)}, {vr(V_L+t)}", [V_L + t], [X + 2]))
    P.add(V(f"v_mov_b32 {vr(X+3)}, {vr(V_L+t)}", [V_L + t], [X + 3]))
    P.add(perm(X + 2, X + 3))
    P.add(V(f"v_add_f32 {vr(X+2)}, {vr(X+2)}, {vr(X+3)}", [X + 2, X + 3], [X + 2]))
    P.add(valu(f"v_cmp_neq_f32 vcc, 0, {vr(X+2)}", {f"v{X+2}"}, {"vcc"}))
    P.add(V(f"v_max_f32 {vr(X+3)}, 0, {vr(X)}", [X], [X + 3]))
    P.add(valu(f"v_cndmask_b32 {vr(X)}, {vr(X)}, {vr(X+3)}, vcc", {f"v{X}", f"v{X+3}", "vcc"}, {f"v{X}"}))
    P.add(V(f"v_exp_f32 {vr(X+1)}, -{vr(X+3)}", [X + 3], [X + 1], trans=True))
    for i in range(16):
        P.add(V(f"v_sub_f32 {vr(nb+i)}, {vr(nb+i)}, {vr(X)}", [nb + i, X], [nb + i]))
    P.add(V(f"v_mul_f32 {vr(V_L+t)}, {vr(V_L+t)}, {vr(X+1)}", [V_L + t, X + 1], [V_L + t]))
    l = newlbl("L_sk")
    P.add(other(f"s_cbranch_vccz {l}"))
    for i in range(0, 64, 4):
        for j in range(4):
            P.add(valu(f"v_accvgpr_read_b32 {vr(X+4+j)}, {ar(A_O+64*t+i+j)}", {f"a{A_O+64*t+i+j}"}, {f"v{X+4+j}"}))
        for j in range(4):
            P.add(V(f"v_mul_f32 {vr(X+4+j)}, {vr(X+4+j)}, {vr(X+1)}", [X + 4 + j, X + 1], [X + 4 + j]))
        for j in range(4):
            P.add(valu(f"v_accvgpr_write_b32 {ar(A_O+64*t+i+j)}, {vr(X+4+j)}", {f"v{X+4+j}"}, {f"a{A_O+64*t+i+j}"}))
    P.add(label(l))
    P.add(softmax_ops(t, sb, with_cmp=False, sub=X))
    P.add(other("s_nop 3", 16))
    P.add(other(f"s_setpc_b64 s[{S_RET}:{S_RET+1}]"))

def stamp(P, idx_expr):
    if not OPT["stamp"]: return
    if isinstance(idx_expr, int):
        P.add(other(f"s_memtime s[{S_STAMP+2*idx_expr}:{S_STAMP+2*idx_expr+1}]"))
        P.add(other("s_waitcnt lgkmcnt(0)"))
    else:
        base = idx_expr[1]
        l1, l2 = newlbl("L_st"), newlbl("L_st")
        P.add(salu(f"s_cmp_lg_u32 s{S_ITEM}, 0")); P.add(other(f"s_cbranch_scc1 {l1}"))
        P.add(other(f"s_memtime s[{S_STAMP+2*base}:{S_STAMP+2*base+1}]")); P.add(other(f"s_branch {l2}"))
        P.add(label(l1)); P.add(other(f"s_memtime s[{S_STAMP+2*(base+4)}:{S_STAMP+2*(base+4)+1}]"))
        P.add(label(l2)); P.add(other("s_waitcnt lgkmcnt(0)"))

def stamp_out(P):
    if not OPT["stamp"]: return
    P.add(other("s_waitcnt vmcnt(0)"))
    stamp(P, 10)
    if not OPT["barstat"]:
        P.add(other("s_memrealtime s[90:91]")); P.add(other("s_waitcnt lgkmcnt(0)"))
        P.add(salu("s_mov_b32 s86, s88")); P.add(salu("s_mov_b32 s87, s90"))
    P.add(other("s_load_dwordx2 s[4:5], s[0:1], 40")); P.add(other("s_waitcnt lgkmcnt(0)"))
    P.add(salu("s_mov_b32 s6, 268435456")); P.add(salu("s_mov_b32 s7, 0x20000"))
    P.add(salu(f"s_lshl_b32 s8, s{S_WG}, 2")); P.add(salu(f"s_add_u32 s8, s8, s{S_W}")); P.add(salu("s_lshl_b32 s8, s8, 6"))
    P.add(valu("v_mov_b32 v1, 0", (), {"v1"}))
    for i in range(13):
        P.add(valu(f"v_mov_b32 v2, s{S_STAMP+2*i if i < 11 else 86 + i - 11}", (), {"v2"}))
        P.add(Ins(f"buffer_store_dword v2, v1, s[4:7], s8 offen offset:{4*i}", "vmem", {"v1", "v2"}, ()))
        P.add(other("s_waitcnt vmcnt(0)"))

def img_addr(P, dst, chunk_even, sbase):
    P.add(V(f"v_xor_b32 {vr(dst)}, {chunk_even}, {vr(V_QXOR)}", [V_QXOR], [dst]))
    P.add(V(f"v_lshl_add_u32 {vr(dst)}, {vr(dst)}, 4, {vr(V_QBASE)}", [dst, V_QBASE], [dst]))
    P.add(V(f"v_add_u32 {vr(dst)}, s{sbase}, {vr(dst)}", [dst], [dst]))

def q_setup_tile(typ, t):
    C = L()
    AD = V_T
    qk, qb = q_reg(typ, t)
    RAW = V_S
    for s in range(8):
        C.add(V(f"v_add_u32 {vr(V_X+s)}, s{S_RB}, {vr(AD+s)}", [AD + s], [V_X + s]))
    for s in range(8):
        C.add(Ins(f"ds_read_b128 {vr(RAW+4*s,4)}, {vr(V_X+s)}", "lds", {f"v{V_X+s}"}, rs("v", RAW + 4 * s, 4)))
    C.add(rb_advance())
    head = C.ins; C = L()
    for i in range(16):
        C.add(V(f"v_mov_b32 {vr(V_NB+16*t+i)}, 0", [], [V_NB + 16 * t + i]))
    C.add(V(f"v_mov_b32 {vr(V_L+t)}, 0", [], [V_L + t]))
    TMP = V_FREE
    for r0 in range(0, 32, 4):
        if r0 % 8 == 0:
            C.add(mfma("a", A_O + 64 * t + 2 * r0, "v", V_VF, "v", V_P + 8, czero=True))
        for j in range(4):
            r = RAW + r0 + j
            C.add(V(f"v_lshlrev_b32 {vr(TMP+2*j)}, 16, {vr(r)}", [r], [TMP + 2 * j]))
            C.add(V(f"v_and_b32 {vr(TMP+2*j+1)}, s{S_MASK}, {vr(r)}", [r], [TMP + 2 * j + 1]))
        for j in range(0, 8, 2):
            C.add(V(f"v_pk_mul_f32 {vr(TMP+j,2)}, {vr(TMP+j,2)}, s[{S_C2}:{S_C2+1}]", [TMP + j, TMP + j + 1], [TMP + j, TMP + j + 1], cost=6))
        for j in range(4):
            d = qb + r0 + j if qk == "v" else TMP + 8 + j
            C.add(V(f"v_cvt_pk_bf16_f32 {vr(d)}, {vr(TMP+2*j)}, {vr(TMP+2*j+1)}", [TMP + 2 * j, TMP + 2 * j + 1], [d]))
        if qk == "a":
            for j in range(4):
                C.add(valu(f"v_accvgpr_write_b32 {ar(qb+r0+j)}, {vr(TMP+8+j)}", {f"v{TMP+8+j}"}, {f"a{qb+r0+j}"}))
    return head, C.ins

def pieces_of(ops):
    pieces = []; cur = []
    for x in ops:
        cur.append(x)
        if x.kind == "vmem": pieces.append(cur); cur = []
    pieces[-1] += cur
    return pieces

def q_setup_pre():
    C = L()
    for i in range(8):
        C.add(V(f"v_mov_b32 {vr(V_P+8+i)}, 0", [], [V_P + 8 + i]))
    for s in range(8):
        C.add(V(f"v_xor_b32 {vr(V_T+s)}, {2*s}, {vr(V_QXOR)}", [V_QXOR], [V_T + s]))
        C.add(V(f"v_lshl_add_u32 {vr(V_T+s)}, {vr(V_T+s)}, 4, {vr(V_QBASE)}", [V_T + s, V_QBASE], [V_T + s]))
    return C.ins

def item_begin(P, typ):
    P.add(salu(f"s_sub_u32 s{S_DELTA}, s{S_RB}, s{S_KCUR}")); P.add(salu(f"s_mov_b32 s{S_KCUR}, s{S_RB}"))
    P.add(rebase(V_KA, 8))
    for s in range(8): P.add(k_load(s, 0))
    P.add(salu(f"s_sub_u32 s{S_DELTA}, s{S_RB}, s{S_VCUR}")); P.add(salu(f"s_mov_b32 s{S_VCUR}, s{S_RB}"))
    lo = f32bits(2.0 ** -20); hi = f32bits(65536.0)
    P.add(salu(f"s_mov_b32 s{S_LO}, 0x{lo:08x}")); P.add(salu(f"s_mov_b32 s{S_RANGE}, 0x{hi-lo:08x}"))
    P.lgkm0()

def lsum(P, lreg, dst, X):
    P.add(V(f"v_mov_b32 {vr(X)}, {vr(lreg)}", [lreg], [X]))
    P.add(V(f"v_mov_b32 {vr(X+1)}, {vr(lreg)}", [lreg], [X + 1]))
    P.add(perm(X, X + 1))
    P.add(V(f"v_add_f32 {vr(dst)}, {vr(X)}, {vr(X+1)}", [X, X + 1], [dst]))

def pack_unit(P, t, dt, kp, scale, B, addr, addsrc=None, scale2=None, woff=0):
    a0 = A_O + 64 * t + 16 * dt + 8 * kp
    for j in range(8):
        P.add(valu(f"v_accvgpr_read_b32 {vr(B+j)}, {ar(a0+j)}", {f"a{a0+j}"}, {f"v{B+j}"}))
    for j in range(0, 8, 2):
        P.add(V(f"v_pk_mul_f32 {vr(B+j,2)}, {vr(B+j,2)}, {vr(scale,2)}", [B + j, B + j + 1, scale, scale + 1], [B + j, B + j + 1], cost=6))
    if addsrc is not None:
        for j in range(0, 8, 2):
            P.add(V(f"v_pk_fma_f32 {vr(B+j,2)}, {vr(addsrc+j,2)}, {vr(scale2,2)}, {vr(B+j,2)}",
                    [B + j, B + j + 1, addsrc + j, addsrc + j + 1, scale2, scale2 + 1], [B + j, B + j + 1], cost=6))
    for j in range(4):
        P.add(V(f"v_cvt_pk_bf16_f32 {vr(B+8+j)}, {vr(B+2*j)}, {vr(B+2*j+1)}", [B + 2 * j, B + 2 * j + 1], [B + 8 + j]))
    P.add(perm(B + 8, B + 10)); P.add(perm(B + 9, B + 11))
    P.add(Ins(f"ds_write_b128 {vr(addr)}, {vr(B+8,4)} offset:{woff}", "lds", rs("v", B + 8, 4) | {f"v{addr}"}, ()))

def image_readback(C, pieces, RB, base_sreg=None):
    X = V_X
    C.add(V(f"v_add_u32 {vr(X+8)}, s{base_sreg if base_sreg is not None else S_M0}, {vr(V_LANE16)}", [V_LANE16], [X + 8]))
    C.lgkm0()
    for i, a in enumerate(pieces):
        off = (a % 4) * 1024 + (16384 if a >= 4 else 0)
        C.add(Ins(f"ds_read_b128 {vr(RB+4*i,4)}, {vr(X+8)} offset:{off}", "lds", {f"v{X+8}"}, rs("v", RB + 4 * i, 4)))

def image_stores(pieces, RB, so_lo, so_hi):
    nt = (" " + OPT["stf"].replace("_", " ")) if OPT["stf"] else ""
    out = []
    for i, a in enumerate(pieces):
        vo = V_DK + a if a < 4 else V_DV
        so = so_lo if a < 4 else so_hi
        out.append([Ins(f"buffer_store_dwordx4 {vr(RB+4*i,4)}, {vr(vo)}, s[{SRD_O}:{SRD_O+3}], s{so} offen offset:{(a%4)*1024}{nt}", "vmem",
                        rs("v", RB + 4 * i, 4) | {f"v{vo}"}, (), 8, tag="store")])
    return out

def image_addrs():
    C = L()
    C.add(salu(f"s_sub_u32 s{S_T0}, s{S_M0}, s{S_W4K}"))
    C.add(V(f"v_add_u32 {vr(V_X+9)}, s{S_T0}, {vr(V_QBASE)}", [V_QBASE], [V_X + 9]))
    for u in range(8):
        C.add(V(f"v_xor_b32 {vr(V_T+u)}, {2*u}, {vr(V_QXOR)}", [V_QXOR], [V_T + u]))
        C.add(V(f"v_lshl_add_u32 {vr(V_T+u)}, {vr(V_T+u)}, 4, {vr(V_X+9)}", [V_T + u, V_X + 9], [V_T + u]))
    return C.ins

def pack_tile(t):
    C = L(); X = V_X
    lsum(C, V_L + t, X + 2, X)
    C.add(V(f"v_rcp_f32 {vr(X+2)}, {vr(X+2)}", [X + 2], [X + 2], trans=True))
    C.add(V(f"v_mov_b32 {vr(X+3)}, {vr(X+2)}", [X + 2], [X + 3]))
    u = 0
    for dt in range(4):
        for kp in range(2):
            pack_unit(C, t, dt, kp, X + 2, V_S + 12 * (u % 4), V_T + u)
            u += 1
    return C.ins

def epilogue_H(P, par):
    X = V_X; t = 2
    P.add(salu(f"s_xor_b32 s{S_XPART}, s{S_M0}, 4096"))
    lsum(P, V_L + t, X + 3, X)
    P.add(V(f"v_mov_b32 {vr(X+2)}, {vr(V_NB+16*t)}", [V_NB + 16 * t], [X + 2]))
    P.add(V(f"v_add_u32 {vr(X+4)}, s{S_XPART}, {vr(V_LANE8)}", [V_LANE8], [X + 4]))
    P.add(V(f"v_add_u32 {vr(X+5)}, s{S_M0}, {vr(V_LANE8)}", [V_LANE8], [X + 5]))
    P.add(Ins(f"ds_write_b64 {vr(X+4)}, {vr(X+2,2)}", "lds", {f"v{X+4}", f"v{X+2}", f"v{X+3}"}, ()))
    P.add(V(f"v_add_u32 {vr(X+8)}, s{S_XPART}, {vr(V_LANE16)}", [V_LANE16], [X + 8]))
    P.add(V(f"v_add_u32 {vr(X+9)}, s{S_M0}, {vr(V_LANE16)}", [V_LANE16], [X + 9]))
    send = [2 * (1 - par), 2 * (1 - par) + 1]
    keep = [2 * par, 2 * par + 1]
    def koff(u): return (u % 4) * 1024 + (16384 if u >= 4 else 0)
    def payload(u):
        a0 = A_O + 64 * t + 16 * send[u // 4] + 4 * (u % 4)
        return Ins(f"ds_write_b128 {vr(X+9)}, {ar(a0,4)} offset:{koff(u)}", "lds", rs("a", a0, 4) | {f"v{X+9}"}, ())
    for u in range(1, 8): P.add(payload(u))
    P.lgkm0()
    P.add(other("s_barrier"))
    P.add(Ins(f"ds_read_b64 {vr(X+6,2)}, {vr(X+5)}", "lds", {f"v{X+5}"}, {f"v{X+6}", f"v{X+7}"}))
    P.lgkm0()
    P.add(payload(0))
    P.add(V(f"v_min_f32 {vr(X)}, {vr(X+2)}, {vr(X+6)}", [X + 2, X + 6], [X]))
    P.add(V(f"v_sub_f32 {vr(X+1)}, {vr(X)}, {vr(X+2)}", [X, X + 2], [X + 1]))
    P.add(V(f"v_sub_f32 {vr(X)}, {vr(X)}, {vr(X+6)}", [X, X + 6], [X]))
    P.add(V(f"v_exp_f32 {vr(X+1)}, {vr(X+1)}", [X + 1], [X + 1], trans=True))
    P.add(V(f"v_exp_f32 {vr(X)}, {vr(X)}", [X], [X], trans=True))
    P.add(V(f"v_mul_f32 {vr(X+3)}, {vr(X+3)}, {vr(X+1)}", [X + 3, X + 1], [X + 3]))
    P.add(V(f"v_fma_f32 {vr(X+3)}, {vr(X+7)}, {vr(X)}, {vr(X+3)}", [X + 7, X, X + 3], [X + 3]))
    P.add(V(f"v_rcp_f32 {vr(X+3)}, {vr(X+3)}", [X + 3], [X + 3], trans=True))
    P.add(V(f"v_mul_f32 {vr(X+4)}, {vr(X+3)}, {vr(X)}", [X + 3, X], [X + 4]))
    P.add(V(f"v_mul_f32 {vr(X+2)}, {vr(X+3)}, {vr(X+1)}", [X + 3, X + 1], [X + 2]))
    P.add(V(f"v_mov_b32 {vr(X+5)}, {vr(X+4)}", [X + 4], [X + 5]))
    P.add(V(f"v_mov_b32 {vr(X+3)}, {vr(X+2)}", [X + 2], [X + 3]))
    P.add(V(f"v_bfe_u32 {vr(X)}, {vr(V_LANE16)}, 4, 5", [V_LANE16], [X]))
    P.add(V(f"v_bfe_u32 {vr(X+1)}, {vr(V_LANE16)}, 9, 1", [V_LANE16], [X + 1]))
    P.add(V(f"v_and_b32 {vr(X+6)}, 7, {vr(X)}", [X], [X + 6]))
    P.add(V(f"v_xor_b32 {vr(X+6)}, {vr(X+6)}, {vr(X+1)}", [X + 6, X + 1], [X + 6]))
    P.add(V(f"v_lshlrev_b32 {vr(X)}, 7, {vr(X)}", [X], [X]))
    P.add(V(f"v_add_u32 {vr(X)}, s{S_M0}, {vr(X)}", [X], [X]))
    for u in range(4):
        P.add(V(f"v_xor_b32 {vr(V_T+u)}, {2*u}, {vr(X+6)}", [X + 6], [V_T + u]))
        P.add(V(f"v_lshl_add_u32 {vr(V_T+u)}, {vr(V_T+u)}, 4, {vr(X)}", [V_T + u, X], [V_T + u]))
    P.add(V(f"v_bfe_u32 {vr(X)}, {vr(V_LANE16)}, 7, 3", [V_LANE16], [X]))
    P.add(V(f"v_bfe_u32 {vr(X+1)}, {vr(V_LANE16)}, 4, 3", [V_LANE16], [X + 1]))
    P.add(V(f"v_xor_b32 {vr(X+1)}, {vr(X+1)}, {vr(X)}", [X, X + 1], [X + 1]))
    P.add(V(f"v_lshlrev_b32 {vr(X)}, 8, {vr(X)}", [X], [X]))
    P.add(V(f"v_lshl_add_u32 {vr(V_TC)}, {vr(X+1)}, 4, {vr(X)}", [X, X + 1], [V_TC]))
    P.lgkm0()
    P.add(other("s_barrier"))
    for u in range(8):
        P.add(Ins(f"ds_read_b128 {vr(V_S+4*u,4)}, {vr(X+8)} offset:{koff(u)}", "lds", {f"v{X+8}"}, rs("v", V_S + 4 * u, 4)))
    P.lgkm0()
    P.add(other("s_barrier"))
    u = 0
    for di, dt in enumerate(keep):
        for kp in range(2):
            pack_unit(P, t, dt, kp, X + 2, V_KF + 12 * (u % 2), V_T + u, addsrc=V_S + 16 * di + 8 * kp, scale2=X + 4)
            u += 1
    P.lgkm0()
    for a in range(4):
        P.add(Ins(f"ds_read_b128 {vr(V_FREE+4*a,4)}, {vr(X+9)} offset:{a*1024}", "lds", {f"v{X+9}"}, rs("v", V_FREE + 4 * a, 4)))
    P.add(salu(f"s_add_u32 s{S_SO+2}, s{S_QH}, {128*par}")); P.add(salu(f"s_add_u32 s{S_SO+3}, s{S_QH}, {128*par+4096}"))
    P.lgkm0()
    nt = (" " + OPT["stf"].replace("_", " ")) if OPT["stf"] else ""
    return [[Ins(f"buffer_store_dwordx4 {vr(V_FREE+4*a,4)}, {vr(V_TC)}, s[{SRD_O}:{SRD_O+3}], s{S_SO+2+a//2} offen offset:{(a%2)*2048}{nt}", "vmem",
                 rs("v", V_FREE + 4 * a, 4) | {f"v{V_TC}"}, (), 8, tag="store")] for a in range(4)]

def item_code(P, typ, par):
    tag = f"{typ}{par}" if typ == "A" else "B"
    if typ == "A":
        ring = [(0, 0), (0, 1), (0, 2), (1, 0), (1, 1)] if par == 0 else [(0, 0), (0, 1), (1, 0), (1, 1), (1, 2)]
        steps = [(0, s, t) for s, t in ring] + [(1, s, t) for s, t in ring]
    else:
        steps = [(0, 0, 0), (0, 0, 1), (0, 1, 0), (0, 1, 1)]
    P.add(label(f"L_item_{tag}"))
    stamp(P, ("item", 2))
    item_begin(P, typ)
    P.add(qk_group(typ, 0, 0))
    stamp(P, ("item", 3))
    P.add(label(f"L_loop_{tag}"))
    assert not P.ldsq
    build_body(P, typ, steps)
    P.ldsq = []
    P.add(salu(f"s_and_b32 s{S_T2}, s{S_N}, 7"))
    P.add(salu(f"s_cmp_lg_u32 s{S_T2}, 0"))
    P.add(other(f"s_cbranch_scc1 L_loop_{tag}"))
    stamp(P, ("item", 4))
    r, sub, t = steps[-1]
    P.add(pv_group(t, (len(steps) - 1) % 2))
    P.add(other(f"s_waitcnt vmcnt({8 if typ == 'A' else 0})"))
    P.lgkm0()
    P.add(salu(f"s_sub_u32 s{S_VCUR}, s{S_VCUR}, s{S_DELTA}"))
    sq = S_QA if typ == "A" else S_QB
    if typ == "A":
        st_h = epilogue_H(P, par)
    else:
        P.add(other("s_barrier")); st_h = []
    allp = list(range(8))
    P.add(image_addrs())
    P.add(weave(pack_tile(0), st_h))
    image_readback(P, allp, V_KF)
    P.add(salu(f"s_mov_b32 s{S_SO}, s{sq}")); P.add(salu(f"s_add_u32 s{S_SO+1}, s{sq}, 4096"))
    P.add(weave(pack_tile(1), image_stores(allp, V_KF, S_SO, S_SO + 1)))
    image_readback(P, allp, V_VF)
    P.add(salu(f"s_add_u32 s{S_SO+2}, s{sq}, 8192")); P.add(salu(f"s_add_u32 s{S_SO+3}, s{sq}, 12288"))
    P.add(salu(f"s_cmp_lg_u32 s{S_ITEM}, 0"))
    P.add(other(f"s_cbranch_scc1 L_last_{tag}"))
    ntyp = "B" if typ == "A" else "A"
    P.add(q_setup_pre())
    sts = image_stores(allp, V_VF, S_SO + 2, S_SO + 3)
    nn = 3 if ntyp == "A" else 2
    for t in range(nn):
        hd, body = q_setup_tile(ntyp, t)
        P.add(hd)
        ent = pieces_of(sum(entry_issue(), []) + kv_next())
        mine = sts[t * 8 // nn:(t + 1) * 8 // nn]
        ex = []
        for i in range(8):
            if i < len(mine): ex.append(mine[i])
            ex.append(ent[i])
        P.add(weave(body, ex, 0.0, 0.95))
    stamp(P, ("item", 5))
    P.add(salu(f"s_mov_b32 s{S_ITEM}, 1"))
    P.add(other("s_branch L_go_B" if typ == "A" else "s_branch L_go_A"))
    P.add(label(f"L_last_{tag}"))
    P.ldsq = [(rs("v", V_VF, 32), None)]
    P.add(sum(image_stores(allp, V_VF, S_SO + 2, S_SO + 3), []))
    stamp(P, ("item", 5))
    P.add(other("s_branch L_fin"))

def prologue(P):
    P.add(salu(f"s_cmp_ge_u32 s{S_WG}, 256")); P.add(other("s_cbranch_scc1 L_done"))
    stamp(P, 0)
    if OPT["stamp"] and not OPT["barstat"]:
        P.add(other("s_memrealtime s[88:89]")); P.add(other("s_waitcnt lgkmcnt(0)"))
    P.add(other("s_load_dwordx4 s[4:7], s[0:1], 0")); P.add(other("s_load_dwordx4 s[8:11], s[0:1], 16"))
    X = V_X
    lane, key, h = X, X + 1, X + 2
    P.add(V(f"v_lshrrev_b32 {vr(X+3)}, 6, v0", [0], [X + 3]))
    P.add(V(f"v_and_b32 {vr(lane)}, 63, v0", [0], [lane]))
    P.add(Ins(f"v_readfirstlane_b32 s{S_W}, {vr(X+3)}", "rfl", {f"v{X+3}"}, {f"s{S_W}"}))
    A = lambda text, rd, wr: P.add(V(text, rd, wr))
    rr, pp = X + 4, X + 5
    A(f"v_lshrrev_b32 {vr(rr)}, 4, {vr(lane)}", [lane], [rr])
    A(f"v_and_b32 {vr(pp)}, 15, {vr(lane)}", [lane], [pp])
    A(f"v_lshlrev_b32 {vr(X+6)}, 8, {vr(rr)}", [rr], [X + 6])
    A(f"v_xor_b32 {vr(X+7)}, {vr(pp)}, {vr(rr)}", [pp, rr], [X + 7])
    for a in range(4):
        A(f"v_xor_b32 {vr(X+8)}, {4*a}, {vr(X+7)}", [X + 7], [X + 8])
        A(f"v_lshl_add_u32 {vr(V_DK+a)}, {vr(X+8)}, 4, {vr(X+6)}", [X + 8, X + 6], [V_DK + a])
    A(f"v_lshlrev_b32 {vr(X+7)}, 2, {vr(rr)}", [rr], [X + 7])
    A(f"v_xor_b32 {vr(X+7)}, {vr(pp)}, {vr(X+7)}", [pp, X + 7], [X + 7])
    A(f"v_lshl_add_u32 {vr(V_DV)}, {vr(X+7)}, 4, {vr(X+6)}", [X + 7, X + 6], [V_DV])
    S = lambda t: P.add(salu(t))
    S(f"s_and_b32 s{S_T0}, s{S_WG}, 7"); S(f"s_lshr_b32 s{S_T1}, s{S_WG}, 4"); S(f"s_lshl_b32 s{S_T1}, s{S_T1}, 3")
    S(f"s_add_u32 s{S_T0}, s{S_T0}, s{S_T1}")
    S(f"s_lshr_b32 s{S_ROLE}, s{S_WG}, 3"); S(f"s_and_b32 s{S_ROLE}, s{S_ROLE}, 1")
    S(f"s_lshl_b32 s{S_KVN}, s{S_T0}, 18"); S(f"s_lshl_b32 s{S_W4K}, s{S_W}, 12"); S(f"s_mov_b32 s{S_M0}, s{S_W4K}")
    S(f"s_mov_b32 s{S_KV}, s{S_W4K}")
    S(f"s_lshl_b32 s{S_T0}, s{S_T0}, 1")
    S(f"s_add_u32 s{S_T1}, s{S_T0}, s{S_ROLE}"); S(f"s_mul_i32 s{S_T1}, s{S_T1}, 147456")
    S(f"s_lshl_b32 s{S_T2}, s{S_W}, 14"); S(f"s_add_u32 s{S_QA}, s{S_T1}, s{S_T2}")
    S(f"s_lshr_b32 s{S_QH}, s{S_W}, 1"); S(f"s_lshl_b32 s{S_QH}, s{S_QH}, 13"); S(f"s_add_u32 s{S_QH}, s{S_QH}, s{S_T1}")
    S(f"s_add_u32 s{S_QH}, s{S_QH}, {8*8192}")
    S(f"s_xor_b32 s{S_T1}, s{S_ROLE}, 1"); S(f"s_add_u32 s{S_T1}, s{S_T0}, s{S_T1}"); S(f"s_mul_i32 s{S_T1}, s{S_T1}, 147456")
    S(f"s_add_u32 s{S_QB}, s{S_T1}, s{S_T2}"); S(f"s_add_u32 s{S_QB}, s{S_QB}, {10*8192}")
    c = (128 ** -0.5) * math.log2(math.e)
    S(f"s_mov_b32 s{S_C}, 0x{f32bits(c):08x}"); S(f"s_mov_b32 s{S_C2}, s{S_C}"); S(f"s_mov_b32 s{S_C2+1}, s{S_C}")
    S(f"s_mov_b32 s{S_HI}, 0x{f32bits(65536.0):08x}")
    S(f"s_mov_b32 s{S_MASK}, 0xffff0000")
    S("s_mov_b32 s86, 0"); S("s_mov_b32 s87, 0")
    S(f"s_mov_b32 s{S_HI+1}, {sum(1 << i for i in (2, 3, 4, 5, 6, 10))}")
    S(f"s_mov_b32 s{S_HI+2}, {sum(1 << i for i in (2, 3, 4, 5, 10))}")
    S(f"s_mov_b32 s{S_HI+3}, 0x0001")
    for r_ in (S_N, S_RB, S_ITEM, S_DELTA, S_KCUR, S_VCUR): S(f"s_mov_b32 s{r_}, 0")
    S(f"s_mov_b32 s{S_E1+3}, 0x20000"); S(f"s_mov_b32 s{S_E2+3}, 0x20000")
    S(f"s_mov_b32 s{SRD_O+2}, {QBYTES}"); S(f"s_mov_b32 s{SRD_O+3}, 0x20000")
    P.add(other("s_waitcnt lgkmcnt(0)"))
    S(f"s_mov_b32 s{SRD_O}, s{S_PO}"); S(f"s_mov_b32 s{SRD_O+1}, s{S_PO+1}")
    S(f"s_add_u32 s{S_PK}, s{S_PK}, s{S_KVN}"); S(f"s_addc_u32 s{S_PK+1}, s{S_PK+1}, 0")
    S(f"s_add_u32 s{S_PV}, s{S_PV}, s{S_KVN}"); S(f"s_addc_u32 s{S_PV+1}, s{S_PV+1}, 0")
    def qlist(typ):
        if typ == "A":
            S(f"s_mov_b32 s{S_Q2}, s{S_QA}"); S(f"s_add_u32 s{S_Q2+1}, s{S_QA}, 8192"); S(f"s_mov_b32 s{S_Q2+2}, s{S_QH}"); S(f"s_mov_b32 s{S_QLEFT}, 3")
        else:
            S(f"s_mov_b32 s{S_Q2}, s{S_QB}"); S(f"s_add_u32 s{S_Q2+1}, s{S_QB}, 8192"); S(f"s_mov_b32 s{S_Q2+2}, s{S_QB}"); S(f"s_mov_b32 s{S_QLEFT}, 2")
    def rest():
        A(f"v_and_b32 {vr(key)}, 31, {vr(lane)}", [lane], [key])
        A(f"v_lshrrev_b32 {vr(h)}, 5, {vr(lane)}", [lane], [h])
        A(f"v_lshlrev_b32 {vr(V_LANE8)}, 3, {vr(lane)}", [lane], [V_LANE8])
        A(f"v_lshlrev_b32 {vr(V_LANE16)}, 4, {vr(lane)}", [lane], [V_LANE16])
        A(f"v_lshlrev_b32 {vr(X+3)}, 8, {vr(key)}", [key], [X + 3])
        A(f"v_and_b32 {vr(X+4)}, 15, {vr(key)}", [key], [X + 4])
        A(f"v_xor_b32 {vr(X+4)}, {vr(X+4)}, {vr(h)}", [X + 4, h], [X + 4])
        for s in range(8):
            A(f"v_xor_b32 {vr(X+5)}, {2*s}, {vr(X+4)}", [X + 4], [X + 5])
            A(f"v_lshl_add_u32 {vr(V_KA+s)}, {vr(X+5)}, 4, {vr(X+3)}", [X + 5, X + 3], [V_KA + s])
        A(f"v_and_b32 {vr(X+5)}, 15, {vr(key)}", [key], [X + 5])
        A(f"v_lshlrev_b32 {vr(X+6)}, 8, {vr(X+5)}", [X + 5], [X + 6])
        A(f"v_bfe_u32 {vr(X+7)}, {vr(key)}, 4, 1", [key], [X + 7])
        A(f"v_lshl_add_u32 {vr(X+6)}, {vr(X+7)}, 14, {vr(X+6)}", [X + 7, X + 6], [X + 6])
        A(f"v_add_u32 {vr(V_QBASE)}, s{S_W4K}, {vr(X+6)}", [X + 6], [V_QBASE])
        A(f"v_and_b32 {vr(X+6)}, 3, {vr(key)}", [key], [X + 6])
        A(f"v_lshlrev_b32 {vr(X+6)}, 2, {vr(X+6)}", [X + 6], [X + 6])
        P.add(valu(f"v_cmp_ne_u32 vcc, 0, {vr(X+7)}", {f"v{X+7}"}, {"vcc"}))
        P.add(valu(f"v_cndmask_b32 {vr(X+5)}, {vr(X+5)}, {vr(X+6)}, vcc", {f"v{X+5}", f"v{X+6}", "vcc"}, {f"v{X+5}"}))
        A(f"v_xor_b32 {vr(V_QXOR)}, {vr(X+5)}, {vr(h)}", [X + 5, h], [V_QXOR])
        r_, cq, dsel = X + 4, X + 5, X + 6
        A(f"v_bfe_u32 {vr(r_)}, {vr(lane)}, 2, 2", [lane], [r_])
        A(f"v_and_b32 {vr(cq)}, 3, {vr(lane)}", [lane], [cq])
        A(f"v_bfe_u32 {vr(dsel)}, {vr(lane)}, 4, 1", [lane], [dsel])
        A(f"v_lshl_add_u32 {vr(X+7)}, {vr(h)}, 2, {vr(r_)}", [h, r_], [X + 7])
        A(f"v_lshlrev_b32 {vr(X+7)}, 8, {vr(X+7)}", [X + 7], [X + 7])
        A(f"v_lshl_add_u32 {vr(X+7)}, {vr(dsel)}, 5, {vr(X+7)}", [dsel, X + 7], [X + 7])
        A(f"v_lshl_add_u32 {vr(X+7)}, {vr(cq)}, 3, {vr(X+7)}", [cq, X + 7], [X + 7])
        A(f"v_add_u32 {vr(X+7)}, 16384, {vr(X+7)}", [X + 7], [X + 7])
        for dt in range(4):
            A(f"v_xor_b32 {vr(X+8)}, {dt}, {vr(r_)}", [r_], [X + 8])
            A(f"v_lshl_add_u32 {vr(V_VA+dt)}, {vr(X+8)}, 6, {vr(X+7)}", [X + 8, X + 7], [V_VA + dt])
        for i in range(32):
            P.add(V(f"v_mov_b32 {vr(V_VF+i)}, 0", [], [V_VF + i]))
    S(f"s_cmp_lg_u32 s{S_ROLE}, 0"); P.add(other("s_cbranch_scc1 L_pro_B"))
    for typ in ("A", "B"):
        if typ == "B": P.add(label("L_pro_B"))
        nq = 3 if typ == "A" else 2
        qlist(typ)
        for e in range(2):
            P.add(set_q(S_Q2 + e)); P.add(sum(entry_issue(), []))
        rest()
        P.add(q_setup_pre())
        later = []
        if typ == "A":
            later.append(set_q(S_Q2 + 2) + sum(entry_issue(), []))
        later.append(set_kv() + sum(entry_issue(), []) + kv_next())
        later.append(sum(entry_issue(), []) + kv_next())
        for t in range(nq):
            P.add(other(f"s_waitcnt vmcnt({8 if t < 2 else 8})"))
            hd, body = q_setup_tile(typ, t)
            P.add(hd)
            if t < len(later):
                ops = later[t]
                P.add(weave(body, pieces_of(ops), 0.0, 0.9))
            else:
                P.add(body)
        qlist("B" if typ == "A" else "A")
        P.add(other("s_waitcnt vmcnt(8)"))
        P.add(other("s_barrier"))
        stamp(P, 1)
        P.add(other(f"s_branch L_go_{typ}"))
    P.add(label("L_go_A"))
    S(f"s_and_b32 s{S_T0}, s{S_W}, 1"); S(f"s_cmp_lg_u32 s{S_T0}, 0")
    P.add(other("s_cbranch_scc1 L_item_A1")); P.add(other("s_branch L_item_A0"))
    P.add(label("L_go_B")); P.add(other("s_branch L_item_B"))

def main():
    P = Prog()
    prologue(P)
    item_code(P, "A", 0)
    item_code(P, "A", 1)
    item_code(P, "B", 0)
    P.add(label("L_fin"))
    stamp_out(P)
    P.add(label("L_done")); P.add(other("s_endpgm"))
    for blk in outline:
        P.add(blk)
    for st, ro, rt in stubs:
        P.add(label(st)); P.add(other(f"s_call_b64 s[{S_RET}:{S_RET+1}], {ro}")); P.add(other(f"s_branch {rt}"))
    used = sorted(set(ro for _, ro, _ in stubs))
    for ro in used:
        _, _, t, sb = ro.split("_")
        slow_routine(P, int(t), int(sb))
    head = open("standalone__gqa_softmax__near_ridge.s.ref").read().split("; @launch")[0]
    out = head + "; @launch grid=(256,1,1) block=(256,1,1) lds=163840\n"
    out += '.amdgcn_target "amdgcn-amd-amdhsa--gfx950"\n.text\n.globl %s\n.p2align 8\n.type %s,@function\n%s:\n' % (NAME, NAME, NAME)
    out += P.text() + "\n"
    out += '''.section .rodata,"a"
.p2align 6
.amdhsa_kernel %s
  .amdhsa_next_free_vgpr 512
  .amdhsa_next_free_sgpr 100
  .amdhsa_accum_offset 256
  .amdhsa_group_segment_fixed_size 0
  .amdhsa_kernarg_size 48
  .amdhsa_user_sgpr_count 2
  .amdhsa_user_sgpr_kernarg_segment_ptr 1
  .amdhsa_system_sgpr_workgroup_id_x 1
.end_amdhsa_kernel
''' % NAME
    open(sys.argv[1] if len(sys.argv) > 1 else "k2.s", "w").write(out)

main()
```

```python
import sys, math, struct

OPT = dict(
    ld_nt=True, st_nt=False, ldf='nt', stf='',
    no_sm=False, no_lds=False, no_exp=False, no_chk=False, no_dma=False, no_mfma=False, stamp=False, no_bar=False, no_sc=False, barstat=False, dbg=False,
)
for a in sys.argv[2:]:
    k, v = a.split("=")
    OPT[k] = type(OPT[k])(int(v)) if not isinstance(OPT[k], str) else v

NAME = "standalone__gqa_softmax__near_ridge_kernel"
QBYTES = 37748736
KBYTES = 33554432
SLOT = 32768

def f32bits(x):
    return struct.unpack("<I", struct.pack("<f", x))[0]

V_Q0 = 0
V_NB = 32
V_FREE = 80
V_KF = 96
V_VF = 128
V_S = 160
V_P = 192
V_T = 208
V_L = 219
V_TS = 222
V_KA = 223
V_VA = 231
V_DK = 235
V_DV = 239
V_QBASE = 240
V_QXOR = 241
V_X = 242
V_TC = 253
V_LANE8 = 254
V_LANE16 = 255
A_O = 0
A_Q1 = 192
S_WG, S_W = 2, 3
S_PQ, S_PK, S_PV, S_PO = 4, 6, 8, 10
S_E1, S_E2, SRD_O = 12, 16, 24
S_O1, S_O2 = 20, 21
S_C = 28
S_LO, S_RANGE = 29, 22
S_RET = 30
S_N = 32
S_KV = 33
S_M0 = 34
S_RB = 35
S_DELTA = 36
S_QA = 37
S_QH = 38
S_QB = 39
S_KVN = 40
S_QPOS = 41
S_QLEFT = 42
S_ROLE = 43
S_ITEM = 44
S_T0, S_T1, S_T2 = 45, 46, 47
S_Q2 = 48
S_KCUR, S_VCUR = 51, 52
S_XME, S_XPART = 53, 54
S_W4K = 55
S_HI = 56
S_P0, S_P1, S_P2 = 60, 61, 62
S_MASK = 63
S_SO = 96
S_C2 = 94
S_STAMP = 64

def vr(b, n=1):
    return f"v{b}" if n == 1 else f"v[{b}:{b+n-1}]"
def ar(b, n=1):
    return f"a{b}" if n == 1 else f"a[{b}:{b+n-1}]"
def rs(p, b, n):
    return {f"{p}{i}" for i in range(b, b + n)}

class Ins:
    __slots__ = ("text", "kind", "rd", "wr", "cost", "srcc", "tag", "skip", "likely")
    def __init__(self, text, kind, rd=(), wr=(), cost=4, srcc=(), tag=None):
        self.text, self.kind, self.rd, self.wr, self.cost, self.srcc, self.tag = text, kind, set(rd), set(wr), cost, set(srcc), tag
        self.skip = False
        self.likely = True

def R(kind, b, n=1):
    return (vr(b, n) if kind == "v" else ar(b, n)), rs(kind, b, n)

def mfma(dk, d, ak, a, bk, b, czero=False, cblk=None):
    dt, ds_ = R(dk, d, 16); at, as_ = R(ak, a, 4); bt, bs_ = R(bk, b, 4)
    if cblk is not None:
        c, cs = R(dk, cblk, 16)
    elif czero:
        c, cs = "0", set()
    else:
        c, cs = dt, ds_
    return Ins(f"v_mfma_f32_32x32x16_bf16 {dt}, {at}, {bt}, {c}", "mfma", as_ | bs_ | cs, ds_, 8, srcc=cs)
def valu(text, rd, wr, trans=False, cost=None):
    return Ins(text, "trans" if trans else "valu", rd, wr, cost or (8 if trans else 4))
def salu(text, rd=(), wr=()):
    return Ins(text, "salu", rd, wr, 4)
def other(text, cost=4):
    return Ins(text, "other", (), (), cost)
def label(name):
    return Ins(name + ":", "label", (), (), 0)
def V(text, rd, wr, **kw):
    return valu(text, {f"v{r}" for r in rd}, {f"v{w}" for w in wr}, **kw)
def perm(a, b):
    return Ins(f"v_permlane32_swap_b32 {vr(a)}, {vr(b)}", "perm", {f"v{a}", f"v{b}"}, {f"v{a}", f"v{b}"})

class Prog:
    def __init__(self):
        self.ins = []
        self.ldsq = []
    def states_back(self, inrun=False):
        d = 0
        for i in reversed(self.ins):
            if i.kind == "label":
                inrun = False
                continue
            yield i, d
            if not i.skip:
                inrun = False
            if i.skip and not inrun:
                continue
            if i.text.startswith("s_nop"):
                d += int(i.text.split()[1]) + 1
            else:
                d += 1
            if d > 24:
                return
    def need(self, x):
        n = 0
        for p, d in self.states_back(x.skip):
            req = 0
            if p.kind == "mfma":
                if x.kind == "mfma":
                    if p.wr & (x.rd - x.srcc): req = 12
                    elif (p.wr & x.srcc) and (p.wr != x.srcc): req = 10
                    elif (p.wr & x.wr) and not (p.wr & x.srcc): req = 12
                elif x.kind in ("valu", "trans", "lds", "vmem", "perm"):
                    if p.wr & (x.rd | x.wr): req = 12
                    if x.kind in ("valu", "trans", "perm") and (p.srcc & x.wr): req = max(req, 7)
            elif p.kind in ("valu", "trans", "perm"):
                if x.kind == "mfma" and (p.wr & x.rd): req = 2
                if x.kind == "perm" and (p.wr & x.rd): req = 2
                if p.kind == "perm" and x.kind in ("valu", "trans") and (p.wr & x.rd): req = max(req, 2)
                if p.kind == "trans" and x.kind in ("valu", "perm") and (p.wr & x.rd): req = max(req, 1)
                if x.kind in ("valu", "trans") and any(r.startswith("s") or r == "vcc" for r in (p.wr & x.rd)): req = max(req, 2)
                if x.kind == "vmem" and any(r.startswith("s") for r in (p.wr & x.rd)): req = max(req, 5)
                if x.kind == "rfl" and (p.wr & x.rd): req = max(req, 1)
            elif p.kind == "rfl":
                if x.kind in ("valu", "trans") and (p.wr & x.rd): req = 2
                if x.kind == "vmem" and (p.wr & x.rd): req = 5
                if x.kind == "salu" and (p.wr & x.rd): req = 2
            elif p.kind == "vmem" and p.tag == "store":
                if x.kind in ("valu", "trans", "perm", "lds") and (p.rd & x.wr): req = 2
            elif p.kind == "salu" and "m0" in p.wr:
                if x.kind == "vmem" and "m0" in x.rd: req = 1
            if req > d:
                n = max(n, req - d)
        return n
    def add(self, x):
        if isinstance(x, (list, tuple)):
            for y in x: self.add(y)
            return
        if x.text == "s_waitcnt lgkmcnt(0)":
            self.ins.append(x); self.ldsq = []
            return
        if x.kind in ("mfma", "valu", "trans", "vmem", "perm", "lds"):
            use = x.rd | x.wr
            last = -1
            for i, (dst, tg) in enumerate(self.ldsq):
                if dst & use: last = i
            if last >= 0 and self.ldsq[last][1] is not None and x.kind == "mfma":
                tg = self.ldsq[last][1]
                while last + 1 < len(self.ldsq) and self.ldsq[last + 1][1] == tg: last += 1
            if last >= 0:
                n = len(self.ldsq) - 1 - last
                n = min(n, 15)
                self.ins.append(other(f"s_waitcnt lgkmcnt({n})"))
                self.ldsq = self.ldsq[len(self.ldsq) - n:] if n else []
        n = self.need(x)
        while n > 0:
            k = min(n, 16)
            self.ins.append(other(f"s_nop {k-1}", 4 * k))
            self.ins[-1].skip = x.skip
            n -= k
        self.ins.append(x)
        if x.kind == "lds":
            self.ldsq.append((set(x.wr), x.tag))
    def lgkm0(self):
        self.add(other("s_waitcnt lgkmcnt(0)"))
    def text(self):
        return "\n".join(i.text if i.kind == "label" else "    " + i.text for i in self.ins)

class L:
    def __init__(self): self.ins = []
    def add(self, x):
        if isinstance(x, (list, tuple)):
            for y in x: self.add(y)
        else: self.ins.append(x)
    def lgkm0(self): self.add(other("s_waitcnt lgkmcnt(0)"))

def weave(stream, extras, lead=0.05, end=0.95):
    tot = sum(x.cost for x in stream) or 1
    out = []; acc = 0; k = 0; n = len(extras)
    for x in stream:
        while k < n and acc >= tot * (lead + (end - lead) * k / max(1, n)):
            out += extras[k]; k += 1
        out.append(x); acc += x.cost
    while k < n:
        out += extras[k]; k += 1
    return out

def cond(ops, likely=False):
    for o in ops:
        o.skip = True; o.likely = likely
    return ops
lbl_n = [0]
def newlbl(p="L"):
    lbl_n[0] += 1
    return f"{p}{lbl_n[0]}"

def q_reg(typ, t):
    return ("v", V_Q0) if t == 0 else ("a", A_Q1 + 32 * (t - 1))

def qk_group(typ, t, sb):
    qk, qb = q_reg(typ, t)
    return [mfma("v", V_S + 16 * sb, "v", V_KF + 4 * s, qk, qb + 4 * s, cblk=(V_NB + 16 * t if s == 0 else None)) for s in range(8)]

def pv_group(t, pb):
    out = []
    for ks in range(2):
        for dt in range(4):
            out.append(mfma("a", A_O + 64 * t + 16 * dt, "v", V_VF + 8 * dt + 4 * ks, "v", V_P + 8 * pb + 4 * ks))
    return out

def k_load(s, sub):
    return Ins(f"ds_read_b128 {vr(V_KF+4*s,4)}, {vr(V_KA+s)} offset:{sub*8192}", "lds", {f"v{V_KA+s}"}, rs("v", V_KF + 4 * s, 4), 6, tag="K")

def v_load(dt, ks, e4, sub):
    d = V_VF + 8 * dt + 4 * ks + 2 * e4
    return Ins(f"ds_read_b64_tr_b16 {vr(d,2)}, {vr(V_VA+dt)} offset:{sub*8192+ks*4096+e4*2048}", "lds", {f"v{V_VA+dt}"}, rs("v", d, 2), 4, tag="V")

def softmax_ops(t, sb, with_cmp=True, sub=None):
    S = V_S + 16 * sb; P = V_P + 8 * sb; T = V_T; ts = V_TS
    ops = []; tail = []
    for k in range(19):
        if k < 16:
            if sub is not None:
                ops.append(V(f"v_sub_f32 {vr(T+k%8)}, {vr(S+k)}, {vr(sub)}", [S + k, sub], [T + k % 8]))
                ops.append(V(f"v_exp_f32 {vr(T+k%8)}, {vr(T+k%8)}", [T + k % 8], [T + k % 8], trans=True))
            else:
                ops.append(V(f"v_exp_f32 {vr(T+k%8)}, {vr(S+k)}", [S + k], [T + k % 8], trans=True))
        r = k - 2
        if 1 <= r < 16:
            if r == 1:
                ops.append(V(f"v_add_f32 {vr(ts)}, {vr(T)}, {vr(T+1)}", [T, T + 1], [ts]))
            else:
                ops.append(V(f"v_add_f32 {vr(ts)}, {vr(ts)}, {vr(T+r%8)}", [ts, T + r % 8], [ts]))
            if r % 2 == 1:
                a, b = T + (r - 1) % 8, T + r % 8
                c = V(f"v_cvt_pk_bf16_f32 {vr(P+r//2)}, {vr(a)}, {vr(b)}", [a, b], [P + r // 2], cost=5)
                (tail if r >= 11 else ops).append(c)
    if with_cmp:
        ops.append(V(f"v_subrev_u32 {vr(V_TC)}, s{S_LO}, {vr(ts)}", [ts], [V_TC]))
        ops.append(valu(f"v_cmp_lt_u32 vcc, s{S_RANGE}, {vr(V_TC)}", {f"v{V_TC}"}, {"vcc"}))
    return ops + tail

stubs = []
site_n = [0]
def check_ops(t, sb):
    k = site_n[0]; site_n[0] += 1
    stubs.append((f"L_stub{k}", f"L_slow_{t}_{sb}", f"L_ret{k}"))
    return [other(f"s_cbranch_vccnz L_stub{k}", 10),
            label(f"L_ret{k}"),
            V(f"v_add_f32 {vr(V_L+t)}, {vr(V_L+t)}, {vr(V_TS)}", [V_L + t, V_TS], [V_L + t])]

def entry_issue():
    nt = (" " + OPT["ldf"].replace("_", " ")) if OPT["ldf"] else ""
    u = []
    for half, (e, so) in enumerate(((S_E1, S_O1), (S_E2, S_O2))):
        for a in range(4):
            vo = V_DK + a if half == 0 else V_DV
            x = []
            if a == 0:
                x.append(salu(f"s_mov_b32 m0, s{S_M0}", (), {"m0"}) if half == 0 else salu(f"s_add_u32 m0, s{S_M0}, 16384", (), {"m0"}))
            x.append(Ins(f"buffer_load_dwordx4 {vr(vo)}, s[{e}:{e+3}], s{so} offen offset:{a*1024}{nt} lds", "vmem", {f"v{vo}", "m0"}, (), 8))
            u.append(x)
    u.append([salu(f"s_add_u32 s{S_M0}, s{S_M0}, {SLOT}"),
              salu(f"s_cmp_ge_u32 s{S_M0}, {5*SLOT}"),
              salu(f"s_cselect_b32 s{S_P0}, {5*SLOT}, 0"),
              salu(f"s_sub_u32 s{S_M0}, s{S_M0}, s{S_P0}")])
    return u

def kv_next():
    return [salu(f"s_add_u32 s{S_O1}, s{S_O1}, 16384"), salu(f"s_add_u32 s{S_O2}, s{S_O2}, 16384")]

def set_q(sreg):
    return [salu(f"s_mov_b64 s[{S_E1}:{S_E1+1}], s[{S_PQ}:{S_PQ+1}]"), salu(f"s_mov_b64 s[{S_E2}:{S_E2+1}], s[{S_PQ}:{S_PQ+1}]"),
            salu(f"s_mov_b32 s{S_E1+2}, {QBYTES}"), salu(f"s_mov_b32 s{S_E2+2}, {QBYTES}"),
            salu(f"s_mov_b32 s{S_O1}, s{sreg}"), salu(f"s_add_u32 s{S_O2}, s{sreg}, 4096")]

def set_kv():
    return [salu(f"s_mov_b64 s[{S_E1}:{S_E1+1}], s[{S_PK}:{S_PK+1}]"), salu(f"s_mov_b64 s[{S_E2}:{S_E2+1}], s[{S_PV}:{S_PV+1}]"),
            salu(f"s_mov_b32 s{S_E1+2}, 262144"), salu(f"s_mov_b32 s{S_E2+2}, 262144"),
            salu(f"s_mov_b32 s{S_O1}, s{S_KV}"), salu(f"s_mov_b32 s{S_O2}, s{S_KV}")]

outline = []
def special_site(typ):
    lo, lr = newlbl("L_sp"), newlbl("L_spr")
    nq2 = 2 if typ == "A" else 3
    blk = [label(lo)]
    def case(p, ops):
        l = newlbl("L_c")
        return [salu(f"s_cmp_lg_u32 s{S_N}, {p}"), other(f"s_cbranch_scc1 {l}")] + ops + [other(f"s_branch {lr}"), label(l)]
    blk += case(3, [salu(f"s_mov_b32 s{S_KV}, s{S_O1}")] + set_q(S_Q2))
    for j in range(1, nq2):
        blk += case(3 + j, set_q(S_Q2 + j))
    blk += case(3 + nq2, set_kv())
    blk += [salu(f"s_mov_b32 s{S_LO}, 0"), salu(f"s_mov_b32 s{S_RANGE}, s{S_HI}"), other(f"s_branch {lr}")]
    outline.append(blk)
    msk = S_HI + 2 if typ == "A" else S_HI + 1
    return kv_next() + [salu(f"s_bitcmp1_b32 s{msk}, s{S_N}"), other(f"s_cbranch_scc1 {lo}", 10), label(lr)]

def extra_site():
    lo, lr = newlbl("L_ex"), newlbl("L_exr")
    outline.append([label(lo)] + sum(entry_issue(), []) + kv_next() + [other(f"s_branch {lr}")])
    return [salu(f"s_bitcmp1_b32 s{S_HI+3}, s{S_N}"), other(f"s_cbranch_scc1 {lo}", 10), label(lr)]

def rb_advance():
    return [salu(f"s_add_u32 s{S_RB}, s{S_RB}, {SLOT}"),
            salu(f"s_cmp_ge_u32 s{S_RB}, {5*SLOT}"),
            salu(f"s_cselect_b32 s{S_RB}, 0, s{S_RB}")]

def rebase(base, n, sreg=S_DELTA):
    return [V(f"v_add_u32 {vr(base+i)}, s{sreg}, {vr(base+i)}", [base + i], [base + i]) for i in range(n)]

def build_body(P, typ, steps):
    n = len(steps)
    assert n % 2 == 0
    def st(k): return steps[k % n]
    groups = []
    for k in range(n):
        r, sub, t = st(k - 1)
        groups.append(dict(mf=pv_group(t, (k - 1) % 2), fixed=[[] for _ in range(8)], pre=[], kind="pv", k=k - 1))
        r, sub, t = st(k + 1)
        groups.append(dict(mf=qk_group(typ, t, (k + 1) % 2), fixed=[[] for _ in range(8)], pre=[], kind="qk", k=k + 1))
    ng = len(groups)
    def step_id(k):
        r, sub, t = st(k)
        return (k // n, r, sub)
    bar_groups = []
    for gi, g in enumerate(groups):
        j = g["k"]
        if g["kind"] == "pv" and step_id(j + 1) != step_id(j):
            nsub = st(j + 1)[1]
            if nsub == 0:
                g["pre"] += rebase(V_VA, 4)
            m = 0
            for ks in range(2):
                for dt in range(4):
                    g["fixed"][m] += [v_load(dt, ks, 0, nsub), v_load(dt, ks, 1, nsub)]
                    m += 1
        if g["kind"] == "qk" and step_id(j + 1) != step_id(j):
            nsub = st(j + 1)[1]
            if nsub == 1:
                for s in range(8):
                    g["fixed"][s] += [k_load(s, 1)]
            else:
                bar_groups.append((gi + 1) % ng)
                adv = rb_advance() + [salu(f"s_sub_u32 s{S_DELTA}, s{S_RB}, s{S_KCUR}"), salu(f"s_mov_b32 s{S_KCUR}, s{S_RB}"),
                                      salu(f"s_mov_b32 s{S_VCUR}, s{S_RB}"), salu(f"s_add_u32 s{S_N}, s{S_N}, 1")]
                g["fixed"][0] += adv[:3]; g["fixed"][1] += adv[3:]
                rb = rebase(V_KA, 8)
                for i in range(8):
                    g["fixed"][2 + i * 6 // 8] += [rb[i]]
    nx = 2
    for bi, gi in enumerate(bar_groups):
        g = groups[gi]
        if OPT["barstat"]:
            g["pre"] = [other("s_waitcnt lgkmcnt(0)"), other("s_memtime s[88:89]"), other("s_waitcnt lgkmcnt(0)"), other("s_waitcnt vmcnt(24)"),
                        other("s_memtime s[90:91]"), other("s_waitcnt lgkmcnt(0)"), other("s_barrier"), other("s_memtime s[92:93]"), other("s_waitcnt lgkmcnt(0)"),
                        salu("s_sub_u32 s88, s90, s88"), salu("s_sub_u32 s90, s92, s90"),
                        salu(f"s_cmp_ge_u32 s{S_N}, 9"), salu("s_cselect_b32 s88, s88, 0"), salu("s_cselect_b32 s90, s90, 0"),
                        salu("s_add_u32 s86, s86, s88"), salu("s_add_u32 s87, s87, s90")] + g["pre"]
        else:
            g["pre"] = [other("s_waitcnt lgkmcnt(0)"), other("s_waitcnt vmcnt(24)"), other("s_barrier")] + g["pre"]
        for s_ in range(8):
            g["fixed"][s_ // 3] += [k_load(s_, 0)]
        last = (bi == len(bar_groups) - 1)
        e = entry_issue()
        units = [e[0] + e[1], e[2] + e[3], e[4] + e[5], e[6] + e[7], e[8], special_site(typ)]
        if last:
            units += [extra_site() for _ in range(nx)]
        slots = []
        cnt = (bar_groups[(bi + 1) % len(bar_groups)] - gi) % ng or ng
        for off in range(cnt):
            idx = (gi + off) % ng
            gg = groups[idx]
            if last and idx >= gi: continue
            if gg["kind"] == "pv":
                sl = [4] if off == 0 else [0, 1]
            else:
                sl = [3] if off + 1 < cnt else []
            slots += [(gg, i) for i in sl]
        assign = [[] for _ in slots]
        for ui, u_ in enumerate(units):
            assign[min(len(slots) - 1, ui * len(slots) // len(units))] += u_
        for (gg, i), blk in zip(slots, assign):
            gg["fixed"][i] += blk
    for k in range(n):
        r, sub, t = st(k)
        ops = softmax_ops(t, k % 2)
        g0, g1 = groups[2 * k], groups[2 * k + 1]
        gaps = [(g0, i) for i in range(2, 8)] + [(g1, i) for i in range(8)]
        fixed = [sum(x.cost for x in g["fixed"][i] if x.likely) for g, i in gaps]
        tot = sum(x.cost for x in ops) + 14 + sum(fixed)
        per = tot / len(gaps)
        cum = 0.0; placed = 0.0; oi = 0
        for gi, (g, i) in enumerate(gaps):
            cum += per
            placed += fixed[gi]
            lst = g.setdefault("flex", [[] for _ in range(8)])[i]
            while oi < len(ops) and (placed + ops[oi].cost / 2 <= cum or gi == len(gaps) - 1):
                lst.append(ops[oi]); placed += ops[oi].cost; oi += 1
        g1["flex"][7] += check_ops(t, k % 2)
    for gi, g in enumerate(groups):
        P.add([x for x in g["pre"] if not (OPT["no_bar"] and ("barrier" in x.text or "vmcnt" in x.text))])
        for i in range(8):
            if not OPT["no_mfma"]: P.add(g["mf"][i])
            fx = g["fixed"][i]
            if OPT["no_sc"]: fx = [x for x in fx if not (x.text.startswith("s_cbranch") or x.text.startswith("s_bitcmp"))]
            if OPT["no_lds"]: fx = [x for x in fx if x.kind != "lds"]
            if OPT["no_dma"]: fx = [x for x in fx if x.kind != "vmem"]
            P.add(fx)
            fl = g.get("flex", [[] for _ in range(8)])[i]
            if OPT["no_sm"]: fl = [x for x in fl if x.kind == "label"]
            if OPT["no_exp"]: fl = [x for x in fl if x.kind != "trans"]
            if OPT["no_chk"]: fl = [x for x in fl if "vcc" not in x.text]
            P.add(fl)

def slow_routine(P, t, sb):
    S = V_S + 16 * sb; nb = V_NB + 16 * t; X = V_X
    P.add(label(f"L_slow_{t}_{sb}"))
    P.add(other("s_nop 15", 64))
    P.add(V(f"v_max3_f32 {vr(X)}, {vr(S)}, {vr(S+1)}, {vr(S+2)}", [S, S + 1, S + 2], [X]))
    for i in range(3, 15, 2):
        P.add(V(f"v_max3_f32 {vr(X)}, {vr(X)}, {vr(S+i)}, {vr(S+i+1)}", [X, S + i, S + i + 1], [X]))
    P.add(V(f"v_max_f32 {vr(X)}, {vr(X)}, {vr(S+15)}", [X, S + 15], [X]))
    P.add(V(f"v_mov_b32 {vr(X+1)}, {vr(X)}", [X], [X + 1]))
    P.add(perm(X, X + 1))
    P.add(V(f"v_max_f32 {vr(X)}, {vr(X)}, {vr(X+1)}", [X, X + 1], [X]))
    P.add(V(f"v_mov_b32 {vr(X+2)}, {vr(V_L+t)}", [V_L + t], [X + 2]))
    P.add(V(f"v_mov_b32 {vr(X+3)}, {vr(V_L+t)}", [V_L + t], [X + 3]))
    P.add(perm(X + 2, X + 3))
    P.add(V(f"v_add_f32 {vr(X+2)}, {vr(X+2)}, {vr(X+3)}", [X + 2, X + 3], [X + 2]))
    P.add(valu(f"v_cmp_neq_f32 vcc, 0, {vr(X+2)}", {f"v{X+2}"}, {"vcc"}))
    P.add(V(f"v_max_f32 {vr(X+3)}, 0, {vr(X)}", [X], [X + 3]))
    P.add(valu(f"v_cndmask_b32 {vr(X)}, {vr(X)}, {vr(X+3)}, vcc", {f"v{X}", f"v{X+3}", "vcc"}, {f"v{X}"}))
    P.add(V(f"v_exp_f32 {vr(X+1)}, -{vr(X+3)}", [X + 3], [X + 1], trans=True))
    for i in range(16):
        P.add(V(f"v_sub_f32 {vr(nb+i)}, {vr(nb+i)}, {vr(X)}", [nb + i, X], [nb + i]))
    P.add(V(f"v_mul_f32 {vr(V_L+t)}, {vr(V_L+t)}, {vr(X+1)}", [V_L + t, X + 1], [V_L + t]))
    l = newlbl("L_sk")
    P.add(other(f"s_cbranch_vccz {l}"))
    for i in range(0, 64, 4):
        for j in range(4):
            P.add(valu(f"v_accvgpr_read_b32 {vr(X+4+j)}, {ar(A_O+64*t+i+j)}", {f"a{A_O+64*t+i+j}"}, {f"v{X+4+j}"}))
        for j in range(4):
            P.add(V(f"v_mul_f32 {vr(X+4+j)}, {vr(X+4+j)}, {vr(X+1)}", [X + 4 + j, X + 1], [X + 4 + j]))
        for j in range(4):
            P.add(valu(f"v_accvgpr_write_b32 {ar(A_O+64*t+i+j)}, {vr(X+4+j)}", {f"v{X+4+j}"}, {f"a{A_O+64*t+i+j}"}))
    P.add(label(l))
    P.add(softmax_ops(t, sb, with_cmp=False, sub=X))
    P.add(other("s_nop 3", 16))
    P.add(other(f"s_setpc_b64 s[{S_RET}:{S_RET+1}]"))

def stamp(P, idx_expr):
    if not OPT["stamp"]: return
    if isinstance(idx_expr, int):
        P.add(other(f"s_memtime s[{S_STAMP+2*idx_expr}:{S_STAMP+2*idx_expr+1}]"))
        P.add(other("s_waitcnt lgkmcnt(0)"))
    else:
        base = idx_expr[1]
        l1, l2 = newlbl("L_st"), newlbl("L_st")
        P.add(salu(f"s_cmp_lg_u32 s{S_ITEM}, 0")); P.add(other(f"s_cbranch_scc1 {l1}"))
        P.add(other(f"s_memtime s[{S_STAMP+2*base}:{S_STAMP+2*base+1}]")); P.add(other(f"s_branch {l2}"))
        P.add(label(l1)); P.add(other(f"s_memtime s[{S_STAMP+2*(base+4)}:{S_STAMP+2*(base+4)+1}]"))
        P.add(label(l2)); P.add(other("s_waitcnt lgkmcnt(0)"))

def stamp_out(P):
    if not OPT["stamp"]: return
    P.add(other("s_waitcnt vmcnt(0)"))
    stamp(P, 10)
    if not OPT["barstat"]:
        P.add(other("s_memrealtime s[90:91]")); P.add(other("s_waitcnt lgkmcnt(0)"))
        P.add(salu("s_mov_b32 s86, s88")); P.add(salu("s_mov_b32 s87, s90"))
    if OPT["dbg"]:
        P.add(other("s_load_dwordx2 s[4:5], s[0:1], 32")); P.add(other("s_waitcnt lgkmcnt(0)"))
        P.add(salu("s_mov_b32 s6, 64")); P.add(salu("s_mov_b32 s7, 0x20000"))
        for i in range(10, 0, -1):
            P.add(salu(f"s_sub_u32 s{S_STAMP+2*i}, s{S_STAMP+2*i}, s{S_STAMP}"))
        P.add(salu("s_sub_u32 s87, s87, s86"))
    else:
        P.add(other("s_load_dwordx2 s[4:5], s[0:1], 40")); P.add(other("s_waitcnt lgkmcnt(0)"))
        P.add(salu("s_mov_b32 s6, 268435456")); P.add(salu("s_mov_b32 s7, 0x20000"))
    P.add(salu(f"s_lshl_b32 s8, s{S_WG}, 2")); P.add(salu(f"s_add_u32 s8, s8, s{S_W}")); P.add(salu("s_lshl_b32 s8, s8, 6"))
    P.add(valu("v_mov_b32 v1, 0", (), {"v1"}))
    for i in range(13):
        P.add(valu(f"v_mov_b32 v2, s{S_STAMP+2*i if i < 11 else 86 + i - 11}", (), {"v2"}))
        P.add(Ins(f"buffer_store_dword v2, v1, s[4:7], s8 offen offset:{4*i}", "vmem", {"v1", "v2"}, ()))
        P.add(other("s_waitcnt vmcnt(0)"))

def img_addr(P, dst, chunk_even, sbase):
    P.add(V(f"v_xor_b32 {vr(dst)}, {chunk_even}, {vr(V_QXOR)}", [V_QXOR], [dst]))
    P.add(V(f"v_lshl_add_u32 {vr(dst)}, {vr(dst)}, 4, {vr(V_QBASE)}", [dst, V_QBASE], [dst]))
    P.add(V(f"v_add_u32 {vr(dst)}, s{sbase}, {vr(dst)}", [dst], [dst]))

def q_setup_tile(typ, t):
    C = L()
    AD = V_T
    qk, qb = q_reg(typ, t)
    RAW = V_S
    for s in range(8):
        C.add(V(f"v_add_u32 {vr(V_X+s)}, s{S_RB}, {vr(AD+s)}", [AD + s], [V_X + s]))
    for s in range(8):
        C.add(Ins(f"ds_read_b128 {vr(RAW+4*s,4)}, {vr(V_X+s)}", "lds", {f"v{V_X+s}"}, rs("v", RAW + 4 * s, 4)))
    C.add(rb_advance())
    head = C.ins; C = L()
    for i in range(16):
        C.add(V(f"v_mov_b32 {vr(V_NB+16*t+i)}, 0", [], [V_NB + 16 * t + i]))
    C.add(V(f"v_mov_b32 {vr(V_L+t)}, 0", [], [V_L + t]))
    TMP = V_FREE
    for r0 in range(0, 32, 4):
        if r0 % 8 == 0:
            C.add(mfma("a", A_O + 64 * t + 2 * r0, "v", V_VF, "v", V_P + 8, czero=True))
        for j in range(4):
            r = RAW + r0 + j
            C.add(V(f"v_lshlrev_b32 {vr(TMP+2*j)}, 16, {vr(r)}", [r], [TMP + 2 * j]))
            C.add(V(f"v_and_b32 {vr(TMP+2*j+1)}, s{S_MASK}, {vr(r)}", [r], [TMP + 2 * j + 1]))
        for j in range(0, 8, 2):
            C.add(V(f"v_pk_mul_f32 {vr(TMP+j,2)}, {vr(TMP+j,2)}, s[{S_C2}:{S_C2+1}]", [TMP + j, TMP + j + 1], [TMP + j, TMP + j + 1], cost=6))
        for j in range(4):
            d = qb + r0 + j if qk == "v" else TMP + 8 + j
            C.add(V(f"v_cvt_pk_bf16_f32 {vr(d)}, {vr(TMP+2*j)}, {vr(TMP+2*j+1)}", [TMP + 2 * j, TMP + 2 * j + 1], [d]))
        if qk == "a":
            for j in range(4):
                C.add(valu(f"v_accvgpr_write_b32 {ar(qb+r0+j)}, {vr(TMP+8+j)}", {f"v{TMP+8+j}"}, {f"a{qb+r0+j}"}))
    return head, C.ins

def pieces_of(ops):
    pieces = []; cur = []
    for x in ops:
        cur.append(x)
        if x.kind == "vmem": pieces.append(cur); cur = []
    pieces[-1] += cur
    return pieces

def q_setup_pre():
    C = L()
    for i in range(8):
        C.add(V(f"v_mov_b32 {vr(V_P+8+i)}, 0", [], [V_P + 8 + i]))
    for s in range(8):
        C.add(V(f"v_xor_b32 {vr(V_T+s)}, {2*s}, {vr(V_QXOR)}", [V_QXOR], [V_T + s]))
        C.add(V(f"v_lshl_add_u32 {vr(V_T+s)}, {vr(V_T+s)}, 4, {vr(V_QBASE)}", [V_T + s, V_QBASE], [V_T + s]))
    return C.ins

def item_begin(P, typ):
    P.add(salu(f"s_sub_u32 s{S_DELTA}, s{S_RB}, s{S_KCUR}")); P.add(salu(f"s_mov_b32 s{S_KCUR}, s{S_RB}"))
    P.add(rebase(V_KA, 8))
    for s in range(8): P.add(k_load(s, 0))
    P.add(salu(f"s_sub_u32 s{S_DELTA}, s{S_RB}, s{S_VCUR}")); P.add(salu(f"s_mov_b32 s{S_VCUR}, s{S_RB}"))
    lo = f32bits(2.0 ** -20); hi = f32bits(65536.0)
    P.add(salu(f"s_mov_b32 s{S_LO}, 0x{lo:08x}")); P.add(salu(f"s_mov_b32 s{S_RANGE}, 0x{hi-lo:08x}"))
    P.lgkm0()

def lsum(P, lreg, dst, X):
    P.add(V(f"v_mov_b32 {vr(X)}, {vr(lreg)}", [lreg], [X]))
    P.add(V(f"v_mov_b32 {vr(X+1)}, {vr(lreg)}", [lreg], [X + 1]))
    P.add(perm(X, X + 1))
    P.add(V(f"v_add_f32 {vr(dst)}, {vr(X)}, {vr(X+1)}", [X, X + 1], [dst]))

def pack_unit(P, t, dt, kp, scale, B, addr, addsrc=None, scale2=None, woff=0):
    a0 = A_O + 64 * t + 16 * dt + 8 * kp
    for j in range(8):
        P.add(valu(f"v_accvgpr_read_b32 {vr(B+j)}, {ar(a0+j)}", {f"a{a0+j}"}, {f"v{B+j}"}))
    for j in range(0, 8, 2):
        P.add(V(f"v_pk_mul_f32 {vr(B+j,2)}, {vr(B+j,2)}, {vr(scale,2)}", [B + j, B + j + 1, scale, scale + 1], [B + j, B + j + 1], cost=6))
    if addsrc is not None:
        for j in range(0, 8, 2):
            P.add(V(f"v_pk_fma_f32 {vr(B+j,2)}, {vr(addsrc+j,2)}, {vr(scale2,2)}, {vr(B+j,2)}",
                    [B + j, B + j + 1, addsrc + j, addsrc + j + 1, scale2, scale2 + 1], [B + j, B + j + 1], cost=6))
    for j in range(4):
        P.add(V(f"v_cvt_pk_bf16_f32 {vr(B+8+j)}, {vr(B+2*j)}, {vr(B+2*j+1)}", [B + 2 * j, B + 2 * j + 1], [B + 8 + j]))
    P.add(perm(B + 8, B + 10)); P.add(perm(B + 9, B + 11))
    P.add(Ins(f"ds_write_b128 {vr(addr)}, {vr(B+8,4)} offset:{woff}", "lds", rs("v", B + 8, 4) | {f"v{addr}"}, ()))

def image_readback(C, pieces, RB, base_sreg=None):
    X = V_X
    C.add(V(f"v_add_u32 {vr(X+8)}, s{base_sreg if base_sreg is not None else S_M0}, {vr(V_LANE16)}", [V_LANE16], [X + 8]))
    C.lgkm0()
    for i, a in enumerate(pieces):
        off = (a % 4) * 1024 + (16384 if a >= 4 else 0)
        C.add(Ins(f"ds_read_b128 {vr(RB+4*i,4)}, {vr(X+8)} offset:{off}", "lds", {f"v{X+8}"}, rs("v", RB + 4 * i, 4)))

def image_stores(pieces, RB, so_lo, so_hi):
    nt = (" " + OPT["stf"].replace("_", " ")) if OPT["stf"] else ""
    out = []
    for i, a in enumerate(pieces):
        vo = V_DK + a if a < 4 else V_DV
        so = so_lo if a < 4 else so_hi
        out.append([Ins(f"buffer_store_dwordx4 {vr(RB+4*i,4)}, {vr(vo)}, s[{SRD_O}:{SRD_O+3}], s{so} offen offset:{(a%4)*1024}{nt}", "vmem",
                        rs("v", RB + 4 * i, 4) | {f"v{vo}"}, (), 8, tag="store")])
    return out

def image_addrs():
    C = L()
    C.add(salu(f"s_sub_u32 s{S_T0}, s{S_M0}, s{S_W4K}"))
    C.add(V(f"v_add_u32 {vr(V_X+9)}, s{S_T0}, {vr(V_QBASE)}", [V_QBASE], [V_X + 9]))
    for u in range(8):
        C.add(V(f"v_xor_b32 {vr(V_T+u)}, {2*u}, {vr(V_QXOR)}", [V_QXOR], [V_T + u]))
        C.add(V(f"v_lshl_add_u32 {vr(V_T+u)}, {vr(V_T+u)}, 4, {vr(V_X+9)}", [V_T + u, V_X + 9], [V_T + u]))
    return C.ins

def pack_tile(t):
    C = L(); X = V_X
    lsum(C, V_L + t, X + 2, X)
    C.add(V(f"v_rcp_f32 {vr(X+2)}, {vr(X+2)}", [X + 2], [X + 2], trans=True))
    C.add(V(f"v_mov_b32 {vr(X+3)}, {vr(X+2)}", [X + 2], [X + 3]))
    u = 0
    for dt in range(4):
        for kp in range(2):
            pack_unit(C, t, dt, kp, X + 2, V_S + 12 * (u % 4), V_T + u)
            u += 1
    return C.ins

def epilogue_H(P, par):
    X = V_X; t = 2
    P.add(salu(f"s_xor_b32 s{S_XPART}, s{S_M0}, 4096"))
    lsum(P, V_L + t, X + 3, X)
    P.add(V(f"v_mov_b32 {vr(X+2)}, {vr(V_NB+16*t)}", [V_NB + 16 * t], [X + 2]))
    P.add(V(f"v_add_u32 {vr(X+4)}, s{S_XPART}, {vr(V_LANE8)}", [V_LANE8], [X + 4]))
    P.add(V(f"v_add_u32 {vr(X+5)}, s{S_M0}, {vr(V_LANE8)}", [V_LANE8], [X + 5]))
    P.add(Ins(f"ds_write_b64 {vr(X+4)}, {vr(X+2,2)}", "lds", {f"v{X+4}", f"v{X+2}", f"v{X+3}"}, ()))
    P.add(V(f"v_add_u32 {vr(X+8)}, s{S_XPART}, {vr(V_LANE16)}", [V_LANE16], [X + 8]))
    P.add(V(f"v_add_u32 {vr(X+9)}, s{S_M0}, {vr(V_LANE16)}", [V_LANE16], [X + 9]))
    send = [2 * (1 - par), 2 * (1 - par) + 1]
    keep = [2 * par, 2 * par + 1]
    def koff(u): return (u % 4) * 1024 + (16384 if u >= 4 else 0)
    def payload(u):
        a0 = A_O + 64 * t + 16 * send[u // 4] + 4 * (u % 4)
        return Ins(f"ds_write_b128 {vr(X+9)}, {ar(a0,4)} offset:{koff(u)}", "lds", rs("a", a0, 4) | {f"v{X+9}"}, ())
    for u in range(1, 8): P.add(payload(u))
    P.lgkm0()
    P.add(other("s_barrier"))
    P.add(Ins(f"ds_read_b64 {vr(X+6,2)}, {vr(X+5)}", "lds", {f"v{X+5}"}, {f"v{X+6}", f"v{X+7}"}))
    P.lgkm0()
    P.add(payload(0))
    P.add(V(f"v_min_f32 {vr(X)}, {vr(X+2)}, {vr(X+6)}", [X + 2, X + 6], [X]))
    P.add(V(f"v_sub_f32 {vr(X+1)}, {vr(X)}, {vr(X+2)}", [X, X + 2], [X + 1]))
    P.add(V(f"v_sub_f32 {vr(X)}, {vr(X)}, {vr(X+6)}", [X, X + 6], [X]))
    P.add(V(f"v_exp_f32 {vr(X+1)}, {vr(X+1)}", [X + 1], [X + 1], trans=True))
    P.add(V(f"v_exp_f32 {vr(X)}, {vr(X)}", [X], [X], trans=True))
    P.add(V(f"v_mul_f32 {vr(X+3)}, {vr(X+3)}, {vr(X+1)}", [X + 3, X + 1], [X + 3]))
    P.add(V(f"v_fma_f32 {vr(X+3)}, {vr(X+7)}, {vr(X)}, {vr(X+3)}", [X + 7, X, X + 3], [X + 3]))
    P.add(V(f"v_rcp_f32 {vr(X+3)}, {vr(X+3)}", [X + 3], [X + 3], trans=True))
    P.add(V(f"v_mul_f32 {vr(X+4)}, {vr(X+3)}, {vr(X)}", [X + 3, X], [X + 4]))
    P.add(V(f"v_mul_f32 {vr(X+2)}, {vr(X+3)}, {vr(X+1)}", [X + 3, X + 1], [X + 2]))
    P.add(V(f"v_mov_b32 {vr(X+5)}, {vr(X+4)}", [X + 4], [X + 5]))
    P.add(V(f"v_mov_b32 {vr(X+3)}, {vr(X+2)}", [X + 2], [X + 3]))
    P.add(V(f"v_bfe_u32 {vr(X)}, {vr(V_LANE16)}, 4, 5", [V_LANE16], [X]))
    P.add(V(f"v_bfe_u32 {vr(X+1)}, {vr(V_LANE16)}, 9, 1", [V_LANE16], [X + 1]))
    P.add(V(f"v_and_b32 {vr(X+6)}, 7, {vr(X)}", [X], [X + 6]))
    P.add(V(f"v_xor_b32 {vr(X+6)}, {vr(X+6)}, {vr(X+1)}", [X + 6, X + 1], [X + 6]))
    P.add(V(f"v_lshlrev_b32 {vr(X)}, 7, {vr(X)}", [X], [X]))
    P.add(V(f"v_add_u32 {vr(X)}, s{S_M0}, {vr(X)}", [X], [X]))
    for u in range(4):
        P.add(V(f"v_xor_b32 {vr(V_T+u)}, {2*u}, {vr(X+6)}", [X + 6], [V_T + u]))
        P.add(V(f"v_lshl_add_u32 {vr(V_T+u)}, {vr(V_T+u)}, 4, {vr(X)}", [V_T + u, X], [V_T + u]))
    P.add(V(f"v_bfe_u32 {vr(X)}, {vr(V_LANE16)}, 7, 3", [V_LANE16], [X]))
    P.add(V(f"v_bfe_u32 {vr(X+1)}, {vr(V_LANE16)}, 4, 3", [V_LANE16], [X + 1]))
    P.add(V(f"v_xor_b32 {vr(X+1)}, {vr(X+1)}, {vr(X)}", [X, X + 1], [X + 1]))
    P.add(V(f"v_lshlrev_b32 {vr(X)}, 8, {vr(X)}", [X], [X]))
    P.add(V(f"v_lshl_add_u32 {vr(V_TC)}, {vr(X+1)}, 4, {vr(X)}", [X, X + 1], [V_TC]))
    P.lgkm0()
    P.add(other("s_barrier"))
    for u in range(8):
        P.add(Ins(f"ds_read_b128 {vr(V_S+4*u,4)}, {vr(X+8)} offset:{koff(u)}", "lds", {f"v{X+8}"}, rs("v", V_S + 4 * u, 4)))
    P.lgkm0()
    P.add(other("s_barrier"))
    u = 0
    for di, dt in enumerate(keep):
        for kp in range(2):
            pack_unit(P, t, dt, kp, X + 2, V_KF + 12 * (u % 2), V_T + u, addsrc=V_S + 16 * di + 8 * kp, scale2=X + 4)
            u += 1
    P.lgkm0()
    for a in range(4):
        P.add(Ins(f"ds_read_b128 {vr(V_FREE+4*a,4)}, {vr(X+9)} offset:{a*1024}", "lds", {f"v{X+9}"}, rs("v", V_FREE + 4 * a, 4)))
    P.add(salu(f"s_add_u32 s{S_SO+2}, s{S_QH}, {128*par}")); P.add(salu(f"s_add_u32 s{S_SO+3}, s{S_QH}, {128*par+4096}"))
    P.lgkm0()
    nt = (" " + OPT["stf"].replace("_", " ")) if OPT["stf"] else ""
    return [[Ins(f"buffer_store_dwordx4 {vr(V_FREE+4*a,4)}, {vr(V_TC)}, s[{SRD_O}:{SRD_O+3}], s{S_SO+2+a//2} offen offset:{(a%2)*2048}{nt}", "vmem",
                 rs("v", V_FREE + 4 * a, 4) | {f"v{V_TC}"}, (), 8, tag="store")] for a in range(4)]

def item_code(P, typ, par):
    tag = f"{typ}{par}" if typ == "A" else "B"
    if typ == "A":
        ring = [(0, 0), (0, 1), (0, 2), (1, 0), (1, 1)] if par == 0 else [(0, 0), (0, 1), (1, 0), (1, 1), (1, 2)]
        steps = [(0, s, t) for s, t in ring] + [(1, s, t) for s, t in ring]
    else:
        steps = [(0, 0, 0), (0, 0, 1), (0, 1, 0), (0, 1, 1)]
    P.add(label(f"L_item_{tag}"))
    stamp(P, ("item", 2))
    item_begin(P, typ)
    P.add(qk_group(typ, 0, 0))
    stamp(P, ("item", 3))
    P.add(label(f"L_loop_{tag}"))
    assert not P.ldsq
    build_body(P, typ, steps)
    P.ldsq = []
    P.add(salu(f"s_and_b32 s{S_T2}, s{S_N}, 7"))
    P.add(salu(f"s_cmp_lg_u32 s{S_T2}, 0"))
    P.add(other(f"s_cbranch_scc1 L_loop_{tag}"))
    stamp(P, ("item", 4))
    r, sub, t = steps[-1]
    P.add(pv_group(t, (len(steps) - 1) % 2))
    P.add(other(f"s_waitcnt vmcnt({8 if typ == 'A' else 0})"))
    P.lgkm0()
    P.add(salu(f"s_sub_u32 s{S_VCUR}, s{S_VCUR}, s{S_DELTA}"))
    sq = S_QA if typ == "A" else S_QB
    if typ == "A":
        st_h = epilogue_H(P, par)
    else:
        P.add(other("s_barrier")); st_h = []
    allp = list(range(8))
    P.add(image_addrs())
    P.add(weave(pack_tile(0), st_h))
    image_readback(P, allp, V_KF)
    P.add(salu(f"s_mov_b32 s{S_SO}, s{sq}")); P.add(salu(f"s_add_u32 s{S_SO+1}, s{sq}, 4096"))
    P.add(weave(pack_tile(1), image_stores(allp, V_KF, S_SO, S_SO + 1)))
    image_readback(P, allp, V_VF)
    P.add(salu(f"s_add_u32 s{S_SO+2}, s{sq}, 8192")); P.add(salu(f"s_add_u32 s{S_SO+3}, s{sq}, 12288"))
    P.add(salu(f"s_cmp_lg_u32 s{S_ITEM}, 0"))
    P.add(other(f"s_cbranch_scc1 L_last_{tag}"))
    ntyp = "B" if typ == "A" else "A"
    P.add(q_setup_pre())
    sts = image_stores(allp, V_VF, S_SO + 2, S_SO + 3)
    nn = 3 if ntyp == "A" else 2
    for t in range(nn):
        hd, body = q_setup_tile(ntyp, t)
        P.add(hd)
        ent = pieces_of(sum(entry_issue(), []) + kv_next())
        mine = sts[t * 8 // nn:(t + 1) * 8 // nn]
        ex = []
        for i in range(8):
            if i < len(mine): ex.append(mine[i])
            ex.append(ent[i])
        P.add(weave(body, ex, 0.0, 0.95))
    stamp(P, ("item", 5))
    P.add(salu(f"s_mov_b32 s{S_ITEM}, 1"))
    P.add(other("s_branch L_go_B" if typ == "A" else "s_branch L_go_A"))
    P.add(label(f"L_last_{tag}"))
    P.ldsq = [(rs("v", V_VF, 32), None)]
    P.add(sum(image_stores(allp, V_VF, S_SO + 2, S_SO + 3), []))
    stamp(P, ("item", 5))
    P.add(other("s_branch L_fin"))

def prologue(P):
    P.add(salu(f"s_cmp_ge_u32 s{S_WG}, 256")); P.add(other("s_cbranch_scc1 L_done"))
    stamp(P, 0)
    if OPT["stamp"] and not OPT["barstat"]:
        P.add(other("s_memrealtime s[88:89]")); P.add(other("s_waitcnt lgkmcnt(0)"))
    P.add(other("s_load_dwordx4 s[4:7], s[0:1], 0")); P.add(other("s_load_dwordx4 s[8:11], s[0:1], 16"))
    X = V_X
    lane, key, h = X, X + 1, X + 2
    P.add(V(f"v_lshrrev_b32 {vr(X+3)}, 6, v0", [0], [X + 3]))
    P.add(V(f"v_and_b32 {vr(lane)}, 63, v0", [0], [lane]))
    P.add(Ins(f"v_readfirstlane_b32 s{S_W}, {vr(X+3)}", "rfl", {f"v{X+3}"}, {f"s{S_W}"}))
    A = lambda text, rd, wr: P.add(V(text, rd, wr))
    rr, pp = X + 4, X + 5
    A(f"v_lshrrev_b32 {vr(rr)}, 4, {vr(lane)}", [lane], [rr])
    A(f"v_and_b32 {vr(pp)}, 15, {vr(lane)}", [lane], [pp])
    A(f"v_lshlrev_b32 {vr(X+6)}, 8, {vr(rr)}", [rr], [X + 6])
    A(f"v_xor_b32 {vr(X+7)}, {vr(pp)}, {vr(rr)}", [pp, rr], [X + 7])
    for a in range(4):
        A(f"v_xor_b32 {vr(X+8)}, {4*a}, {vr(X+7)}", [X + 7], [X + 8])
        A(f"v_lshl_add_u32 {vr(V_DK+a)}, {vr(X+8)}, 4, {vr(X+6)}", [X + 8, X + 6], [V_DK + a])
    A(f"v_lshlrev_b32 {vr(X+7)}, 2, {vr(rr)}", [rr], [X + 7])
    A(f"v_xor_b32 {vr(X+7)}, {vr(pp)}, {vr(X+7)}", [pp, X + 7], [X + 7])
    A(f"v_lshl_add_u32 {vr(V_DV)}, {vr(X+7)}, 4, {vr(X+6)}", [X + 7, X + 6], [V_DV])
    S = lambda t: P.add(salu(t))
    S(f"s_and_b32 s{S_T0}, s{S_WG}, 7"); S(f"s_lshr_b32 s{S_T1}, s{S_WG}, 4"); S(f"s_lshl_b32 s{S_T1}, s{S_T1}, 3")
    S(f"s_add_u32 s{S_T0}, s{S_T0}, s{S_T1}")
    S(f"s_lshr_b32 s{S_ROLE}, s{S_WG}, 3"); S(f"s_and_b32 s{S_ROLE}, s{S_ROLE}, 1")
    S(f"s_lshl_b32 s{S_KVN}, s{S_T0}, 18"); S(f"s_lshl_b32 s{S_W4K}, s{S_W}, 12"); S(f"s_mov_b32 s{S_M0}, s{S_W4K}")
    S(f"s_mov_b32 s{S_KV}, s{S_W4K}")
    S(f"s_lshl_b32 s{S_T0}, s{S_T0}, 1")
    S(f"s_add_u32 s{S_T1}, s{S_T0}, s{S_ROLE}"); S(f"s_mul_i32 s{S_T1}, s{S_T1}, 147456")
    S(f"s_lshl_b32 s{S_T2}, s{S_W}, 14"); S(f"s_add_u32 s{S_QA}, s{S_T1}, s{S_T2}")
    S(f"s_lshr_b32 s{S_QH}, s{S_W}, 1"); S(f"s_lshl_b32 s{S_QH}, s{S_QH}, 13"); S(f"s_add_u32 s{S_QH}, s{S_QH}, s{S_T1}")
    S(f"s_add_u32 s{S_QH}, s{S_QH}, {8*8192}")
    S(f"s_xor_b32 s{S_T1}, s{S_ROLE}, 1"); S(f"s_add_u32 s{S_T1}, s{S_T0}, s{S_T1}"); S(f"s_mul_i32 s{S_T1}, s{S_T1}, 147456")
    S(f"s_add_u32 s{S_QB}, s{S_T1}, s{S_T2}"); S(f"s_add_u32 s{S_QB}, s{S_QB}, {10*8192}")
    c = (128 ** -0.5) * math.log2(math.e)
    S(f"s_mov_b32 s{S_C}, 0x{f32bits(c):08x}"); S(f"s_mov_b32 s{S_C2}, s{S_C}"); S(f"s_mov_b32 s{S_C2+1}, s{S_C}")
    S(f"s_mov_b32 s{S_HI}, 0x{f32bits(65536.0):08x}")
    S(f"s_mov_b32 s{S_MASK}, 0xffff0000")
    S("s_mov_b32 s86, 0"); S("s_mov_b32 s87, 0")
    S(f"s_mov_b32 s{S_HI+1}, {sum(1 << i for i in (2, 3, 4, 5, 6, 10))}")
    S(f"s_mov_b32 s{S_HI+2}, {sum(1 << i for i in (2, 3, 4, 5, 10))}")
    S(f"s_mov_b32 s{S_HI+3}, 0x0001")
    for r_ in (S_N, S_RB, S_ITEM, S_DELTA, S_KCUR, S_VCUR): S(f"s_mov_b32 s{r_}, 0")
    S(f"s_mov_b32 s{S_E1+3}, 0x20000"); S(f"s_mov_b32 s{S_E2+3}, 0x20000")
    S(f"s_mov_b32 s{SRD_O+2}, {QBYTES}"); S(f"s_mov_b32 s{SRD_O+3}, 0x20000")
    P.add(other("s_waitcnt lgkmcnt(0)"))
    S(f"s_mov_b32 s{SRD_O}, s{S_PO}"); S(f"s_mov_b32 s{SRD_O+1}, s{S_PO+1}")
    S(f"s_add_u32 s{S_PK}, s{S_PK}, s{S_KVN}"); S(f"s_addc_u32 s{S_PK+1}, s{S_PK+1}, 0")
    S(f"s_add_u32 s{S_PV}, s{S_PV}, s{S_KVN}"); S(f"s_addc_u32 s{S_PV+1}, s{S_PV+1}, 0")
    def qlist(typ):
        if typ == "A":
            S(f"s_mov_b32 s{S_Q2}, s{S_QA}"); S(f"s_add_u32 s{S_Q2+1}, s{S_QA}, 8192"); S(f"s_mov_b32 s{S_Q2+2}, s{S_QH}"); S(f"s_mov_b32 s{S_QLEFT}, 3")
        else:
            S(f"s_mov_b32 s{S_Q2}, s{S_QB}"); S(f"s_add_u32 s{S_Q2+1}, s{S_QB}, 8192"); S(f"s_mov_b32 s{S_Q2+2}, s{S_QB}"); S(f"s_mov_b32 s{S_QLEFT}, 2")
    def rest():
        A(f"v_and_b32 {vr(key)}, 31, {vr(lane)}", [lane], [key])
        A(f"v_lshrrev_b32 {vr(h)}, 5, {vr(lane)}", [lane], [h])
        A(f"v_lshlrev_b32 {vr(V_LANE8)}, 3, {vr(lane)}", [lane], [V_LANE8])
        A(f"v_lshlrev_b32 {vr(V_LANE16)}, 4, {vr(lane)}", [lane], [V_LANE16])
        A(f"v_lshlrev_b32 {vr(X+3)}, 8, {vr(key)}", [key], [X + 3])
        A(f"v_and_b32 {vr(X+4)}, 15, {vr(key)}", [key], [X + 4])
        A(f"v_xor_b32 {vr(X+4)}, {vr(X+4)}, {vr(h)}", [X + 4, h], [X + 4])
        for s in range(8):
            A(f"v_xor_b32 {vr(X+5)}, {2*s}, {vr(X+4)}", [X + 4], [X + 5])
            A(f"v_lshl_add_u32 {vr(V_KA+s)}, {vr(X+5)}, 4, {vr(X+3)}", [X + 5, X + 3], [V_KA + s])
        A(f"v_and_b32 {vr(X+5)}, 15, {vr(key)}", [key], [X + 5])
        A(f"v_lshlrev_b32 {vr(X+6)}, 8, {vr(X+5)}", [X + 5], [X + 6])
        A(f"v_bfe_u32 {vr(X+7)}, {vr(key)}, 4, 1", [key], [X + 7])
        A(f"v_lshl_add_u32 {vr(X+6)}, {vr(X+7)}, 14, {vr(X+6)}", [X + 7, X + 6], [X + 6])
        A(f"v_add_u32 {vr(V_QBASE)}, s{S_W4K}, {vr(X+6)}", [X + 6], [V_QBASE])
        A(f"v_and_b32 {vr(X+6)}, 3, {vr(key)}", [key], [X + 6])
        A(f"v_lshlrev_b32 {vr(X+6)}, 2, {vr(X+6)}", [X + 6], [X + 6])
        P.add(valu(f"v_cmp_ne_u32 vcc, 0, {vr(X+7)}", {f"v{X+7}"}, {"vcc"}))
        P.add(valu(f"v_cndmask_b32 {vr(X+5)}, {vr(X+5)}, {vr(X+6)}, vcc", {f"v{X+5}", f"v{X+6}", "vcc"}, {f"v{X+5}"}))
        A(f"v_xor_b32 {vr(V_QXOR)}, {vr(X+5)}, {vr(h)}", [X + 5, h], [V_QXOR])
        r_, cq, dsel = X + 4, X + 5, X + 6
        A(f"v_bfe_u32 {vr(r_)}, {vr(lane)}, 2, 2", [lane], [r_])
        A(f"v_and_b32 {vr(cq)}, 3, {vr(lane)}", [lane], [cq])
        A(f"v_bfe_u32 {vr(dsel)}, {vr(lane)}, 4, 1", [lane], [dsel])
        A(f"v_lshl_add_u32 {vr(X+7)}, {vr(h)}, 2, {vr(r_)}", [h, r_], [X + 7])
        A(f"v_lshlrev_b32 {vr(X+7)}, 8, {vr(X+7)}", [X + 7], [X + 7])
        A(f"v_lshl_add_u32 {vr(X+7)}, {vr(dsel)}, 5, {vr(X+7)}", [dsel, X + 7], [X + 7])
        A(f"v_lshl_add_u32 {vr(X+7)}, {vr(cq)}, 3, {vr(X+7)}", [cq, X + 7], [X + 7])
        A(f"v_add_u32 {vr(X+7)}, 16384, {vr(X+7)}", [X + 7], [X + 7])
        for dt in range(4):
            A(f"v_xor_b32 {vr(X+8)}, {dt}, {vr(r_)}", [r_], [X + 8])
            A(f"v_lshl_add_u32 {vr(V_VA+dt)}, {vr(X+8)}, 6, {vr(X+7)}", [X + 8, X + 7], [V_VA + dt])
        for i in range(32):
            P.add(V(f"v_mov_b32 {vr(V_VF+i)}, 0", [], [V_VF + i]))
    S(f"s_cmp_lg_u32 s{S_ROLE}, 0"); P.add(other("s_cbranch_scc1 L_pro_B"))
    for typ in ("A", "B"):
        if typ == "B": P.add(label("L_pro_B"))
        nq = 3 if typ == "A" else 2
        qlist(typ)
        for e in range(2):
            P.add(set_q(S_Q2 + e)); P.add(sum(entry_issue(), []))
        rest()
        P.add(q_setup_pre())
        later = []
        if typ == "A":
            later.append(set_q(S_Q2 + 2) + sum(entry_issue(), []))
        later.append(set_kv() + sum(entry_issue(), []) + kv_next())
        later.append(sum(entry_issue(), []) + kv_next())
        for t in range(nq):
            P.add(other(f"s_waitcnt vmcnt({8 if t < 2 else 8})"))
            hd, body = q_setup_tile(typ, t)
            P.add(hd)
            if t < len(later):
                ops = later[t]
                P.add(weave(body, pieces_of(ops), 0.0, 0.9))
            else:
                P.add(body)
        qlist("B" if typ == "A" else "A")
        P.add(other("s_waitcnt vmcnt(8)"))
        P.add(other("s_barrier"))
        stamp(P, 1)
        P.add(other(f"s_branch L_go_{typ}"))
    P.add(label("L_go_A"))
    S(f"s_and_b32 s{S_T0}, s{S_W}, 1"); S(f"s_cmp_lg_u32 s{S_T0}, 0")
    P.add(other("s_cbranch_scc1 L_item_A1")); P.add(other("s_branch L_item_A0"))
    P.add(label("L_go_B")); P.add(other("s_branch L_item_B"))

def main():
    P = Prog()
    prologue(P)
    item_code(P, "A", 0)
    item_code(P, "A", 1)
    item_code(P, "B", 0)
    P.add(label("L_fin"))
    stamp_out(P)
    P.add(label("L_done")); P.add(other("s_endpgm"))
    for blk in outline:
        P.add(blk)
    for st, ro, rt in stubs:
        P.add(label(st)); P.add(other(f"s_call_b64 s[{S_RET}:{S_RET+1}], {ro}")); P.add(other(f"s_branch {rt}"))
    used = sorted(set(ro for _, ro, _ in stubs))
    for ro in used:
        _, _, t, sb = ro.split("_")
        slow_routine(P, int(t), int(sb))
    head = open("standalone__gqa_softmax__near_ridge.s.ref").read().split("; @launch")[0]
    out = head + "; @launch grid=(256,1,1) block=(256,1,1) lds=163840\n"
    out += '.amdgcn_target "amdgcn-amd-amdhsa--gfx950"\n.text\n.globl %s\n.p2align 8\n.type %s,@function\n%s:\n' % (NAME, NAME, NAME)
    out += P.text() + "\n"
    out += '''.section .rodata,"a"
.p2align 6
.amdhsa_kernel %s
  .amdhsa_next_free_vgpr 512
  .amdhsa_next_free_sgpr 100
  .amdhsa_accum_offset 256
  .amdhsa_group_segment_fixed_size 0
  .amdhsa_kernarg_size 48
  .amdhsa_user_sgpr_count 2
  .amdhsa_user_sgpr_kernarg_segment_ptr 1
  .amdhsa_system_sgpr_workgroup_id_x 1
.end_amdhsa_kernel
''' % NAME
    open(sys.argv[1] if len(sys.argv) > 1 else "k2.s", "w").write(out)

main()
```

```python
import sys, math, struct

OPT = dict(
    ld_nt=True, st_nt=False, ldf='nt', stf='',
    no_sm=False, no_lds=False, no_exp=False, no_chk=False, no_dma=False, no_mfma=False, stamp=False, no_bar=False, no_sc=False, barstat=0, dbg=False,
)
for a in sys.argv[2:]:
    k, v = a.split("=")
    OPT[k] = type(OPT[k])(int(v)) if not isinstance(OPT[k], str) else v

NAME = "standalone__gqa_softmax__near_ridge_kernel"
QBYTES = 37748736
KBYTES = 33554432
SLOT = 32768

def f32bits(x):
    return struct.unpack("<I", struct.pack("<f", x))[0]

V_Q0 = 0
V_NB = 32
V_FREE = 80
V_KF = 96
V_VF = 128
V_S = 160
V_P = 192
V_T = 208
V_L = 219
V_TS = 222
V_KA = 223
V_VA = 231
V_DK = 235
V_DV = 239
V_QBASE = 240
V_QXOR = 241
V_X = 242
V_TC = 253
V_LANE8 = 254
V_LANE16 = 255
A_O = 0
A_Q1 = 192
S_WG, S_W = 2, 3
S_PQ, S_PK, S_PV, S_PO = 4, 6, 8, 10
S_E1, S_E2, SRD_O = 12, 16, 24
S_O1, S_O2 = 20, 21
S_C = 28
S_LO, S_RANGE = 29, 22
S_RET = 30
S_N = 32
S_KV = 33
S_M0 = 34
S_RB = 35
S_DELTA = 36
S_QA = 37
S_QH = 38
S_QB = 39
S_KVN = 40
S_QPOS = 41
S_QLEFT = 42
S_ROLE = 43
S_ITEM = 44
S_T0, S_T1, S_T2 = 45, 46, 47
S_Q2 = 48
S_KCUR, S_VCUR = 51, 52
S_XME, S_XPART = 53, 54
S_W4K = 55
S_HI = 56
S_P0, S_P1, S_P2 = 60, 61, 62
S_MASK = 63
S_MSK1 = 23
S_SO = 96
S_C2 = 94
S_RHI, S_RSPAN = 40, 41
S_DRL, S_DRG, S_DRK, S_IMG1 = 42, 53, 61, 62
S_STAMP = 64

def vr(b, n=1):
    return f"v{b}" if n == 1 else f"v[{b}:{b+n-1}]"
def ar(b, n=1):
    return f"a{b}" if n == 1 else f"a[{b}:{b+n-1}]"
def rs(p, b, n):
    return {f"{p}{i}" for i in range(b, b + n)}

class Ins:
    __slots__ = ("text", "kind", "rd", "wr", "cost", "srcc", "tag", "skip", "likely")
    def __init__(self, text, kind, rd=(), wr=(), cost=4, srcc=(), tag=None):
        self.text, self.kind, self.rd, self.wr, self.cost, self.srcc, self.tag = text, kind, set(rd), set(wr), cost, set(srcc), tag
        self.skip = False
        self.likely = True

def R(kind, b, n=1):
    return (vr(b, n) if kind == "v" else ar(b, n)), rs(kind, b, n)

def mfma(dk, d, ak, a, bk, b, czero=False, cblk=None):
    dt, ds_ = R(dk, d, 16); at, as_ = R(ak, a, 4); bt, bs_ = R(bk, b, 4)
    if cblk is not None:
        c, cs = R(dk, cblk, 16)
    elif czero:
        c, cs = "0", set()
    else:
        c, cs = dt, ds_
    return Ins(f"v_mfma_f32_32x32x16_bf16 {dt}, {at}, {bt}, {c}", "mfma", as_ | bs_ | cs, ds_, 8, srcc=cs)
def valu(text, rd, wr, trans=False, cost=None):
    return Ins(text, "trans" if trans else "valu", rd, wr, cost or (8 if trans else 4))
def salu(text, rd=(), wr=()):
    return Ins(text, "salu", rd, wr, 4)
def other(text, cost=4):
    return Ins(text, "other", (), (), cost)
def label(name):
    return Ins(name + ":", "label", (), (), 0)
def V(text, rd, wr, **kw):
    return valu(text, {f"v{r}" for r in rd}, {f"v{w}" for w in wr}, **kw)
def perm(a, b):
    return Ins(f"v_permlane32_swap_b32 {vr(a)}, {vr(b)}", "perm", {f"v{a}", f"v{b}"}, {f"v{a}", f"v{b}"})

class Prog:
    def __init__(self):
        self.ins = []
        self.ldsq = []
    def states_back(self, inrun=False):
        d = 0
        for i in reversed(self.ins):
            if i.kind == "label":
                inrun = False
                continue
            yield i, d
            if not i.skip:
                inrun = False
            if i.skip and not inrun:
                continue
            if i.text.startswith("s_nop"):
                d += int(i.text.split()[1]) + 1
            else:
                d += 1
            if d > 24:
                return
    def need(self, x):
        n = 0
        for p, d in self.states_back(x.skip):
            req = 0
            if p.kind == "mfma":
                if x.kind == "mfma":
                    if p.wr & (x.rd - x.srcc): req = 12
                    elif (p.wr & x.srcc) and (p.wr != x.srcc): req = 10
                    elif (p.wr & x.wr) and not (p.wr & x.srcc): req = 12
                elif x.kind in ("valu", "trans", "lds", "vmem", "perm"):
                    if p.wr & (x.rd | x.wr): req = 12
                    if x.kind in ("valu", "trans", "perm") and (p.srcc & x.wr): req = max(req, 7)
            elif p.kind in ("valu", "trans", "perm"):
                if x.kind == "mfma" and (p.wr & x.rd): req = 2
                if x.kind == "perm" and (p.wr & x.rd): req = 2
                if p.kind == "perm" and x.kind in ("valu", "trans") and (p.wr & x.rd): req = max(req, 2)
                if p.kind == "trans" and x.kind in ("valu", "perm") and (p.wr & x.rd): req = max(req, 1)
                if x.kind in ("valu", "trans") and any(r.startswith("s") or r == "vcc" for r in (p.wr & x.rd)): req = max(req, 2)
                if x.kind == "vmem" and any(r.startswith("s") for r in (p.wr & x.rd)): req = max(req, 5)
                if x.kind == "rfl" and (p.wr & x.rd): req = max(req, 1)
            elif p.kind == "rfl":
                if x.kind in ("valu", "trans") and (p.wr & x.rd): req = 2
                if x.kind == "vmem" and (p.wr & x.rd): req = 5
                if x.kind == "salu" and (p.wr & x.rd): req = 2
            elif p.kind == "vmem" and p.tag == "store":
                if x.kind in ("valu", "trans", "perm", "lds") and (p.rd & x.wr): req = 2
            elif p.kind == "salu" and "m0" in p.wr:
                if x.kind == "vmem" and "m0" in x.rd: req = 1
            if req > d:
                n = max(n, req - d)
        return n
    def add(self, x):
        if isinstance(x, (list, tuple)):
            for y in x: self.add(y)
            return
        if x.text == "s_waitcnt lgkmcnt(0)":
            self.ins.append(x); self.ldsq = []
            return
        if x.kind in ("mfma", "valu", "trans", "vmem", "perm", "lds"):
            use = x.rd | x.wr
            last = -1
            for i, (dst, tg) in enumerate(self.ldsq):
                if dst & use: last = i
            if last >= 0 and self.ldsq[last][1] is not None and x.kind == "mfma":
                tg = self.ldsq[last][1]
                while last + 1 < len(self.ldsq) and self.ldsq[last + 1][1] == tg: last += 1
            if last >= 0:
                n = len(self.ldsq) - 1 - last
                n = min(n, 15)
                self.ins.append(other(f"s_waitcnt lgkmcnt({n})"))
                self.ldsq = self.ldsq[len(self.ldsq) - n:] if n else []
        n = self.need(x)
        while n > 0:
            k = min(n, 16)
            self.ins.append(other(f"s_nop {k-1}", 4 * k))
            self.ins[-1].skip = x.skip
            n -= k
        self.ins.append(x)
        if x.kind == "lds":
            self.ldsq.append((set(x.wr), x.tag))
    def lgkm0(self):
        self.add(other("s_waitcnt lgkmcnt(0)"))
    def text(self):
        return "\n".join(i.text if i.kind == "label" else "    " + i.text for i in self.ins)

class L:
    def __init__(self): self.ins = []
    def add(self, x):
        if isinstance(x, (list, tuple)):
            for y in x: self.add(y)
        else: self.ins.append(x)
    def lgkm0(self): self.add(other("s_waitcnt lgkmcnt(0)"))

def weave(stream, extras, lead=0.05, end=0.95):
    tot = sum(x.cost for x in stream) or 1
    out = []; acc = 0; k = 0; n = len(extras)
    for x in stream:
        while k < n and acc >= tot * (lead + (end - lead) * k / max(1, n)):
            out += extras[k]; k += 1
        out.append(x); acc += x.cost
    while k < n:
        out += extras[k]; k += 1
    return out

def cond(ops, likely=False):
    for o in ops:
        o.skip = True; o.likely = likely
    return ops
lbl_n = [0]
def newlbl(p="L"):
    lbl_n[0] += 1
    return f"{p}{lbl_n[0]}"

def q_reg(typ, t):
    return ("v", V_Q0) if t == 0 else ("a", A_Q1 + 32 * (t - 1))

def qk_group(typ, t, sb):
    qk, qb = q_reg(typ, t)
    return [mfma("v", V_S + 16 * sb, "v", V_KF + 4 * s, qk, qb + 4 * s, cblk=(V_NB + 16 * t if s == 0 else None)) for s in range(8)]

def pv_group(t, pb):
    out = []
    for ks in range(2):
        for dt in range(4):
            out.append(mfma("a", A_O + 64 * t + 16 * dt, "v", V_VF + 8 * dt + 4 * ks, "v", V_P + 8 * pb + 4 * ks))
    return out

def k_load(s, sub):
    return Ins(f"ds_read_b128 {vr(V_KF+4*s,4)}, {vr(V_KA+s)} offset:{sub*8192}", "lds", {f"v{V_KA+s}"}, rs("v", V_KF + 4 * s, 4), 6, tag="K")

def v_load(dt, ks, e4, sub):
    d = V_VF + 8 * dt + 4 * ks + 2 * e4
    return Ins(f"ds_read_b64_tr_b16 {vr(d,2)}, {vr(V_VA+dt)} offset:{sub*8192+ks*4096+e4*2048}", "lds", {f"v{V_VA+dt}"}, rs("v", d, 2), 4, tag="V")

def softmax_ops(t, sb, with_cmp=True, sub=None):
    S = V_S + 16 * sb; P = V_P + 8 * sb; T = V_T; ts = V_TS
    ops = []; tail = []
    for k in range(19):
        if k < 16:
            if sub is not None:
                ops.append(V(f"v_sub_f32 {vr(T+k%8)}, {vr(S+k)}, {vr(sub)}", [S + k, sub], [T + k % 8]))
                ops.append(V(f"v_exp_f32 {vr(T+k%8)}, {vr(T+k%8)}", [T + k % 8], [T + k % 8], trans=True))
            else:
                ops.append(V(f"v_exp_f32 {vr(T+k%8)}, {vr(S+k)}", [S + k], [T + k % 8], trans=True))
        r = k - 2
        if 1 <= r < 16:
            if r == 1:
                ops.append(V(f"v_add_f32 {vr(ts)}, {vr(T)}, {vr(T+1)}", [T, T + 1], [ts]))
            else:
                ops.append(V(f"v_add_f32 {vr(ts)}, {vr(ts)}, {vr(T+r%8)}", [ts, T + r % 8], [ts]))
            if r % 2 == 1:
                a, b = T + (r - 1) % 8, T + r % 8
                c = V(f"v_cvt_pk_bf16_f32 {vr(P+r//2)}, {vr(a)}, {vr(b)}", [a, b], [P + r // 2], cost=5)
                (tail if r >= 11 else ops).append(c)
    if with_cmp:
        ops.append(V(f"v_subrev_u32 {vr(V_TC)}, s{S_LO}, {vr(ts)}", [ts], [V_TC]))
        ops.append(valu(f"v_cmp_lt_u32 vcc, s{S_RANGE}, {vr(V_TC)}", {f"v{V_TC}"}, {"vcc"}))
    return ops + tail

stubs = []
site_n = [0]
def check_ops(t, sb):
    k = site_n[0]; site_n[0] += 1
    stubs.append((f"L_stub{k}", f"L_slow_{t}_{sb}", f"L_ret{k}"))
    return [other(f"s_cbranch_vccnz L_stub{k}", 10),
            label(f"L_ret{k}"),
            V(f"v_add_f32 {vr(V_L+t)}, {vr(V_L+t)}, {vr(V_TS)}", [V_L + t, V_TS], [V_L + t])]

def entry_issue():
    nt = (" " + OPT["ldf"].replace("_", " ")) if OPT["ldf"] else ""
    u = []
    for half, (e, so) in enumerate(((S_E1, S_O1), (S_E2, S_O2))):
        for a in range(4):
            vo = V_DK + a if half == 0 else V_DV
            x = []
            if a == 0:
                x.append(salu(f"s_mov_b32 m0, s{S_M0}", (), {"m0"}) if half == 0 else salu(f"s_add_u32 m0, s{S_M0}, 16384", (), {"m0"}))
            x.append(Ins(f"buffer_load_dwordx4 {vr(vo)}, s[{e}:{e+3}], s{so} offen offset:{a*1024}{nt} lds", "vmem", {f"v{vo}", "m0"}, (), 8))
            u.append(x)
    u.append([salu(f"s_add_u32 s{S_M0}, s{S_M0}, {SLOT}"),
              salu(f"s_cmp_ge_u32 s{S_M0}, s{S_RHI}"),
              salu(f"s_cselect_b32 s{S_P0}, s{S_RSPAN}, 0"),
              salu(f"s_sub_u32 s{S_M0}, s{S_M0}, s{S_P0}")])
    return u

def kv_next():
    return [salu(f"s_add_u32 s{S_O1}, s{S_O1}, 16384"), salu(f"s_add_u32 s{S_O2}, s{S_O2}, 16384")]

def set_q(sreg):
    return [salu(f"s_mov_b64 s[{S_E1}:{S_E1+1}], s[{S_PQ}:{S_PQ+1}]"), salu(f"s_mov_b64 s[{S_E2}:{S_E2+1}], s[{S_PQ}:{S_PQ+1}]"),
            salu(f"s_mov_b32 s{S_E1+2}, {QBYTES}"), salu(f"s_mov_b32 s{S_E2+2}, {QBYTES}"),
            salu(f"s_mov_b32 s{S_O1}, s{sreg}"), salu(f"s_add_u32 s{S_O2}, s{sreg}, 4096")]

def set_kv():
    return [salu(f"s_mov_b64 s[{S_E1}:{S_E1+1}], s[{S_PK}:{S_PK+1}]"), salu(f"s_mov_b64 s[{S_E2}:{S_E2+1}], s[{S_PV}:{S_PV+1}]"),
            salu(f"s_mov_b32 s{S_E1+2}, 262144"), salu(f"s_mov_b32 s{S_E2+2}, 262144"),
            salu(f"s_mov_b32 s{S_O1}, s{S_KV}"), salu(f"s_mov_b32 s{S_O2}, s{S_KV}")]

outline = []
def drain_read():
    A = V_X + 10
    return [V(f"v_add_u32 {vr(A)}, s{S_DRL}, {vr(V_LANE16)}", [V_LANE16], [A])] + \
           [Ins(f"ds_read_b128 {vr(V_FREE+4*a,4)}, {vr(A)} offset:{a*1024}", "other") for a in range(4)]

def drain_store(back):
    nt = (" " + OPT["stf"].replace("_", " ")) if OPT["stf"] else ""
    lodd = newlbl("L_do")
    def st(vo): return [Ins(f"buffer_store_dwordx4 {vr(V_FREE+4*a,4)}, {vr(vo(a))}, s[{SRD_O}:{SRD_O+3}], s{S_DRG} offen offset:{a*1024}{nt}", "other") for a in range(4)]
    return [other("s_waitcnt lgkmcnt(0)"), salu(f"s_bitcmp1_b32 s{S_DRK}, 0"), other(f"s_cbranch_scc1 {lodd}")] + \
           st(lambda a: V_DK + a) + [salu(f"s_add_u32 s{S_DRL}, s{S_DRL}, 16384"), salu(f"s_add_u32 s{S_DRG}, s{S_DRG}, 4096"),
                                     salu(f"s_add_u32 s{S_DRK}, s{S_DRK}, 1"), other(f"s_branch {back}"), label(lodd)] + \
           st(lambda a: V_DV) + [salu(f"s_mov_b32 s{S_DRL}, s{S_IMG1}"), salu(f"s_add_u32 s{S_DRG}, s{S_DRG}, 4096"),
                                 salu(f"s_add_u32 s{S_DRK}, s{S_DRK}, 1"), other(f"s_branch {back}")]

DR0 = 8
def special_site(typ):
    lo, lr = newlbl("L_sp"), newlbl("L_spr")
    nq2 = 2 if typ == "A" else 3
    blk = [label(lo)]
    def case(p, ops):
        l = newlbl("L_c")
        return [salu(f"s_cmp_lg_u32 s{S_N}, {p}"), other(f"s_cbranch_scc1 {l}")] + ops + [other(f"s_branch {lr}"), label(l)]
    blk += case(3, [salu(f"s_mov_b32 s{S_KV}, s{S_O1}")] + set_q(S_Q2))
    for j in range(1, nq2):
        blk += case(3 + j, set_q(S_Q2 + j))
    blk += case(3 + nq2, set_kv())
    lo_off = [salu(f"s_mov_b32 s{S_LO}, 0"), salu(f"s_mov_b32 s{S_RANGE}, s{S_HI}")]
    blk += case(2, lo_off)
    blk += case(10, [salu(f"s_mov_b32 s{S_LO}, 0"), salu(f"s_mov_b32 s{S_RANGE}, s{S_HI}")] + drain_read())
    blk += drain_read() + [other(f"s_branch {lr}")]
    outline.append(blk)
    msk = S_HI + 2 if typ == "A" else S_HI + 1
    return kv_next() + [salu(f"s_bitcmp1_b32 s{msk}, s{S_N}"), other(f"s_cbranch_scc1 {lo}", 10), label(lr)]

def extra_site(first):
    lo, lr = newlbl("L_ex"), newlbl("L_exr")
    blk = [label(lo)]
    if first:
        l = newlbl("L_c")
        blk += [salu(f"s_cmp_lt_u32 s{S_N}, 2"), other(f"s_cbranch_scc1 {l}")] + drain_store(lr) + [label(l)]
    blk += sum(entry_issue(), []) + kv_next() + [other(f"s_branch {lr}")]
    outline.append(blk)
    return [salu(f"s_bitcmp1_b32 s{S_HI+3 if not first else S_MSK1}, s{S_N}"), other(f"s_cbranch_scc1 {lo}", 10), label(lr)]

def rb_advance():
    return [salu(f"s_add_u32 s{S_RB}, s{S_RB}, {SLOT}"),
            salu(f"s_cmp_ge_u32 s{S_RB}, s{S_RHI}"),
            salu(f"s_cselect_b32 s{S_T1}, s{S_RSPAN}, 0"),
            salu(f"s_sub_u32 s{S_RB}, s{S_RB}, s{S_T1}")]

def rebase(base, n, sreg=S_DELTA):
    return [V(f"v_add_u32 {vr(base+i)}, s{sreg}, {vr(base+i)}", [base + i], [base + i]) for i in range(n)]

def build_body(P, typ, steps):
    n = len(steps)
    assert n % 2 == 0
    def st(k): return steps[k % n]
    groups = []
    for k in range(n):
        r, sub, t = st(k - 1)
        groups.append(dict(mf=pv_group(t, (k - 1) % 2), fixed=[[] for _ in range(8)], pre=[], kind="pv", k=k - 1))
        r, sub, t = st(k + 1)
        groups.append(dict(mf=qk_group(typ, t, (k + 1) % 2), fixed=[[] for _ in range(8)], pre=[], kind="qk", k=k + 1))
    ng = len(groups)
    def step_id(k):
        r, sub, t = st(k)
        return (k // n, r, sub)
    bar_groups = []
    for gi, g in enumerate(groups):
        j = g["k"]
        if g["kind"] == "pv" and step_id(j + 1) != step_id(j):
            nsub = st(j + 1)[1]
            if nsub == 0:
                g["pre"] += rebase(V_VA, 4)
            m = 0
            for ks in range(2):
                for dt in range(4):
                    g["fixed"][m] += [v_load(dt, ks, 0, nsub), v_load(dt, ks, 1, nsub)]
                    m += 1
        if g["kind"] == "qk" and step_id(j + 1) != step_id(j):
            nsub = st(j + 1)[1]
            if nsub == 1:
                for s in range(8):
                    g["fixed"][s] += [k_load(s, 1)]
            else:
                bar_groups.append((gi + 1) % ng)
                adv = rb_advance() + [salu(f"s_sub_u32 s{S_DELTA}, s{S_RB}, s{S_KCUR}"), salu(f"s_mov_b32 s{S_KCUR}, s{S_RB}"),
                                      salu(f"s_mov_b32 s{S_VCUR}, s{S_RB}"), salu(f"s_add_u32 s{S_N}, s{S_N}, 1")]
                g["fixed"][0] += adv[:4]; g["fixed"][1] += adv[4:]
                rb = rebase(V_KA, 8)
                for i in range(8):
                    g["fixed"][2 + i * 6 // 8] += [rb[i]]
    nx = 2
    for bi, gi in enumerate(bar_groups):
        g = groups[gi]
        if OPT["barstat"]:
            lw, lwr = newlbl("L_bw"), newlbl("L_bwr")
            outline.append([label(lw), other("s_waitcnt vmcnt(8)"), other(f"s_branch {lwr}")])
            cmpi = f"s_cmp_ge_u32 s{S_N}, 9" if OPT["barstat"] == 1 else f"s_cmp_lt_u32 s{S_N}, 9"
            g["pre"] = [other("s_waitcnt lgkmcnt(0)"), other("s_memtime s[88:89]"), other("s_waitcnt lgkmcnt(0)"),
                        salu(f"s_bitcmp1_b32 s{S_HI+3}, s{S_N}"), other(f"s_cbranch_scc1 {lw}", 10), other("s_waitcnt vmcnt(24)"), label(lwr),
                        other("s_memtime s[90:91]"), other("s_waitcnt lgkmcnt(0)"), other("s_barrier"), other("s_memtime s[92:93]"), other("s_waitcnt lgkmcnt(0)"),
                        salu("s_sub_u32 s88, s90, s88"), salu("s_sub_u32 s90, s92, s90"),
                        salu(cmpi), salu("s_cselect_b32 s88, s88, 0"), salu("s_cselect_b32 s90, s90, 0"),
                        salu("s_add_u32 s86, s86, s88"), salu("s_add_u32 s87, s87, s90")] + g["pre"]
        else:
            lw, lwr = newlbl("L_bw"), newlbl("L_bwr")
            outline.append([label(lw), other("s_waitcnt vmcnt(8)"), other(f"s_branch {lwr}")])
            g["pre"] = [other("s_waitcnt lgkmcnt(0)"), salu(f"s_bitcmp1_b32 s{S_HI+3}, s{S_N}"), other(f"s_cbranch_scc1 {lw}", 10),
                        other("s_waitcnt vmcnt(24)"), label(lwr), other("s_barrier")] + g["pre"]
        for s_ in range(8):
            g["fixed"][s_ // 3] += [k_load(s_, 0)]
        last = (bi == len(bar_groups) - 1)
        e = entry_issue()
        units = [e[0] + e[1], e[2] + e[3], e[4] + e[5], e[6] + e[7], e[8], special_site(typ)]
        units = [extra_site(True)] + units
        slots = []
        cnt = (bar_groups[(bi + 1) % len(bar_groups)] - gi) % ng or ng
        for off in range(cnt):
            idx = (gi + off) % ng
            gg = groups[idx]
            if last and idx >= gi: continue
            if gg["kind"] == "pv":
                sl = [4] if off == 0 else [0, 1]
            else:
                sl = [3] if off + 1 < cnt else []
            slots += [(gg, i) for i in sl]
        assign = [[] for _ in slots]
        for ui, u_ in enumerate(units):
            assign[min(len(slots) - 1, ui * len(slots) // len(units))] += u_
        for (gg, i), blk in zip(slots, assign):
            gg["fixed"][i] += blk
    for k in range(n):
        r, sub, t = st(k)
        ops = softmax_ops(t, k % 2)
        g0, g1 = groups[2 * k], groups[2 * k + 1]
        gaps = [(g0, i) for i in range(2, 8)] + [(g1, i) for i in range(8)]
        fixed = [sum(x.cost for x in g["fixed"][i] if x.likely) for g, i in gaps]
        tot = sum(x.cost for x in ops) + 14 + sum(fixed)
        per = tot / len(gaps)
        cum = 0.0; placed = 0.0; oi = 0
        for gi, (g, i) in enumerate(gaps):
            cum += per
            placed += fixed[gi]
            lst = g.setdefault("flex", [[] for _ in range(8)])[i]
            while oi < len(ops) and (placed + ops[oi].cost / 2 <= cum or gi == len(gaps) - 1):
                lst.append(ops[oi]); placed += ops[oi].cost; oi += 1
        g1["flex"][7] += check_ops(t, k % 2)
    for gi, g in enumerate(groups):
        P.add([x for x in g["pre"] if not (OPT["no_bar"] and ("barrier" in x.text or "vmcnt" in x.text))])
        for i in range(8):
            if not OPT["no_mfma"]: P.add(g["mf"][i])
            fx = g["fixed"][i]
            if OPT["no_sc"]: fx = [x for x in fx if not (x.text.startswith("s_cbranch") or x.text.startswith("s_bitcmp"))]
            if OPT["no_lds"]: fx = [x for x in fx if x.kind != "lds"]
            if OPT["no_dma"]: fx = [x for x in fx if x.kind != "vmem"]
            P.add(fx)
            fl = g.get("flex", [[] for _ in range(8)])[i]
            if OPT["no_sm"]: fl = [x for x in fl if x.kind == "label"]
            if OPT["no_exp"]: fl = [x for x in fl if x.kind != "trans"]
            if OPT["no_chk"]: fl = [x for x in fl if "vcc" not in x.text]
            P.add(fl)

def slow_routine(P, t, sb):
    S = V_S + 16 * sb; nb = V_NB + 16 * t; X = V_X
    P.add(label(f"L_slow_{t}_{sb}"))
    P.add(other("s_nop 15", 64))
    P.add(V(f"v_max3_f32 {vr(X)}, {vr(S)}, {vr(S+1)}, {vr(S+2)}", [S, S + 1, S + 2], [X]))
    for i in range(3, 15, 2):
        P.add(V(f"v_max3_f32 {vr(X)}, {vr(X)}, {vr(S+i)}, {vr(S+i+1)}", [X, S + i, S + i + 1], [X]))
    P.add(V(f"v_max_f32 {vr(X)}, {vr(X)}, {vr(S+15)}", [X, S + 15], [X]))
    P.add(V(f"v_mov_b32 {vr(X+1)}, {vr(X)}", [X], [X + 1]))
    P.add(perm(X, X + 1))
    P.add(V(f"v_max_f32 {vr(X)}, {vr(X)}, {vr(X+1)}", [X, X + 1], [X]))
    P.add(V(f"v_mov_b32 {vr(X+2)}, {vr(V_L+t)}", [V_L + t], [X + 2]))
    P.add(V(f"v_mov_b32 {vr(X+3)}, {vr(V_L+t)}", [V_L + t], [X + 3]))
    P.add(perm(X + 2, X + 3))
    P.add(V(f"v_add_f32 {vr(X+2)}, {vr(X+2)}, {vr(X+3)}", [X + 2, X + 3], [X + 2]))
    P.add(valu(f"v_cmp_neq_f32 vcc, 0, {vr(X+2)}", {f"v{X+2}"}, {"vcc"}))
    P.add(V(f"v_max_f32 {vr(X+3)}, 0, {vr(X)}", [X], [X + 3]))
    P.add(valu(f"v_cndmask_b32 {vr(X)}, {vr(X)}, {vr(X+3)}, vcc", {f"v{X}", f"v{X+3}", "vcc"}, {f"v{X}"}))
    P.add(V(f"v_exp_f32 {vr(X+1)}, -{vr(X+3)}", [X + 3], [X + 1], trans=True))
    for i in range(16):
        P.add(V(f"v_sub_f32 {vr(nb+i)}, {vr(nb+i)}, {vr(X)}", [nb + i, X], [nb + i]))
    P.add(V(f"v_mul_f32 {vr(V_L+t)}, {vr(V_L+t)}, {vr(X+1)}", [V_L + t, X + 1], [V_L + t]))
    l = newlbl("L_sk")
    P.add(other(f"s_cbranch_vccz {l}"))
    for i in range(0, 64, 4):
        for j in range(4):
            P.add(valu(f"v_accvgpr_read_b32 {vr(X+4+j)}, {ar(A_O+64*t+i+j)}", {f"a{A_O+64*t+i+j}"}, {f"v{X+4+j}"}))
        for j in range(4):
            P.add(V(f"v_mul_f32 {vr(X+4+j)}, {vr(X+4+j)}, {vr(X+1)}", [X + 4 + j, X + 1], [X + 4 + j]))
        for j in range(4):
            P.add(valu(f"v_accvgpr_write_b32 {ar(A_O+64*t+i+j)}, {vr(X+4+j)}", {f"v{X+4+j}"}, {f"a{A_O+64*t+i+j}"}))
    P.add(label(l))
    P.add(softmax_ops(t, sb, with_cmp=False, sub=X))
    P.add(other("s_nop 3", 16))
    P.add(other(f"s_setpc_b64 s[{S_RET}:{S_RET+1}]"))

def stamp(P, idx_expr):
    if not OPT["stamp"]: return
    if isinstance(idx_expr, int):
        P.add(other(f"s_memtime s[{S_STAMP+2*idx_expr}:{S_STAMP+2*idx_expr+1}]"))
        P.add(other("s_waitcnt lgkmcnt(0)"))
    else:
        base = idx_expr[1]
        l1, l2 = newlbl("L_st"), newlbl("L_st")
        P.add(salu(f"s_cmp_lg_u32 s{S_ITEM}, 0")); P.add(other(f"s_cbranch_scc1 {l1}"))
        P.add(other(f"s_memtime s[{S_STAMP+2*base}:{S_STAMP+2*base+1}]")); P.add(other(f"s_branch {l2}"))
        P.add(label(l1)); P.add(other(f"s_memtime s[{S_STAMP+2*(base+4)}:{S_STAMP+2*(base+4)+1}]"))
        P.add(label(l2)); P.add(other("s_waitcnt lgkmcnt(0)"))

def stamp_out(P):
    if not OPT["stamp"]: return
    P.add(other("s_waitcnt vmcnt(0)"))
    stamp(P, 10)
    if not OPT["barstat"]:
        P.add(other("s_memrealtime s[90:91]")); P.add(other("s_waitcnt lgkmcnt(0)"))
        P.add(salu("s_mov_b32 s86, s88")); P.add(salu("s_mov_b32 s87, s90"))
    if OPT["dbg"]:
        P.add(other("s_load_dwordx2 s[4:5], s[0:1], 32")); P.add(other("s_waitcnt lgkmcnt(0)"))
        P.add(salu("s_mov_b32 s6, 64")); P.add(salu("s_mov_b32 s7, 0x20000"))
        for i in range(10, 0, -1):
            P.add(salu(f"s_sub_u32 s{S_STAMP+2*i}, s{S_STAMP+2*i}, s{S_STAMP}"))
        P.add(salu("s_sub_u32 s87, s87, s86"))
    else:
        P.add(other("s_load_dwordx2 s[4:5], s[0:1], 40")); P.add(other("s_waitcnt lgkmcnt(0)"))
        P.add(salu("s_mov_b32 s6, 268435456")); P.add(salu("s_mov_b32 s7, 0x20000"))
    P.add(salu(f"s_lshl_b32 s8, s{S_WG}, 2")); P.add(salu(f"s_add_u32 s8, s8, s{S_W}")); P.add(salu("s_lshl_b32 s8, s8, 6"))
    P.add(valu("v_mov_b32 v1, 0", (), {"v1"}))
    for i in range(13):
        P.add(valu(f"v_mov_b32 v2, s{S_STAMP+2*i if i < 11 else 86 + i - 11}", (), {"v2"}))
        P.add(Ins(f"buffer_store_dword v2, v1, s[4:7], s8 offen offset:{4*i}", "vmem", {"v1", "v2"}, ()))
        P.add(other("s_waitcnt vmcnt(0)"))

def img_addr(P, dst, chunk_even, sbase):
    P.add(V(f"v_xor_b32 {vr(dst)}, {chunk_even}, {vr(V_QXOR)}", [V_QXOR], [dst]))
    P.add(V(f"v_lshl_add_u32 {vr(dst)}, {vr(dst)}, 4, {vr(V_QBASE)}", [dst, V_QBASE], [dst]))
    P.add(V(f"v_add_u32 {vr(dst)}, s{sbase}, {vr(dst)}", [dst], [dst]))

def q_setup_tile(typ, t, absaddr=False):
    C = L()
    AD = V_T
    qk, qb = q_reg(typ, t)
    RAW = V_S
    if absaddr:
        C.add(image_addrs(S_RB))
        for s in range(8):
            C.add(Ins(f"ds_read_b128 {vr(RAW+4*s,4)}, {vr(AD+s)}", "lds", {f"v{AD+s}"}, rs("v", RAW + 4 * s, 4)))
    else:
        for s in range(8):
            C.add(V(f"v_add_u32 {vr(V_X+s)}, s{S_RB}, {vr(AD+s)}", [AD + s], [V_X + s]))
        for s in range(8):
            C.add(Ins(f"ds_read_b128 {vr(RAW+4*s,4)}, {vr(V_X+s)}", "lds", {f"v{V_X+s}"}, rs("v", RAW + 4 * s, 4)))
    C.add(rb_advance())
    head = C.ins; C = L()
    for i in range(16):
        C.add(V(f"v_mov_b32 {vr(V_NB+16*t+i)}, 0", [], [V_NB + 16 * t + i]))
    C.add(V(f"v_mov_b32 {vr(V_L+t)}, 0", [], [V_L + t]))
    TMP = V_FREE
    for r0 in range(0, 32, 4):
        if r0 % 8 == 0:
            C.add(mfma("a", A_O + 64 * t + 2 * r0, "v", V_VF, "v", V_P + 8, czero=True))
        for j in range(4):
            r = RAW + r0 + j
            C.add(V(f"v_lshlrev_b32 {vr(TMP+2*j)}, 16, {vr(r)}", [r], [TMP + 2 * j]))
            C.add(V(f"v_and_b32 {vr(TMP+2*j+1)}, s{S_MASK}, {vr(r)}", [r], [TMP + 2 * j + 1]))
        for j in range(0, 8, 2):
            C.add(V(f"v_pk_mul_f32 {vr(TMP+j,2)}, {vr(TMP+j,2)}, s[{S_C2}:{S_C2+1}]", [TMP + j, TMP + j + 1], [TMP + j, TMP + j + 1], cost=6))
        for j in range(4):
            d = qb + r0 + j if qk == "v" else TMP + 8 + j
            C.add(V(f"v_cvt_pk_bf16_f32 {vr(d)}, {vr(TMP+2*j)}, {vr(TMP+2*j+1)}", [TMP + 2 * j, TMP + 2 * j + 1], [d]))
        if qk == "a":
            for j in range(4):
                C.add(valu(f"v_accvgpr_write_b32 {ar(qb+r0+j)}, {vr(TMP+8+j)}", {f"v{TMP+8+j}"}, {f"a{qb+r0+j}"}))
    return head, C.ins

def pieces_of(ops):
    pieces = []; cur = []
    for x in ops:
        cur.append(x)
        if x.kind == "vmem": pieces.append(cur); cur = []
    pieces[-1] += cur
    return pieces

def q_setup_pre():
    C = L()
    for i in range(8):
        C.add(V(f"v_mov_b32 {vr(V_P+8+i)}, 0", [], [V_P + 8 + i]))
    for s in range(8):
        C.add(V(f"v_xor_b32 {vr(V_T+s)}, {2*s}, {vr(V_QXOR)}", [V_QXOR], [V_T + s]))
        C.add(V(f"v_lshl_add_u32 {vr(V_T+s)}, {vr(V_T+s)}, 4, {vr(V_QBASE)}", [V_T + s, V_QBASE], [V_T + s]))
    return C.ins

def item_begin(P, typ):
    P.add(salu(f"s_sub_u32 s{S_DELTA}, s{S_RB}, s{S_KCUR}")); P.add(salu(f"s_mov_b32 s{S_KCUR}, s{S_RB}"))
    P.add(rebase(V_KA, 8))
    for s in range(8): P.add(k_load(s, 0))
    P.add(salu(f"s_sub_u32 s{S_DELTA}, s{S_RB}, s{S_VCUR}")); P.add(salu(f"s_mov_b32 s{S_VCUR}, s{S_RB}"))
    lo = f32bits(2.0 ** -20); hi = f32bits(65536.0)
    P.add(salu(f"s_mov_b32 s{S_LO}, 0x{lo:08x}")); P.add(salu(f"s_mov_b32 s{S_RANGE}, 0x{hi-lo:08x}"))
    P.lgkm0()

def lsum(P, lreg, dst, X):
    P.add(V(f"v_mov_b32 {vr(X)}, {vr(lreg)}", [lreg], [X]))
    P.add(V(f"v_mov_b32 {vr(X+1)}, {vr(lreg)}", [lreg], [X + 1]))
    P.add(perm(X, X + 1))
    P.add(V(f"v_add_f32 {vr(dst)}, {vr(X)}, {vr(X+1)}", [X, X + 1], [dst]))

def pack_unit(P, t, dt, kp, scale, B, addr, addsrc=None, scale2=None, woff=0):
    a0 = A_O + 64 * t + 16 * dt + 8 * kp
    for j in range(8):
        P.add(valu(f"v_accvgpr_read_b32 {vr(B+j)}, {ar(a0+j)}", {f"a{a0+j}"}, {f"v{B+j}"}))
    for j in range(0, 8, 2):
        P.add(V(f"v_pk_mul_f32 {vr(B+j,2)}, {vr(B+j,2)}, {vr(scale,2)}", [B + j, B + j + 1, scale, scale + 1], [B + j, B + j + 1], cost=6))
    if addsrc is not None:
        for j in range(0, 8, 2):
            P.add(V(f"v_pk_fma_f32 {vr(B+j,2)}, {vr(addsrc+j,2)}, {vr(scale2,2)}, {vr(B+j,2)}",
                    [B + j, B + j + 1, addsrc + j, addsrc + j + 1, scale2, scale2 + 1], [B + j, B + j + 1], cost=6))
    for j in range(4):
        P.add(V(f"v_cvt_pk_bf16_f32 {vr(B+8+j)}, {vr(B+2*j)}, {vr(B+2*j+1)}", [B + 2 * j, B + 2 * j + 1], [B + 8 + j]))
    P.add(perm(B + 8, B + 10)); P.add(perm(B + 9, B + 11))
    P.add(Ins(f"ds_write_b128 {vr(addr)}, {vr(B+8,4)} offset:{woff}", "lds", rs("v", B + 8, 4) | {f"v{addr}"}, ()))

def image_readback(C, pieces, RB, base_sreg=None):
    X = V_X
    C.add(V(f"v_add_u32 {vr(X+8)}, s{base_sreg if base_sreg is not None else S_M0}, {vr(V_LANE16)}", [V_LANE16], [X + 8]))
    C.lgkm0()
    for i, a in enumerate(pieces):
        off = (a % 4) * 1024 + (16384 if a >= 4 else 0)
        C.add(Ins(f"ds_read_b128 {vr(RB+4*i,4)}, {vr(X+8)} offset:{off}", "lds", {f"v{X+8}"}, rs("v", RB + 4 * i, 4)))

def image_stores(pieces, RB, so_lo, so_hi):
    nt = (" " + OPT["stf"].replace("_", " ")) if OPT["stf"] else ""
    out = []
    for i, a in enumerate(pieces):
        vo = V_DK + a if a < 4 else V_DV
        so = so_lo if a < 4 else so_hi
        out.append([Ins(f"buffer_store_dwordx4 {vr(RB+4*i,4)}, {vr(vo)}, s[{SRD_O}:{SRD_O+3}], s{so} offen offset:{(a%4)*1024}{nt}", "vmem",
                        rs("v", RB + 4 * i, 4) | {f"v{vo}"}, (), 8, tag="store")])
    return out

def image_addrs(slot_sreg=None):
    C = L()
    if slot_sreg is None:
        C.add(salu(f"s_sub_u32 s{S_T0}, s{S_M0}, s{S_W4K}")); slot_sreg = S_T0
    C.add(V(f"v_add_u32 {vr(V_X+9)}, s{slot_sreg}, {vr(V_QBASE)}", [V_QBASE], [V_X + 9]))
    for u in range(8):
        C.add(V(f"v_xor_b32 {vr(V_T+u)}, {2*u}, {vr(V_QXOR)}", [V_QXOR], [V_T + u]))
        C.add(V(f"v_lshl_add_u32 {vr(V_T+u)}, {vr(V_T+u)}, 4, {vr(V_X+9)}", [V_T + u, V_X + 9], [V_T + u]))
    return C.ins

def pack_tile(t):
    C = L(); X = V_X
    lsum(C, V_L + t, X + 2, X)
    C.add(V(f"v_rcp_f32 {vr(X+2)}, {vr(X+2)}", [X + 2], [X + 2], trans=True))
    C.add(V(f"v_mov_b32 {vr(X+3)}, {vr(X+2)}", [X + 2], [X + 3]))
    u = 0
    for dt in range(4):
        for kp in range(2):
            pack_unit(C, t, dt, kp, X + 2, V_S + 12 * (u % 4), V_T + u)
            u += 1
    return C.ins

def epilogue_H(P, par):
    X = V_X; t = 2
    P.add(salu(f"s_xor_b32 s{S_XPART}, s{S_M0}, 4096"))
    lsum(P, V_L + t, X + 3, X)
    P.add(V(f"v_mov_b32 {vr(X+2)}, {vr(V_NB+16*t)}", [V_NB + 16 * t], [X + 2]))
    P.add(V(f"v_add_u32 {vr(X+4)}, s{S_XPART}, {vr(V_LANE8)}", [V_LANE8], [X + 4]))
    P.add(V(f"v_add_u32 {vr(X+5)}, s{S_M0}, {vr(V_LANE8)}", [V_LANE8], [X + 5]))
    P.add(Ins(f"ds_write_b64 {vr(X+4)}, {vr(X+2,2)}", "lds", {f"v{X+4}", f"v{X+2}", f"v{X+3}"}, ()))
    P.add(V(f"v_add_u32 {vr(X+8)}, s{S_XPART}, {vr(V_LANE16)}", [V_LANE16], [X + 8]))
    P.add(V(f"v_add_u32 {vr(X+9)}, s{S_M0}, {vr(V_LANE16)}", [V_LANE16], [X + 9]))
    send = [2 * (1 - par), 2 * (1 - par) + 1]
    keep = [2 * par, 2 * par + 1]
    def koff(u): return (u % 4) * 1024 + (16384 if u >= 4 else 0)
    def payload(u):
        a0 = A_O + 64 * t + 16 * send[u // 4] + 4 * (u % 4)
        return Ins(f"ds_write_b128 {vr(X+9)}, {ar(a0,4)} offset:{koff(u)}", "lds", rs("a", a0, 4) | {f"v{X+9}"}, ())
    for u in range(1, 8): P.add(payload(u))
    P.lgkm0()
    P.add(other("s_barrier"))
    P.add(Ins(f"ds_read_b64 {vr(X+6,2)}, {vr(X+5)}", "lds", {f"v{X+5}"}, {f"v{X+6}", f"v{X+7}"}))
    P.lgkm0()
    P.add(payload(0))
    P.add(V(f"v_min_f32 {vr(X)}, {vr(X+2)}, {vr(X+6)}", [X + 2, X + 6], [X]))
    P.add(V(f"v_sub_f32 {vr(X+1)}, {vr(X)}, {vr(X+2)}", [X, X + 2], [X + 1]))
    P.add(V(f"v_sub_f32 {vr(X)}, {vr(X)}, {vr(X+6)}", [X, X + 6], [X]))
    P.add(V(f"v_exp_f32 {vr(X+1)}, {vr(X+1)}", [X + 1], [X + 1], trans=True))
    P.add(V(f"v_exp_f32 {vr(X)}, {vr(X)}", [X], [X], trans=True))
    P.add(V(f"v_mul_f32 {vr(X+3)}, {vr(X+3)}, {vr(X+1)}", [X + 3, X + 1], [X + 3]))
    P.add(V(f"v_fma_f32 {vr(X+3)}, {vr(X+7)}, {vr(X)}, {vr(X+3)}", [X + 7, X, X + 3], [X + 3]))
    P.add(V(f"v_rcp_f32 {vr(X+3)}, {vr(X+3)}", [X + 3], [X + 3], trans=True))
    P.add(V(f"v_mul_f32 {vr(X+4)}, {vr(X+3)}, {vr(X)}", [X + 3, X], [X + 4]))
    P.add(V(f"v_mul_f32 {vr(X+2)}, {vr(X+3)}, {vr(X+1)}", [X + 3, X + 1], [X + 2]))
    P.add(V(f"v_mov_b32 {vr(X+5)}, {vr(X+4)}", [X + 4], [X + 5]))
    P.add(V(f"v_mov_b32 {vr(X+3)}, {vr(X+2)}", [X + 2], [X + 3]))
    P.add(V(f"v_bfe_u32 {vr(X)}, {vr(V_LANE16)}, 4, 5", [V_LANE16], [X]))
    P.add(V(f"v_bfe_u32 {vr(X+1)}, {vr(V_LANE16)}, 9, 1", [V_LANE16], [X + 1]))
    P.add(V(f"v_and_b32 {vr(X+6)}, 7, {vr(X)}", [X], [X + 6]))
    P.add(V(f"v_xor_b32 {vr(X+6)}, {vr(X+6)}, {vr(X+1)}", [X + 6, X + 1], [X + 6]))
    P.add(V(f"v_lshlrev_b32 {vr(X)}, 7, {vr(X)}", [X], [X]))
    P.add(V(f"v_add_u32 {vr(X)}, s{S_M0}, {vr(X)}", [X], [X]))
    for u in range(4):
        P.add(V(f"v_xor_b32 {vr(V_T+u)}, {2*u}, {vr(X+6)}", [X + 6], [V_T + u]))
        P.add(V(f"v_lshl_add_u32 {vr(V_T+u)}, {vr(V_T+u)}, 4, {vr(X)}", [V_T + u, X], [V_T + u]))
    P.add(V(f"v_bfe_u32 {vr(X)}, {vr(V_LANE16)}, 7, 3", [V_LANE16], [X]))
    P.add(V(f"v_bfe_u32 {vr(X+1)}, {vr(V_LANE16)}, 4, 3", [V_LANE16], [X + 1]))
    P.add(V(f"v_xor_b32 {vr(X+1)}, {vr(X+1)}, {vr(X)}", [X, X + 1], [X + 1]))
    P.add(V(f"v_lshlrev_b32 {vr(X)}, 8, {vr(X)}", [X], [X]))
    P.add(V(f"v_lshl_add_u32 {vr(V_TC)}, {vr(X+1)}, 4, {vr(X)}", [X, X + 1], [V_TC]))
    P.lgkm0()
    P.add(other("s_barrier"))
    for u in range(8):
        P.add(Ins(f"ds_read_b128 {vr(V_S+4*u,4)}, {vr(X+8)} offset:{koff(u)}", "lds", {f"v{X+8}"}, rs("v", V_S + 4 * u, 4)))
    P.lgkm0()
    P.add(other("s_barrier"))
    u = 0
    for di, dt in enumerate(keep):
        for kp in range(2):
            pack_unit(P, t, dt, kp, X + 2, V_KF + 12 * (u % 2), V_T + u, addsrc=V_S + 16 * di + 8 * kp, scale2=X + 4)
            u += 1
    P.lgkm0()
    for a in range(4):
        P.add(Ins(f"ds_read_b128 {vr(V_FREE+4*a,4)}, {vr(X+9)} offset:{a*1024}", "lds", {f"v{X+9}"}, rs("v", V_FREE + 4 * a, 4)))
    P.add(salu(f"s_add_u32 s{S_SO+2}, s{S_QH}, {128*par}")); P.add(salu(f"s_add_u32 s{S_SO+3}, s{S_QH}, {128*par+4096}"))
    P.lgkm0()
    nt = (" " + OPT["stf"].replace("_", " ")) if OPT["stf"] else ""
    return [[Ins(f"buffer_store_dwordx4 {vr(V_FREE+4*a,4)}, {vr(V_TC)}, s[{SRD_O}:{SRD_O+3}], s{S_SO+2+a//2} offen offset:{(a%2)*2048}{nt}", "vmem",
                 rs("v", V_FREE + 4 * a, 4) | {f"v{V_TC}"}, (), 8, tag="store")] for a in range(4)]

def item_code(P, typ, par):
    tag = f"{typ}{par}" if typ == "A" else "B"
    if typ == "A":
        ring = [(0, 0), (0, 1), (0, 2), (1, 0), (1, 1)] if par == 0 else [(0, 0), (0, 1), (1, 0), (1, 1), (1, 2)]
        steps = [(0, s, t) for s, t in ring] + [(1, s, t) for s, t in ring]
    else:
        steps = [(0, 0, 0), (0, 0, 1), (0, 1, 0), (0, 1, 1)]
    P.add(label(f"L_item_{tag}"))
    stamp(P, ("item", 2))
    item_begin(P, typ)
    P.add(qk_group(typ, 0, 0))
    stamp(P, ("item", 3))
    P.add(label(f"L_loop_{tag}"))
    assert not P.ldsq
    build_body(P, typ, steps)
    P.ldsq = []
    P.add(salu(f"s_and_b32 s{S_T2}, s{S_N}, 7"))
    P.add(salu(f"s_cmp_lg_u32 s{S_T2}, 0"))
    P.add(other(f"s_cbranch_scc1 L_loop_{tag}"))
    stamp(P, ("item", 4))
    r, sub, t = steps[-1]
    P.add(pv_group(t, (len(steps) - 1) % 2))
    P.add(other(f"s_waitcnt vmcnt({8 if typ == 'A' else 0})"))
    P.lgkm0()
    P.add(salu(f"s_sub_u32 s{S_VCUR}, s{S_VCUR}, s{S_DELTA}"))
    sq = S_QA if typ == "A" else S_QB
    if typ == "A":
        st_h = epilogue_H(P, par)
    else:
        P.add(other("s_barrier")); st_h = []
    allp = list(range(8))
    P.add(image_addrs())
    P.add(weave(pack_tile(0), st_h))
    P.add(salu(f"s_cmp_lg_u32 s{S_ITEM}, 0"))
    P.add(other(f"s_cbranch_scc1 L_last_{tag}"))
    ntyp = "B" if typ == "A" else "A"
    nn = 3 if ntyp == "A" else 2
    P.add(salu(f"s_mov_b32 s{S_DRL}, s{S_M0}")); P.add(salu(f"s_mov_b32 s{S_DRG}, s{sq}")); P.add(salu(f"s_mov_b32 s{S_DRK}, 0"))
    P.add(salu(f"s_add_u32 s{S_IMG1}, s{S_RB}, s{S_W4K}"))
    for i in range(8):
        P.add(V(f"v_mov_b32 {vr(V_KF+i)}, 0", [], [V_KF + i]))
    hd, body = q_setup_tile(ntyp, 0, absaddr=True)
    P.add(hd); P.add(zb(body))
    P.add(pack_tile(1))
    if typ == "A":
        P.add(salu(f"s_mov_b32 s{S_RSPAN}, {3*SLOT}"))
        P.add(salu(f"s_add_u32 s{S_M0}, s{S_W4K}, {2*SLOT}"))
    else:
        P.add(salu(f"s_add_u32 s{S_M0}, s{S_W4K}, {1*SLOT}"))
    for t in range(1, nn):
        hd, body = q_setup_tile(ntyp, t, absaddr=True)
        P.add(hd)
        if typ == "B" and t == 2:
            P.add(salu(f"s_mov_b32 s{S_RHI}, {4*SLOT}")); P.add(salu(f"s_mov_b32 s{S_RSPAN}, {3*SLOT}"))
            P.add(weave(zb(body), pieces_of(sum(entry_issue(), []) + kv_next()), 0.0, 0.9))
        else:
            P.add(zb(body))
    for i in range(8):
        P.add(V(f"v_mov_b32 {vr(V_P+8+i)}, 0", [], [V_P + 8 + i]))
    P.lgkm0()
    P.add(drain_read())
    stamp(P, ("item", 5))
    P.add(salu(f"s_mov_b32 s{S_ITEM}, 1"))
    P.add(other("s_branch L_go_B" if typ == "A" else "s_branch L_go_A"))
    P.add(label(f"L_last_{tag}"))
    image_readback(P, allp, V_KF)
    P.add(salu(f"s_mov_b32 s{S_SO}, s{sq}")); P.add(salu(f"s_add_u32 s{S_SO+1}, s{sq}, 4096"))
    P.add(weave(pack_tile(1), image_stores(allp, V_KF, S_SO, S_SO + 1)))
    image_readback(P, allp, V_VF)
    P.add(salu(f"s_add_u32 s{S_SO+2}, s{sq}, 8192")); P.add(salu(f"s_add_u32 s{S_SO+3}, s{sq}, 12288"))
    P.add(sum(image_stores(allp, V_VF, S_SO + 2, S_SO + 3), []))
    stamp(P, ("item", 5))
    P.add(other("s_branch L_fin"))

def zb(body):
    out = []
    for x in body:
        if x.kind == "mfma":
            d = int(x.text.split("a[")[1].split(":")[0])
            out.append(mfma("a", d, "v", V_VF, "v", V_KF, czero=True))
        else:
            out.append(x)
    return out

def prologue(P):
    P.add(salu(f"s_cmp_ge_u32 s{S_WG}, 256")); P.add(other("s_cbranch_scc1 L_done"))
    stamp(P, 0)
    if OPT["stamp"] and not OPT["barstat"]:
        P.add(other("s_memrealtime s[88:89]")); P.add(other("s_waitcnt lgkmcnt(0)"))
    P.add(other("s_load_dwordx4 s[4:7], s[0:1], 0")); P.add(other("s_load_dwordx4 s[8:11], s[0:1], 16"))
    X = V_X
    lane, key, h = X, X + 1, X + 2
    P.add(V(f"v_lshrrev_b32 {vr(X+3)}, 6, v0", [0], [X + 3]))
    P.add(V(f"v_and_b32 {vr(lane)}, 63, v0", [0], [lane]))
    P.add(Ins(f"v_readfirstlane_b32 s{S_W}, {vr(X+3)}", "rfl", {f"v{X+3}"}, {f"s{S_W}"}))
    A = lambda text, rd, wr: P.add(V(text, rd, wr))
    rr, pp = X + 4, X + 5
    A(f"v_lshrrev_b32 {vr(rr)}, 4, {vr(lane)}", [lane], [rr])
    A(f"v_and_b32 {vr(pp)}, 15, {vr(lane)}", [lane], [pp])
    A(f"v_lshlrev_b32 {vr(X+6)}, 8, {vr(rr)}", [rr], [X + 6])
    A(f"v_xor_b32 {vr(X+7)}, {vr(pp)}, {vr(rr)}", [pp, rr], [X + 7])
    for a in range(4):
        A(f"v_xor_b32 {vr(X+8)}, {4*a}, {vr(X+7)}", [X + 7], [X + 8])
        A(f"v_lshl_add_u32 {vr(V_DK+a)}, {vr(X+8)}, 4, {vr(X+6)}", [X + 8, X + 6], [V_DK + a])
    A(f"v_lshlrev_b32 {vr(X+7)}, 2, {vr(rr)}", [rr], [X + 7])
    A(f"v_xor_b32 {vr(X+7)}, {vr(pp)}, {vr(X+7)}", [pp, X + 7], [X + 7])
    A(f"v_lshl_add_u32 {vr(V_DV)}, {vr(X+7)}, 4, {vr(X+6)}", [X + 7, X + 6], [V_DV])
    S = lambda t: P.add(salu(t))
    S(f"s_and_b32 s{S_T0}, s{S_WG}, 7"); S(f"s_lshr_b32 s{S_T1}, s{S_WG}, 4"); S(f"s_lshl_b32 s{S_T1}, s{S_T1}, 3")
    S(f"s_add_u32 s{S_T0}, s{S_T0}, s{S_T1}")
    S(f"s_lshr_b32 s{S_ROLE}, s{S_WG}, 3"); S(f"s_and_b32 s{S_ROLE}, s{S_ROLE}, 1")
    S(f"s_lshl_b32 s{S_P0}, s{S_T0}, 18"); S(f"s_lshl_b32 s{S_W4K}, s{S_W}, 12"); S(f"s_mov_b32 s{S_M0}, s{S_W4K}")
    S(f"s_mov_b32 s{S_KV}, s{S_W4K}")
    S(f"s_lshl_b32 s{S_T0}, s{S_T0}, 1")
    S(f"s_add_u32 s{S_T1}, s{S_T0}, s{S_ROLE}"); S(f"s_mul_i32 s{S_T1}, s{S_T1}, 147456")
    S(f"s_lshl_b32 s{S_T2}, s{S_W}, 14"); S(f"s_add_u32 s{S_QA}, s{S_T1}, s{S_T2}")
    S(f"s_lshr_b32 s{S_QH}, s{S_W}, 1"); S(f"s_lshl_b32 s{S_QH}, s{S_QH}, 13"); S(f"s_add_u32 s{S_QH}, s{S_QH}, s{S_T1}")
    S(f"s_add_u32 s{S_QH}, s{S_QH}, {8*8192}")
    S(f"s_xor_b32 s{S_T1}, s{S_ROLE}, 1"); S(f"s_add_u32 s{S_T1}, s{S_T0}, s{S_T1}"); S(f"s_mul_i32 s{S_T1}, s{S_T1}, 147456")
    S(f"s_add_u32 s{S_QB}, s{S_T1}, s{S_T2}"); S(f"s_add_u32 s{S_QB}, s{S_QB}, {10*8192}")
    c = (128 ** -0.5) * math.log2(math.e)
    S(f"s_mov_b32 s{S_C}, 0x{f32bits(c):08x}"); S(f"s_mov_b32 s{S_C2}, s{S_C}"); S(f"s_mov_b32 s{S_C2+1}, s{S_C}")
    S(f"s_mov_b32 s{S_HI}, 0x{f32bits(65536.0):08x}")
    S(f"s_mov_b32 s{S_MASK}, 0xffff0000")
    S("s_mov_b32 s86, 0"); S("s_mov_b32 s87, 0")
    S(f"s_mov_b32 s{S_HI+1}, {sum(1 << i for i in (2, 3, 4, 5, 6, 8, 9, 10))}")
    S(f"s_mov_b32 s{S_HI+2}, {sum(1 << i for i in (2, 3, 4, 5, 8, 9, 10))}")
    S(f"s_mov_b32 s{S_MSK1}, 0x0f03")
    S(f"s_mov_b32 s{S_RHI}, {5*SLOT}"); S(f"s_mov_b32 s{S_RSPAN}, {5*SLOT}")
    S(f"s_mov_b32 s{S_HI+3}, 0x1fe02")
    for r_ in (S_N, S_RB, S_ITEM, S_DELTA, S_KCUR, S_VCUR): S(f"s_mov_b32 s{r_}, 0")
    S(f"s_mov_b32 s{S_E1+3}, 0x20000"); S(f"s_mov_b32 s{S_E2+3}, 0x20000")
    S(f"s_mov_b32 s{SRD_O+2}, {QBYTES}"); S(f"s_mov_b32 s{SRD_O+3}, 0x20000")
    P.add(other("s_waitcnt lgkmcnt(0)"))
    S(f"s_mov_b32 s{SRD_O}, s{S_PO}"); S(f"s_mov_b32 s{SRD_O+1}, s{S_PO+1}")
    S(f"s_add_u32 s{S_PK}, s{S_PK}, s{S_P0}"); S(f"s_addc_u32 s{S_PK+1}, s{S_PK+1}, 0")
    S(f"s_add_u32 s{S_PV}, s{S_PV}, s{S_P0}"); S(f"s_addc_u32 s{S_PV+1}, s{S_PV+1}, 0")
    def qlist(typ):
        if typ == "A":
            S(f"s_mov_b32 s{S_Q2}, s{S_QA}"); S(f"s_add_u32 s{S_Q2+1}, s{S_QA}, 8192"); S(f"s_mov_b32 s{S_Q2+2}, s{S_QH}"); S(f"s_mov_b32 s{S_QLEFT}, 3")
        else:
            S(f"s_mov_b32 s{S_Q2}, s{S_QB}"); S(f"s_add_u32 s{S_Q2+1}, s{S_QB}, 8192"); S(f"s_mov_b32 s{S_Q2+2}, s{S_QB}"); S(f"s_mov_b32 s{S_QLEFT}, 2")
    def rest():
        A(f"v_and_b32 {vr(key)}, 31, {vr(lane)}", [lane], [key])
        A(f"v_lshrrev_b32 {vr(h)}, 5, {vr(lane)}", [lane], [h])
        A(f"v_lshlrev_b32 {vr(V_LANE8)}, 3, {vr(lane)}", [lane], [V_LANE8])
        A(f"v_lshlrev_b32 {vr(V_LANE16)}, 4, {vr(lane)}", [lane], [V_LANE16])
        A(f"v_lshlrev_b32 {vr(X+3)}, 8, {vr(key)}", [key], [X + 3])
        A(f"v_and_b32 {vr(X+4)}, 15, {vr(key)}", [key], [X + 4])
        A(f"v_xor_b32 {vr(X+4)}, {vr(X+4)}, {vr(h)}", [X + 4, h], [X + 4])
        for s in range(8):
            A(f"v_xor_b32 {vr(X+5)}, {2*s}, {vr(X+4)}", [X + 4], [X + 5])
            A(f"v_lshl_add_u32 {vr(V_KA+s)}, {vr(X+5)}, 4, {vr(X+3)}", [X + 5, X + 3], [V_KA + s])
        A(f"v_and_b32 {vr(X+5)}, 15, {vr(key)}", [key], [X + 5])
        A(f"v_lshlrev_b32 {vr(X+6)}, 8, {vr(X+5)}", [X + 5], [X + 6])
        A(f"v_bfe_u32 {vr(X+7)}, {vr(key)}, 4, 1", [key], [X + 7])
        A(f"v_lshl_add_u32 {vr(X+6)}, {vr(X+7)}, 14, {vr(X+6)}", [X + 7, X + 6], [X + 6])
        A(f"v_add_u32 {vr(V_QBASE)}, s{S_W4K}, {vr(X+6)}", [X + 6], [V_QBASE])
        A(f"v_and_b32 {vr(X+6)}, 3, {vr(key)}", [key], [X + 6])
        A(f"v_lshlrev_b32 {vr(X+6)}, 2, {vr(X+6)}", [X + 6], [X + 6])
        P.add(valu(f"v_cmp_ne_u32 vcc, 0, {vr(X+7)}", {f"v{X+7}"}, {"vcc"}))
        P.add(valu(f"v_cndmask_b32 {vr(X+5)}, {vr(X+5)}, {vr(X+6)}, vcc", {f"v{X+5}", f"v{X+6}", "vcc"}, {f"v{X+5}"}))
        A(f"v_xor_b32 {vr(V_QXOR)}, {vr(X+5)}, {vr(h)}", [X + 5, h], [V_QXOR])
        r_, cq, dsel = X + 4, X + 5, X + 6
        A(f"v_bfe_u32 {vr(r_)}, {vr(lane)}, 2, 2", [lane], [r_])
        A(f"v_and_b32 {vr(cq)}, 3, {vr(lane)}", [lane], [cq])
        A(f"v_bfe_u32 {vr(dsel)}, {vr(lane)}, 4, 1", [lane], [dsel])
        A(f"v_lshl_add_u32 {vr(X+7)}, {vr(h)}, 2, {vr(r_)}", [h, r_], [X + 7])
        A(f"v_lshlrev_b32 {vr(X+7)}, 8, {vr(X+7)}", [X + 7], [X + 7])
        A(f"v_lshl_add_u32 {vr(X+7)}, {vr(dsel)}, 5, {vr(X+7)}", [dsel, X + 7], [X + 7])
        A(f"v_lshl_add_u32 {vr(X+7)}, {vr(cq)}, 3, {vr(X+7)}", [cq, X + 7], [X + 7])
        A(f"v_add_u32 {vr(X+7)}, 16384, {vr(X+7)}", [X + 7], [X + 7])
        for dt in range(4):
            A(f"v_xor_b32 {vr(X+8)}, {dt}, {vr(r_)}", [r_], [X + 8])
            A(f"v_lshl_add_u32 {vr(V_VA+dt)}, {vr(X+8)}, 6, {vr(X+7)}", [X + 8, X + 7], [V_VA + dt])
        for i in range(32):
            P.add(V(f"v_mov_b32 {vr(V_VF+i)}, 0", [], [V_VF + i]))
    S(f"s_cmp_lg_u32 s{S_ROLE}, 0"); P.add(other("s_cbranch_scc1 L_pro_B"))
    for typ in ("A", "B"):
        if typ == "B": P.add(label("L_pro_B"))
        nq = 3 if typ == "A" else 2
        qlist(typ)
        for e in range(2):
            P.add(set_q(S_Q2 + e)); P.add(sum(entry_issue(), []))
        rest()
        P.add(q_setup_pre())
        later = []
        if typ == "A":
            later.append(set_q(S_Q2 + 2) + sum(entry_issue(), []))
        later.append(set_kv() + sum(entry_issue(), []) + kv_next())
        later.append(sum(entry_issue(), []) + kv_next())
        for t in range(nq):
            P.add(other(f"s_waitcnt vmcnt({8 if t < 2 else 8})"))
            hd, body = q_setup_tile(typ, t)
            P.add(hd)
            if t < len(later):
                ops = later[t]
                P.add(weave(body, pieces_of(ops), 0.0, 0.9))
            else:
                P.add(body)
        qlist("B" if typ == "A" else "A")
        P.add(other("s_waitcnt vmcnt(8)"))
        P.add(other("s_barrier"))
        stamp(P, 1)
        P.add(other(f"s_branch L_go_{typ}"))
    P.add(label("L_go_A"))
    S(f"s_and_b32 s{S_T0}, s{S_W}, 1"); S(f"s_cmp_lg_u32 s{S_T0}, 0")
    P.add(other("s_cbranch_scc1 L_item_A1")); P.add(other("s_branch L_item_A0"))
    P.add(label("L_go_B")); P.add(other("s_branch L_item_B"))

def main():
    P = Prog()
    prologue(P)
    item_code(P, "A", 0)
    item_code(P, "A", 1)
    item_code(P, "B", 0)
    P.add(label("L_fin"))
    stamp_out(P)
    P.add(label("L_done")); P.add(other("s_endpgm"))
    for blk in outline:
        P.add(blk)
    for st, ro, rt in stubs:
        P.add(label(st)); P.add(other(f"s_call_b64 s[{S_RET}:{S_RET+1}], {ro}")); P.add(other(f"s_branch {rt}"))
    used = sorted(set(ro for _, ro, _ in stubs))
    for ro in used:
        _, _, t, sb = ro.split("_")
        slow_routine(P, int(t), int(sb))
    head = open("standalone__gqa_softmax__near_ridge.s.ref").read().split("; @launch")[0]
    out = head + "; @launch grid=(256,1,1) block=(256,1,1) lds=163840\n"
    out += '.amdgcn_target "amdgcn-amd-amdhsa--gfx950"\n.text\n.globl %s\n.p2align 8\n.type %s,@function\n%s:\n' % (NAME, NAME, NAME)
    out += P.text() + "\n"
    out += '''.section .rodata,"a"
.p2align 6
.amdhsa_kernel %s
  .amdhsa_next_free_vgpr 512
  .amdhsa_next_free_sgpr 100
  .amdhsa_accum_offset 256
  .amdhsa_group_segment_fixed_size 0
  .amdhsa_kernarg_size 48
  .amdhsa_user_sgpr_count 2
  .amdhsa_user_sgpr_kernarg_segment_ptr 1
  .amdhsa_system_sgpr_workgroup_id_x 1
.end_amdhsa_kernel
''' % NAME
    open(sys.argv[1] if len(sys.argv) > 1 else "k2.s", "w").write(out)

main()
```

```python
import sys, math, struct

OPT = dict(
    ld_nt=True, st_nt=False, ldf='nt', stf='',
    no_sm=False, no_lds=False, no_exp=False, no_chk=False, no_dma=False, no_mfma=False, stamp=0, no_bar=False, no_sc=False, barstat=0, pvdt=False, dbg=False,
)
for a in sys.argv[2:]:
    k, v = a.split("=")
    OPT[k] = type(OPT[k])(int(v)) if not isinstance(OPT[k], str) else v

NAME = "standalone__gqa_softmax__near_ridge_kernel"
QBYTES = 37748736
KBYTES = 33554432
SLOT = 32768

def f32bits(x):
    return struct.unpack("<I", struct.pack("<f", x))[0]

V_Q0 = 0
V_NB = 32
V_FREE = 80
V_KF = 96
V_VF = 128
V_S = 160
V_P = 192
V_T = 208
V_L = 219
V_TS = 222
V_KA = 223
V_VA = 231
V_DK = 235
V_DV = 239
V_QBASE = 240
V_QXOR = 241
V_X = 242
V_TC = 253
V_LANE8 = 254
V_LANE16 = 255
A_O = 0
A_Q1 = 192
S_WG, S_W = 2, 3
S_PQ, S_PK, S_PV, S_PO = 4, 6, 8, 10
S_E1, S_E2, SRD_O = 12, 16, 24
S_O1, S_O2 = 20, 21
S_C = 28
S_LO, S_RANGE = 29, 22
S_RET = 30
S_N = 32
S_KV = 33
S_M0 = 34
S_RB = 35
S_DELTA = 36
S_QA = 37
S_QH = 38
S_QB = 39
S_KVN = 40
S_QPOS = 41
S_QLEFT = 42
S_ROLE = 43
S_ITEM = 44
S_T0, S_T1, S_T2 = 45, 46, 47
S_Q2 = 48
S_KCUR, S_VCUR = 51, 52
S_XME, S_XPART = 53, 54
S_W4K = 55
S_HI = 56
S_P0, S_P1, S_P2 = 60, 61, 62
S_MASK = 63
S_MSK1 = 23
S_SO = 96
S_C2 = 94
S_RHI, S_RSPAN = 40, 41
S_DRL, S_DRG, S_DRK, S_IMG1 = 42, 53, 61, 62
S_STAMP = 64

def vr(b, n=1):
    return f"v{b}" if n == 1 else f"v[{b}:{b+n-1}]"
def ar(b, n=1):
    return f"a{b}" if n == 1 else f"a[{b}:{b+n-1}]"
def rs(p, b, n):
    return {f"{p}{i}" for i in range(b, b + n)}

class Ins:
    __slots__ = ("text", "kind", "rd", "wr", "cost", "srcc", "tag", "skip", "likely")
    def __init__(self, text, kind, rd=(), wr=(), cost=4, srcc=(), tag=None):
        self.text, self.kind, self.rd, self.wr, self.cost, self.srcc, self.tag = text, kind, set(rd), set(wr), cost, set(srcc), tag
        self.skip = False
        self.likely = True

def R(kind, b, n=1):
    return (vr(b, n) if kind == "v" else ar(b, n)), rs(kind, b, n)

def mfma(dk, d, ak, a, bk, b, czero=False, cblk=None):
    dt, ds_ = R(dk, d, 16); at, as_ = R(ak, a, 4); bt, bs_ = R(bk, b, 4)
    if cblk is not None:
        c, cs = R(dk, cblk, 16)
    elif czero:
        c, cs = "0", set()
    else:
        c, cs = dt, ds_
    return Ins(f"v_mfma_f32_32x32x16_bf16 {dt}, {at}, {bt}, {c}", "mfma", as_ | bs_ | cs, ds_, 8, srcc=cs)
def valu(text, rd, wr, trans=False, cost=None):
    return Ins(text, "trans" if trans else "valu", rd, wr, cost or (8 if trans else 4))
def salu(text, rd=(), wr=()):
    return Ins(text, "salu", rd, wr, 4)
def other(text, cost=4):
    return Ins(text, "other", (), (), cost)
def label(name):
    return Ins(name + ":", "label", (), (), 0)
def V(text, rd, wr, **kw):
    return valu(text, {f"v{r}" for r in rd}, {f"v{w}" for w in wr}, **kw)
def perm(a, b):
    return Ins(f"v_permlane32_swap_b32 {vr(a)}, {vr(b)}", "perm", {f"v{a}", f"v{b}"}, {f"v{a}", f"v{b}"})

class Prog:
    def __init__(self):
        self.ins = []
        self.ldsq = []
    def states_back(self, inrun=False):
        d = 0
        for i in reversed(self.ins):
            if i.kind == "label":
                inrun = False
                continue
            yield i, d
            if not i.skip:
                inrun = False
            if i.skip and not inrun:
                continue
            if i.text.startswith("s_nop"):
                d += int(i.text.split()[1]) + 1
            else:
                d += 1
            if d > 24:
                return
    def need(self, x):
        n = 0
        for p, d in self.states_back(x.skip):
            req = 0
            if p.kind == "mfma":
                if x.kind == "mfma":
                    if p.wr & (x.rd - x.srcc): req = 12
                    elif (p.wr & x.srcc) and (p.wr != x.srcc): req = 10
                    elif (p.wr & x.wr) and not (p.wr & x.srcc): req = 12
                elif x.kind in ("valu", "trans", "lds", "vmem", "perm"):
                    if p.wr & (x.rd | x.wr): req = 12
                    if x.kind in ("valu", "trans", "perm") and (p.srcc & x.wr): req = max(req, 7)
            elif p.kind in ("valu", "trans", "perm"):
                if x.kind == "mfma" and (p.wr & x.rd): req = 2
                if x.kind == "perm" and (p.wr & x.rd): req = 2
                if p.kind == "perm" and x.kind in ("valu", "trans") and (p.wr & x.rd): req = max(req, 2)
                if p.kind == "trans" and x.kind in ("valu", "perm") and (p.wr & x.rd): req = max(req, 1)
                if x.kind in ("valu", "trans") and any(r.startswith("s") or r == "vcc" for r in (p.wr & x.rd)): req = max(req, 2)
                if x.kind == "vmem" and any(r.startswith("s") for r in (p.wr & x.rd)): req = max(req, 5)
                if x.kind == "rfl" and (p.wr & x.rd): req = max(req, 1)
            elif p.kind == "rfl":
                if x.kind in ("valu", "trans") and (p.wr & x.rd): req = 2
                if x.kind == "vmem" and (p.wr & x.rd): req = 5
                if x.kind == "salu" and (p.wr & x.rd): req = 2
            elif p.kind == "vmem" and p.tag == "store":
                if x.kind in ("valu", "trans", "perm", "lds") and (p.rd & x.wr): req = 2
            elif p.kind == "salu" and "m0" in p.wr:
                if x.kind == "vmem" and "m0" in x.rd: req = 1
            if req > d:
                n = max(n, req - d)
        return n
    def add(self, x):
        if isinstance(x, (list, tuple)):
            for y in x: self.add(y)
            return
        if x.text == "s_waitcnt lgkmcnt(0)":
            self.ins.append(x); self.ldsq = []
            return
        if x.kind in ("mfma", "valu", "trans", "vmem", "perm", "lds"):
            use = x.rd | x.wr
            last = -1
            for i, (dst, tg) in enumerate(self.ldsq):
                if dst & use: last = i
            if last >= 0 and self.ldsq[last][1] is not None and x.kind == "mfma":
                tg = self.ldsq[last][1]
                while last + 1 < len(self.ldsq) and self.ldsq[last + 1][1] == tg: last += 1
            if last >= 0:
                n = len(self.ldsq) - 1 - last
                n = min(n, 15)
                self.ins.append(other(f"s_waitcnt lgkmcnt({n})"))
                self.ldsq = self.ldsq[len(self.ldsq) - n:] if n else []
        n = self.need(x)
        while n > 0:
            k = min(n, 16)
            self.ins.append(other(f"s_nop {k-1}", 4 * k))
            self.ins[-1].skip = x.skip
            n -= k
        self.ins.append(x)
        if x.kind == "lds":
            self.ldsq.append((set(x.wr), x.tag))
    def lgkm0(self):
        self.add(other("s_waitcnt lgkmcnt(0)"))
    def text(self):
        return "\n".join(i.text if i.kind == "label" else "    " + i.text for i in self.ins)

class L:
    def __init__(self): self.ins = []
    def add(self, x):
        if isinstance(x, (list, tuple)):
            for y in x: self.add(y)
        else: self.ins.append(x)
    def lgkm0(self): self.add(other("s_waitcnt lgkmcnt(0)"))

def weave(stream, extras, lead=0.05, end=0.95):
    tot = sum(x.cost for x in stream) or 1
    out = []; acc = 0; k = 0; n = len(extras)
    for x in stream:
        while k < n and acc >= tot * (lead + (end - lead) * k / max(1, n)):
            out += extras[k]; k += 1
        out.append(x); acc += x.cost
    while k < n:
        out += extras[k]; k += 1
    return out

def cond(ops, likely=False):
    for o in ops:
        o.skip = True; o.likely = likely
    return ops
lbl_n = [0]
def newlbl(p="L"):
    lbl_n[0] += 1
    return f"{p}{lbl_n[0]}"

def q_reg(typ, t):
    return ("v", V_Q0) if t == 0 else ("a", A_Q1 + 32 * (t - 1))

def qk_group(typ, t, sb):
    qk, qb = q_reg(typ, t)
    return [mfma("v", V_S + 16 * sb, "v", V_KF + 4 * s, qk, qb + 4 * s, cblk=(V_NB + 16 * t if s == 0 else None)) for s in range(8)]

def pv_order():
    return [(dt, ks) for dt in range(4) for ks in range(2)] if OPT["pvdt"] else [(dt, ks) for ks in range(2) for dt in range(4)]

def pv_group(t, pb):
    return [mfma("a", A_O + 64 * t + 16 * dt, "v", V_VF + 8 * dt + 4 * ks, "v", V_P + 8 * pb + 4 * ks) for dt, ks in pv_order()]

def k_load(s, sub):
    return Ins(f"ds_read_b128 {vr(V_KF+4*s,4)}, {vr(V_KA+s)} offset:{sub*8192}", "lds", {f"v{V_KA+s}"}, rs("v", V_KF + 4 * s, 4), 6, tag="K")

def v_load(dt, ks, e4, sub):
    d = V_VF + 8 * dt + 4 * ks + 2 * e4
    return Ins(f"ds_read_b64_tr_b16 {vr(d,2)}, {vr(V_VA+dt)} offset:{sub*8192+ks*4096+e4*2048}", "lds", {f"v{V_VA+dt}"}, rs("v", d, 2), 4, tag="V")

def softmax_ops(t, sb, with_cmp=True, sub=None):
    S = V_S + 16 * sb; P = V_P + 8 * sb; T = V_T; ts = V_TS
    ops = []; tail = []
    for k in range(19):
        if k < 16:
            if sub is not None:
                ops.append(V(f"v_sub_f32 {vr(T+k%8)}, {vr(S+k)}, {vr(sub)}", [S + k, sub], [T + k % 8]))
                ops.append(V(f"v_exp_f32 {vr(T+k%8)}, {vr(T+k%8)}", [T + k % 8], [T + k % 8], trans=True))
            else:
                ops.append(V(f"v_exp_f32 {vr(T+k%8)}, {vr(S+k)}", [S + k], [T + k % 8], trans=True))
        r = k - 2
        if 1 <= r < 16:
            if r == 1:
                ops.append(V(f"v_add_f32 {vr(ts)}, {vr(T)}, {vr(T+1)}", [T, T + 1], [ts]))
            else:
                ops.append(V(f"v_add_f32 {vr(ts)}, {vr(ts)}, {vr(T+r%8)}", [ts, T + r % 8], [ts]))
            if r % 2 == 1:
                a, b = T + (r - 1) % 8, T + r % 8
                c = V(f"v_cvt_pk_bf16_f32 {vr(P+r//2)}, {vr(a)}, {vr(b)}", [a, b], [P + r // 2], cost=5)
                (tail if r >= 11 else ops).append(c)
    if with_cmp:
        ops.append(V(f"v_subrev_u32 {vr(V_TC)}, s{S_LO}, {vr(ts)}", [ts], [V_TC]))
        ops.append(valu(f"v_cmp_lt_u32 vcc, s{S_RANGE}, {vr(V_TC)}", {f"v{V_TC}"}, {"vcc"}))
    return ops + tail

stubs = []
site_n = [0]
def check_ops(t, sb):
    k = site_n[0]; site_n[0] += 1
    stubs.append((f"L_stub{k}", f"L_slow_{t}_{sb}", f"L_ret{k}"))
    return [other(f"s_cbranch_vccnz L_stub{k}", 10),
            label(f"L_ret{k}"),
            V(f"v_add_f32 {vr(V_L+t)}, {vr(V_L+t)}, {vr(V_TS)}", [V_L + t, V_TS], [V_L + t])]

def entry_issue():
    nt = (" " + OPT["ldf"].replace("_", " ")) if OPT["ldf"] else ""
    u = []
    for half, (e, so) in enumerate(((S_E1, S_O1), (S_E2, S_O2))):
        for a in range(4):
            vo = V_DK + a if half == 0 else V_DV
            x = []
            if a == 0:
                x.append(salu(f"s_mov_b32 m0, s{S_M0}", (), {"m0"}) if half == 0 else salu(f"s_add_u32 m0, s{S_M0}, 16384", (), {"m0"}))
            x.append(Ins(f"buffer_load_dwordx4 {vr(vo)}, s[{e}:{e+3}], s{so} offen offset:{a*1024}{nt} lds", "vmem", {f"v{vo}", "m0"}, (), 8))
            u.append(x)
    u.append([salu(f"s_add_u32 s{S_M0}, s{S_M0}, {SLOT}"),
              salu(f"s_cmp_ge_u32 s{S_M0}, s{S_RHI}"),
              salu(f"s_cselect_b32 s{S_P0}, s{S_RSPAN}, 0"),
              salu(f"s_sub_u32 s{S_M0}, s{S_M0}, s{S_P0}")])
    return u

def kv_next():
    return [salu(f"s_add_u32 s{S_O1}, s{S_O1}, 16384"), salu(f"s_add_u32 s{S_O2}, s{S_O2}, 16384")]

def set_q(sreg):
    return [salu(f"s_mov_b64 s[{S_E1}:{S_E1+1}], s[{S_PQ}:{S_PQ+1}]"), salu(f"s_mov_b64 s[{S_E2}:{S_E2+1}], s[{S_PQ}:{S_PQ+1}]"),
            salu(f"s_mov_b32 s{S_E1+2}, {QBYTES}"), salu(f"s_mov_b32 s{S_E2+2}, {QBYTES}"),
            salu(f"s_mov_b32 s{S_O1}, s{sreg}"), salu(f"s_add_u32 s{S_O2}, s{sreg}, 4096")]

def set_kv():
    return [salu(f"s_mov_b64 s[{S_E1}:{S_E1+1}], s[{S_PK}:{S_PK+1}]"), salu(f"s_mov_b64 s[{S_E2}:{S_E2+1}], s[{S_PV}:{S_PV+1}]"),
            salu(f"s_mov_b32 s{S_E1+2}, 262144"), salu(f"s_mov_b32 s{S_E2+2}, 262144"),
            salu(f"s_mov_b32 s{S_O1}, s{S_KV}"), salu(f"s_mov_b32 s{S_O2}, s{S_KV}")]

outline = []
def drain_read():
    A = V_X + 10
    return [V(f"v_add_u32 {vr(A)}, s{S_DRL}, {vr(V_LANE16)}", [V_LANE16], [A])] + \
           [Ins(f"ds_read_b128 {vr(V_FREE+4*a,4)}, {vr(A)} offset:{a*1024}", "other") for a in range(4)]

def drain_store(back):
    nt = (" " + OPT["stf"].replace("_", " ")) if OPT["stf"] else ""
    lodd = newlbl("L_do")
    def st(vo): return [Ins(f"buffer_store_dwordx4 {vr(V_FREE+4*a,4)}, {vr(vo(a))}, s[{SRD_O}:{SRD_O+3}], s{S_DRG} offen offset:{a*1024}{nt}", "other") for a in range(4)]
    return [other("s_waitcnt lgkmcnt(0)"), salu(f"s_bitcmp1_b32 s{S_DRK}, 0"), other(f"s_cbranch_scc1 {lodd}")] + \
           st(lambda a: V_DK + a) + [salu(f"s_add_u32 s{S_DRL}, s{S_DRL}, 16384"), salu(f"s_add_u32 s{S_DRG}, s{S_DRG}, 4096"),
                                     salu(f"s_add_u32 s{S_DRK}, s{S_DRK}, 1"), other(f"s_branch {back}"), label(lodd)] + \
           st(lambda a: V_DV) + [salu(f"s_mov_b32 s{S_DRL}, s{S_IMG1}"), salu(f"s_add_u32 s{S_DRG}, s{S_DRG}, 4096"),
                                 salu(f"s_add_u32 s{S_DRK}, s{S_DRK}, 1"), other(f"s_branch {back}")]

DR0 = 8
def special_site(typ):
    lo, lr = newlbl("L_sp"), newlbl("L_spr")
    nq2 = 2 if typ == "A" else 3
    blk = [label(lo)]
    def case(p, ops):
        l = newlbl("L_c")
        return [salu(f"s_cmp_lg_u32 s{S_N}, {p}"), other(f"s_cbranch_scc1 {l}")] + ops + [other(f"s_branch {lr}"), label(l)]
    blk += case(3, [salu(f"s_mov_b32 s{S_KV}, s{S_O1}")] + set_q(S_Q2))
    for j in range(1, nq2):
        blk += case(3 + j, set_q(S_Q2 + j))
    blk += case(3 + nq2, set_kv())
    lo_off = [salu(f"s_mov_b32 s{S_LO}, 0"), salu(f"s_mov_b32 s{S_RANGE}, s{S_HI}")]
    blk += case(2, lo_off)
    blk += case(10, [salu(f"s_mov_b32 s{S_LO}, 0"), salu(f"s_mov_b32 s{S_RANGE}, s{S_HI}")] + drain_read())
    blk += drain_read() + [other(f"s_branch {lr}")]
    outline.append(blk)
    msk = S_HI + 2 if typ == "A" else S_HI + 1
    return kv_next() + [salu(f"s_bitcmp1_b32 s{msk}, s{S_N}"), other(f"s_cbranch_scc1 {lo}", 10), label(lr)]

def extra_site(first):
    lo, lr = newlbl("L_ex"), newlbl("L_exr")
    blk = [label(lo)]
    if first:
        l = newlbl("L_c")
        blk += [salu(f"s_cmp_lt_u32 s{S_N}, 2"), other(f"s_cbranch_scc1 {l}")] + drain_store(lr) + [label(l)]
    blk += sum(entry_issue(), []) + kv_next() + [other(f"s_branch {lr}")]
    outline.append(blk)
    return [salu(f"s_bitcmp1_b32 s{S_HI+3 if not first else S_MSK1}, s{S_N}"), other(f"s_cbranch_scc1 {lo}", 10), label(lr)]

def rb_advance():
    return [salu(f"s_add_u32 s{S_RB}, s{S_RB}, {SLOT}"),
            salu(f"s_cmp_ge_u32 s{S_RB}, s{S_RHI}"),
            salu(f"s_cselect_b32 s{S_T1}, s{S_RSPAN}, 0"),
            salu(f"s_sub_u32 s{S_RB}, s{S_RB}, s{S_T1}")]

def rebase(base, n, sreg=S_DELTA):
    return [V(f"v_add_u32 {vr(base+i)}, s{sreg}, {vr(base+i)}", [base + i], [base + i]) for i in range(n)]

def build_body(P, typ, steps):
    n = len(steps)
    assert n % 2 == 0
    def st(k): return steps[k % n]
    groups = []
    for k in range(n):
        r, sub, t = st(k - 1)
        groups.append(dict(mf=pv_group(t, (k - 1) % 2), fixed=[[] for _ in range(8)], pre=[], kind="pv", k=k - 1))
        r, sub, t = st(k + 1)
        groups.append(dict(mf=qk_group(typ, t, (k + 1) % 2), fixed=[[] for _ in range(8)], pre=[], kind="qk", k=k + 1))
    ng = len(groups)
    def step_id(k):
        r, sub, t = st(k)
        return (k // n, r, sub)
    bar_groups = []
    for gi, g in enumerate(groups):
        j = g["k"]
        if g["kind"] == "pv" and step_id(j + 1) != step_id(j):
            nsub = st(j + 1)[1]
            if nsub == 0:
                g["pre"] += rebase(V_VA, 4)
            for m, (dt, ks) in enumerate(pv_order()):
                g["fixed"][m] += [v_load(dt, ks, 0, nsub), v_load(dt, ks, 1, nsub)]
        if g["kind"] == "qk" and step_id(j + 1) != step_id(j):
            nsub = st(j + 1)[1]
            if nsub == 1:
                for s in range(8):
                    g["fixed"][s] += [k_load(s, 1)]
            else:
                bar_groups.append((gi + 1) % ng)
                adv = rb_advance() + [salu(f"s_sub_u32 s{S_DELTA}, s{S_RB}, s{S_KCUR}"), salu(f"s_mov_b32 s{S_KCUR}, s{S_RB}"),
                                      salu(f"s_mov_b32 s{S_VCUR}, s{S_RB}"), salu(f"s_add_u32 s{S_N}, s{S_N}, 1")]
                g["fixed"][0] += adv[:4]; g["fixed"][1] += adv[4:]
                rb = rebase(V_KA, 8)
                for i in range(8):
                    g["fixed"][2 + i * 6 // 8] += [rb[i]]
    nx = 2
    for bi, gi in enumerate(bar_groups):
        g = groups[gi]
        if OPT["barstat"]:
            lw, lwr = newlbl("L_bw"), newlbl("L_bwr")
            outline.append([label(lw), other("s_waitcnt vmcnt(8)"), other(f"s_branch {lwr}")])
            cmpi = f"s_cmp_ge_u32 s{S_N}, 9" if OPT["barstat"] == 1 else f"s_cmp_lt_u32 s{S_N}, 9"
            g["pre"] = [other("s_waitcnt lgkmcnt(0)"), other("s_memtime s[88:89]"), other("s_waitcnt lgkmcnt(0)"),
                        salu(f"s_bitcmp1_b32 s{S_HI+3}, s{S_N}"), other(f"s_cbranch_scc1 {lw}", 10), other("s_waitcnt vmcnt(24)"), label(lwr),
                        other("s_memtime s[90:91]"), other("s_waitcnt lgkmcnt(0)"), other("s_barrier"), other("s_memtime s[92:93]"), other("s_waitcnt lgkmcnt(0)"),
                        salu("s_sub_u32 s88, s90, s88"), salu("s_sub_u32 s90, s92, s90"),
                        salu(cmpi), salu("s_cselect_b32 s88, s88, 0"), salu("s_cselect_b32 s90, s90, 0"),
                        salu("s_add_u32 s86, s86, s88"), salu("s_add_u32 s87, s87, s90")] + g["pre"]
        else:
            lw, lwr = newlbl("L_bw"), newlbl("L_bwr")
            outline.append([label(lw), other("s_waitcnt vmcnt(8)"), other(f"s_branch {lwr}")])
            g["pre"] = [other("s_waitcnt lgkmcnt(0)"), salu(f"s_bitcmp1_b32 s{S_HI+3}, s{S_N}"), other(f"s_cbranch_scc1 {lw}", 10),
                        other("s_waitcnt vmcnt(24)"), label(lwr), other("s_barrier")] + g["pre"]
        for s_ in range(8):
            g["fixed"][s_ // 3] += [k_load(s_, 0)]
        last = (bi == len(bar_groups) - 1)
        e = entry_issue()
        units = [e[0] + e[1], e[2] + e[3], e[4] + e[5], e[6] + e[7], e[8], special_site(typ)]
        units = [extra_site(True)] + units
        slots = []
        cnt = (bar_groups[(bi + 1) % len(bar_groups)] - gi) % ng or ng
        for off in range(cnt):
            idx = (gi + off) % ng
            gg = groups[idx]
            if last and idx >= gi: continue
            if gg["kind"] == "pv":
                sl = [4] if off == 0 else [0, 1]
            else:
                sl = [3] if off + 1 < cnt else []
            slots += [(gg, i) for i in sl]
        assign = [[] for _ in slots]
        for ui, u_ in enumerate(units):
            assign[min(len(slots) - 1, ui * len(slots) // len(units))] += u_
        for (gg, i), blk in zip(slots, assign):
            gg["fixed"][i] += blk
    for k in range(n):
        r, sub, t = st(k)
        ops = softmax_ops(t, k % 2)
        g0, g1 = groups[2 * k], groups[2 * k + 1]
        gaps = [(g0, i) for i in range(2, 8)] + [(g1, i) for i in range(8)]
        fixed = [sum(x.cost for x in g["fixed"][i] if x.likely) for g, i in gaps]
        tot = sum(x.cost for x in ops) + 14 + sum(fixed)
        per = tot / len(gaps)
        cum = 0.0; placed = 0.0; oi = 0
        for gi, (g, i) in enumerate(gaps):
            cum += per
            placed += fixed[gi]
            lst = g.setdefault("flex", [[] for _ in range(8)])[i]
            while oi < len(ops) and (placed + ops[oi].cost / 2 <= cum or gi == len(gaps) - 1):
                lst.append(ops[oi]); placed += ops[oi].cost; oi += 1
        g1["flex"][7] += check_ops(t, k % 2)
    for gi, g in enumerate(groups):
        P.add([x for x in g["pre"] if not (OPT["no_bar"] and ("barrier" in x.text or "vmcnt" in x.text))])
        for i in range(8):
            if not OPT["no_mfma"]: P.add(g["mf"][i])
            fx = g["fixed"][i]
            if OPT["no_sc"]: fx = [x for x in fx if not (x.text.startswith("s_cbranch") or x.text.startswith("s_bitcmp"))]
            if OPT["no_lds"]: fx = [x for x in fx if x.kind != "lds"]
            if OPT["no_dma"]: fx = [x for x in fx if x.kind != "vmem"]
            P.add(fx)
            fl = g.get("flex", [[] for _ in range(8)])[i]
            if OPT["no_sm"]: fl = [x for x in fl if x.kind == "label"]
            if OPT["no_exp"]: fl = [x for x in fl if x.kind != "trans"]
            if OPT["no_chk"]: fl = [x for x in fl if "vcc" not in x.text]
            P.add(fl)

def slow_routine(P, t, sb):
    S = V_S + 16 * sb; nb = V_NB + 16 * t; X = V_X
    P.add(label(f"L_slow_{t}_{sb}"))
    P.add(other("s_nop 15", 64))
    P.add(V(f"v_max3_f32 {vr(X)}, {vr(S)}, {vr(S+1)}, {vr(S+2)}", [S, S + 1, S + 2], [X]))
    for i in range(3, 15, 2):
        P.add(V(f"v_max3_f32 {vr(X)}, {vr(X)}, {vr(S+i)}, {vr(S+i+1)}", [X, S + i, S + i + 1], [X]))
    P.add(V(f"v_max_f32 {vr(X)}, {vr(X)}, {vr(S+15)}", [X, S + 15], [X]))
    P.add(V(f"v_mov_b32 {vr(X+1)}, {vr(X)}", [X], [X + 1]))
    P.add(perm(X, X + 1))
    P.add(V(f"v_max_f32 {vr(X)}, {vr(X)}, {vr(X+1)}", [X, X + 1], [X]))
    P.add(V(f"v_mov_b32 {vr(X+2)}, {vr(V_L+t)}", [V_L + t], [X + 2]))
    P.add(V(f"v_mov_b32 {vr(X+3)}, {vr(V_L+t)}", [V_L + t], [X + 3]))
    P.add(perm(X + 2, X + 3))
    P.add(V(f"v_add_f32 {vr(X+2)}, {vr(X+2)}, {vr(X+3)}", [X + 2, X + 3], [X + 2]))
    P.add(valu(f"v_cmp_neq_f32 vcc, 0, {vr(X+2)}", {f"v{X+2}"}, {"vcc"}))
    P.add(V(f"v_max_f32 {vr(X+3)}, 0, {vr(X)}", [X], [X + 3]))
    P.add(valu(f"v_cndmask_b32 {vr(X)}, {vr(X)}, {vr(X+3)}, vcc", {f"v{X}", f"v{X+3}", "vcc"}, {f"v{X}"}))
    P.add(V(f"v_exp_f32 {vr(X+1)}, -{vr(X+3)}", [X + 3], [X + 1], trans=True))
    for i in range(16):
        P.add(V(f"v_sub_f32 {vr(nb+i)}, {vr(nb+i)}, {vr(X)}", [nb + i, X], [nb + i]))
    P.add(V(f"v_mul_f32 {vr(V_L+t)}, {vr(V_L+t)}, {vr(X+1)}", [V_L + t, X + 1], [V_L + t]))
    l = newlbl("L_sk")
    P.add(other(f"s_cbranch_vccz {l}"))
    for i in range(0, 64, 4):
        for j in range(4):
            P.add(valu(f"v_accvgpr_read_b32 {vr(X+4+j)}, {ar(A_O+64*t+i+j)}", {f"a{A_O+64*t+i+j}"}, {f"v{X+4+j}"}))
        for j in range(4):
            P.add(V(f"v_mul_f32 {vr(X+4+j)}, {vr(X+4+j)}, {vr(X+1)}", [X + 4 + j, X + 1], [X + 4 + j]))
        for j in range(4):
            P.add(valu(f"v_accvgpr_write_b32 {ar(A_O+64*t+i+j)}, {vr(X+4+j)}", {f"v{X+4+j}"}, {f"a{A_O+64*t+i+j}"}))
    P.add(label(l))
    P.add(softmax_ops(t, sb, with_cmp=False, sub=X))
    P.add(other("s_nop 3", 16))
    P.add(other(f"s_setpc_b64 s[{S_RET}:{S_RET+1}]"))

def stamp(P, idx_expr):
    if not OPT["stamp"]: return
    if OPT["stamp"] == 2 and idx_expr not in (0, 10): return
    if isinstance(idx_expr, int):
        P.add(other(f"s_memtime s[{S_STAMP+2*idx_expr}:{S_STAMP+2*idx_expr+1}]"))
        P.add(other("s_waitcnt lgkmcnt(0)"))
    else:
        base = idx_expr[1]
        l1, l2 = newlbl("L_st"), newlbl("L_st")
        P.add(salu(f"s_cmp_lg_u32 s{S_ITEM}, 0")); P.add(other(f"s_cbranch_scc1 {l1}"))
        P.add(other(f"s_memtime s[{S_STAMP+2*base}:{S_STAMP+2*base+1}]")); P.add(other(f"s_branch {l2}"))
        P.add(label(l1)); P.add(other(f"s_memtime s[{S_STAMP+2*(base+4)}:{S_STAMP+2*(base+4)+1}]"))
        P.add(label(l2)); P.add(other("s_waitcnt lgkmcnt(0)"))

def stamp_out(P):
    if not OPT["stamp"]: return
    P.add(other("s_waitcnt vmcnt(0)"))
    stamp(P, 10)
    if not OPT["barstat"]:
        P.add(other("s_memrealtime s[90:91]")); P.add(other("s_waitcnt lgkmcnt(0)"))
        P.add(salu("s_mov_b32 s86, s88")); P.add(salu("s_mov_b32 s87, s90"))
    if OPT["dbg"]:
        P.add(other("s_load_dwordx2 s[4:5], s[0:1], 32")); P.add(other("s_waitcnt lgkmcnt(0)"))
        P.add(salu("s_mov_b32 s6, 64")); P.add(salu("s_mov_b32 s7, 0x20000"))
        for i in range(10, 0, -1):
            P.add(salu(f"s_sub_u32 s{S_STAMP+2*i}, s{S_STAMP+2*i}, s{S_STAMP}"))
        P.add(salu("s_sub_u32 s87, s87, s86"))
    else:
        P.add(other("s_load_dwordx2 s[4:5], s[0:1], 40")); P.add(other("s_waitcnt lgkmcnt(0)"))
        P.add(salu("s_mov_b32 s6, 268435456")); P.add(salu("s_mov_b32 s7, 0x20000"))
    P.add(salu(f"s_lshl_b32 s8, s{S_WG}, 2")); P.add(salu(f"s_add_u32 s8, s8, s{S_W}")); P.add(salu("s_lshl_b32 s8, s8, 6"))
    P.add(valu("v_mov_b32 v1, 0", (), {"v1"}))
    for i in range(13):
        P.add(valu(f"v_mov_b32 v2, s{S_STAMP+2*i if i < 11 else 86 + i - 11}", (), {"v2"}))
        P.add(Ins(f"buffer_store_dword v2, v1, s[4:7], s8 offen offset:{4*i}", "vmem", {"v1", "v2"}, ()))
        P.add(other("s_waitcnt vmcnt(0)"))

def img_addr(P, dst, chunk_even, sbase):
    P.add(V(f"v_xor_b32 {vr(dst)}, {chunk_even}, {vr(V_QXOR)}", [V_QXOR], [dst]))
    P.add(V(f"v_lshl_add_u32 {vr(dst)}, {vr(dst)}, 4, {vr(V_QBASE)}", [dst, V_QBASE], [dst]))
    P.add(V(f"v_add_u32 {vr(dst)}, s{sbase}, {vr(dst)}", [dst], [dst]))

def q_setup_tile(typ, t, absaddr=False, clear=True):
    C = L()
    AD = V_T
    qk, qb = q_reg(typ, t)
    RAW = V_S
    if absaddr:
        C.add(image_addrs(S_RB))
        for s in range(8):
            C.add(Ins(f"ds_read_b128 {vr(RAW+4*s,4)}, {vr(AD+s)}", "lds", {f"v{AD+s}"}, rs("v", RAW + 4 * s, 4)))
    else:
        for s in range(8):
            C.add(V(f"v_add_u32 {vr(V_X+s)}, s{S_RB}, {vr(AD+s)}", [AD + s], [V_X + s]))
        for s in range(8):
            C.add(Ins(f"ds_read_b128 {vr(RAW+4*s,4)}, {vr(V_X+s)}", "lds", {f"v{V_X+s}"}, rs("v", RAW + 4 * s, 4)))
    C.add(rb_advance())
    head = C.ins; C = L()
    if clear:
        for i in range(16):
            C.add(V(f"v_mov_b32 {vr(V_NB+16*t+i)}, 0", [], [V_NB + 16 * t + i]))
        C.add(V(f"v_mov_b32 {vr(V_L+t)}, 0", [], [V_L + t]))
    TMP = V_FREE
    for r0 in range(0, 32, 4):
        if r0 % 8 == 0 and clear:
            C.add(mfma("a", A_O + 64 * t + 2 * r0, "v", V_VF, "v", V_P + 8, czero=True))
        for j in range(4):
            r = RAW + r0 + j
            C.add(V(f"v_lshlrev_b32 {vr(TMP+2*j)}, 16, {vr(r)}", [r], [TMP + 2 * j]))
            C.add(V(f"v_and_b32 {vr(TMP+2*j+1)}, s{S_MASK}, {vr(r)}", [r], [TMP + 2 * j + 1]))
        for j in range(0, 8, 2):
            C.add(V(f"v_pk_mul_f32 {vr(TMP+j,2)}, {vr(TMP+j,2)}, s[{S_C2}:{S_C2+1}]", [TMP + j, TMP + j + 1], [TMP + j, TMP + j + 1], cost=6))
        for j in range(4):
            d = qb + r0 + j if qk == "v" else TMP + 8 + j
            C.add(V(f"v_cvt_pk_bf16_f32 {vr(d)}, {vr(TMP+2*j)}, {vr(TMP+2*j+1)}", [TMP + 2 * j, TMP + 2 * j + 1], [d]))
        if qk == "a":
            for j in range(4):
                C.add(valu(f"v_accvgpr_write_b32 {ar(qb+r0+j)}, {vr(TMP+8+j)}", {f"v{TMP+8+j}"}, {f"a{qb+r0+j}"}))
    return head, C.ins

def pieces_of(ops):
    pieces = []; cur = []
    for x in ops:
        cur.append(x)
        if x.kind == "vmem": pieces.append(cur); cur = []
    pieces[-1] += cur
    return pieces

def q_setup_pre():
    C = L()
    for i in range(8):
        C.add(V(f"v_mov_b32 {vr(V_P+8+i)}, 0", [], [V_P + 8 + i]))
    for s in range(8):
        C.add(V(f"v_xor_b32 {vr(V_T+s)}, {2*s}, {vr(V_QXOR)}", [V_QXOR], [V_T + s]))
        C.add(V(f"v_lshl_add_u32 {vr(V_T+s)}, {vr(V_T+s)}, 4, {vr(V_QBASE)}", [V_T + s, V_QBASE], [V_T + s]))
    return C.ins

def item_begin(P, typ):
    P.add(salu(f"s_sub_u32 s{S_DELTA}, s{S_RB}, s{S_KCUR}")); P.add(salu(f"s_mov_b32 s{S_KCUR}, s{S_RB}"))
    P.add(rebase(V_KA, 8))
    for s in range(8): P.add(k_load(s, 0))
    P.add(salu(f"s_sub_u32 s{S_DELTA}, s{S_RB}, s{S_VCUR}")); P.add(salu(f"s_mov_b32 s{S_VCUR}, s{S_RB}"))
    lo = f32bits(2.0 ** -20); hi = f32bits(65536.0)
    P.add(salu(f"s_mov_b32 s{S_LO}, 0x{lo:08x}")); P.add(salu(f"s_mov_b32 s{S_RANGE}, 0x{hi-lo:08x}"))
    P.lgkm0()

def lsum(P, lreg, dst, X):
    P.add(V(f"v_mov_b32 {vr(X)}, {vr(lreg)}", [lreg], [X]))
    P.add(V(f"v_mov_b32 {vr(X+1)}, {vr(lreg)}", [lreg], [X + 1]))
    P.add(perm(X, X + 1))
    P.add(V(f"v_add_f32 {vr(dst)}, {vr(X)}, {vr(X+1)}", [X, X + 1], [dst]))

def pack_unit(P, t, dt, kp, scale, B, addr, addsrc=None, scale2=None, woff=0):
    a0 = A_O + 64 * t + 16 * dt + 8 * kp
    for j in range(8):
        P.add(valu(f"v_accvgpr_read_b32 {vr(B+j)}, {ar(a0+j)}", {f"a{a0+j}"}, {f"v{B+j}"}))
    for j in range(0, 8, 2):
        P.add(V(f"v_pk_mul_f32 {vr(B+j,2)}, {vr(B+j,2)}, {vr(scale,2)}", [B + j, B + j + 1, scale, scale + 1], [B + j, B + j + 1], cost=6))
    if addsrc is not None:
        for j in range(0, 8, 2):
            P.add(V(f"v_pk_fma_f32 {vr(B+j,2)}, {vr(addsrc+j,2)}, {vr(scale2,2)}, {vr(B+j,2)}",
                    [B + j, B + j + 1, addsrc + j, addsrc + j + 1, scale2, scale2 + 1], [B + j, B + j + 1], cost=6))
    for j in range(4):
        P.add(V(f"v_cvt_pk_bf16_f32 {vr(B+8+j)}, {vr(B+2*j)}, {vr(B+2*j+1)}", [B + 2 * j, B + 2 * j + 1], [B + 8 + j]))
    P.add(perm(B + 8, B + 10)); P.add(perm(B + 9, B + 11))
    P.add(Ins(f"ds_write_b128 {vr(addr)}, {vr(B+8,4)} offset:{woff}", "lds", rs("v", B + 8, 4) | {f"v{addr}"}, ()))

def image_readback(C, pieces, RB, base_sreg=None):
    X = V_X
    C.add(V(f"v_add_u32 {vr(X+8)}, s{base_sreg if base_sreg is not None else S_M0}, {vr(V_LANE16)}", [V_LANE16], [X + 8]))
    C.lgkm0()
    for i, a in enumerate(pieces):
        off = (a % 4) * 1024 + (16384 if a >= 4 else 0)
        C.add(Ins(f"ds_read_b128 {vr(RB+4*i,4)}, {vr(X+8)} offset:{off}", "lds", {f"v{X+8}"}, rs("v", RB + 4 * i, 4)))

def image_stores(pieces, RB, so_lo, so_hi):
    nt = (" " + OPT["stf"].replace("_", " ")) if OPT["stf"] else ""
    out = []
    for i, a in enumerate(pieces):
        vo = V_DK + a if a < 4 else V_DV
        so = so_lo if a < 4 else so_hi
        out.append([Ins(f"buffer_store_dwordx4 {vr(RB+4*i,4)}, {vr(vo)}, s[{SRD_O}:{SRD_O+3}], s{so} offen offset:{(a%4)*1024}{nt}", "vmem",
                        rs("v", RB + 4 * i, 4) | {f"v{vo}"}, (), 8, tag="store")])
    return out

def image_addrs(slot_sreg=None):
    C = L()
    if slot_sreg is None:
        C.add(salu(f"s_sub_u32 s{S_T0}, s{S_M0}, s{S_W4K}")); slot_sreg = S_T0
    C.add(V(f"v_add_u32 {vr(V_X+9)}, s{slot_sreg}, {vr(V_QBASE)}", [V_QBASE], [V_X + 9]))
    for u in range(8):
        C.add(V(f"v_xor_b32 {vr(V_T+u)}, {2*u}, {vr(V_QXOR)}", [V_QXOR], [V_T + u]))
        C.add(V(f"v_lshl_add_u32 {vr(V_T+u)}, {vr(V_T+u)}, 4, {vr(V_X+9)}", [V_T + u, V_X + 9], [V_T + u]))
    return C.ins

def pack_tile(t):
    C = L(); X = V_X
    lsum(C, V_L + t, X + 2, X)
    C.add(V(f"v_rcp_f32 {vr(X+2)}, {vr(X+2)}", [X + 2], [X + 2], trans=True))
    C.add(V(f"v_mov_b32 {vr(X+3)}, {vr(X+2)}", [X + 2], [X + 3]))
    u = 0
    for dt in range(4):
        for kp in range(2):
            pack_unit(C, t, dt, kp, X + 2, V_S + 12 * (u % 4), V_T + u)
            u += 1
    return C.ins

HS = V_NB + 36
def koff(u): return (u % 4) * 1024 + (16384 if u >= 4 else 0)
def h_payload(par, u):
    send = [2 * (1 - par), 2 * (1 - par) + 1]
    a0 = A_O + 128 + 16 * send[u // 4] + 4 * (u % 4)
    return Ins(f"ds_write_b128 {vr(HS+5)}, {ar(a0,4)} offset:{koff(u)}", "lds", rs("a", a0, 4) | {f"v{HS+5}"}, ())

def h1(P, par):
    X = V_X; t = 2
    P.add(salu(f"s_xor_b32 s{S_XPART}, s{S_M0}, 4096"))
    P.add(V(f"v_mov_b32 {vr(HS+6)}, {vr(V_NB+16*t)}", [V_NB + 16 * t], [HS + 6]))
    lsum(P, V_L + t, HS + 7, X)
    P.add(V(f"v_add_u32 {vr(X+4)}, s{S_XPART}, {vr(V_LANE8)}", [V_LANE8], [X + 4]))
    P.add(Ins(f"ds_write_b64 {vr(X+4)}, {vr(HS+6,2)}", "lds", {f"v{X+4}", f"v{HS+6}", f"v{HS+7}"}, ()))
    P.add(V(f"v_add_u32 {vr(HS+4)}, s{S_XPART}, {vr(V_LANE16)}", [V_LANE16], [HS + 4]))
    P.add(V(f"v_add_u32 {vr(HS+5)}, s{S_M0}, {vr(V_LANE16)}", [V_LANE16], [HS + 5]))
    for u in range(1, 8): P.add(h_payload(par, u))

def h2(P, par):
    X = V_X
    P.add(V(f"v_add_u32 {vr(X+5)}, s{S_M0}, {vr(V_LANE8)}", [V_LANE8], [X + 5]))
    P.add(Ins(f"ds_read_b64 {vr(X+6,2)}, {vr(X+5)}", "lds", {f"v{X+5}"}, {f"v{X+6}", f"v{X+7}"}))
    P.lgkm0()
    P.add(h_payload(par, 0))
    P.add(V(f"v_min_f32 {vr(X)}, {vr(HS+6)}, {vr(X+6)}", [HS + 6, X + 6], [X]))
    P.add(V(f"v_sub_f32 {vr(X+1)}, {vr(X)}, {vr(HS+6)}", [X, HS + 6], [X + 1]))
    P.add(V(f"v_sub_f32 {vr(X)}, {vr(X)}, {vr(X+6)}", [X, X + 6], [X]))
    P.add(V(f"v_exp_f32 {vr(X+1)}, {vr(X+1)}", [X + 1], [X + 1], trans=True))
    P.add(V(f"v_exp_f32 {vr(X)}, {vr(X)}", [X], [X], trans=True))
    P.add(V(f"v_mul_f32 {vr(X+3)}, {vr(HS+7)}, {vr(X+1)}", [HS + 7, X + 1], [X + 3]))
    P.add(V(f"v_fma_f32 {vr(X+3)}, {vr(X+7)}, {vr(X)}, {vr(X+3)}", [X + 7, X, X + 3], [X + 3]))
    P.add(V(f"v_rcp_f32 {vr(X+3)}, {vr(X+3)}", [X + 3], [X + 3], trans=True))
    P.add(V(f"v_mul_f32 {vr(HS+2)}, {vr(X+3)}, {vr(X)}", [X + 3, X], [HS + 2]))
    P.add(V(f"v_mul_f32 {vr(HS)}, {vr(X+3)}, {vr(X+1)}", [X + 3, X + 1], [HS]))
    P.add(V(f"v_mov_b32 {vr(HS+3)}, {vr(HS+2)}", [HS + 2], [HS + 3]))
    P.add(V(f"v_mov_b32 {vr(HS+1)}, {vr(HS)}", [HS], [HS + 1]))

def h3(P):
    for u in range(8):
        P.add(Ins(f"ds_read_b128 {vr(V_NB+4*u,4)}, {vr(HS+4)} offset:{koff(u)}", "lds", {f"v{HS+4}"}, rs("v", V_NB + 4 * u, 4)))

def h4(P, par, base):
    X = V_X; t = 2
    keep = [2 * par, 2 * par + 1]
    P.add(V(f"v_bfe_u32 {vr(X)}, {vr(V_LANE16)}, 4, 5", [V_LANE16], [X]))
    P.add(V(f"v_bfe_u32 {vr(X+1)}, {vr(V_LANE16)}, 9, 1", [V_LANE16], [X + 1]))
    P.add(V(f"v_and_b32 {vr(X+6)}, 7, {vr(X)}", [X], [X + 6]))
    P.add(V(f"v_xor_b32 {vr(X+6)}, {vr(X+6)}, {vr(X+1)}", [X + 6, X + 1], [X + 6]))
    P.add(V(f"v_lshlrev_b32 {vr(X)}, 7, {vr(X)}", [X], [X]))
    P.add(V(f"v_add_u32 {vr(X)}, s{base}, {vr(X)}", [X], [X]))
    for u in range(4):
        P.add(V(f"v_xor_b32 {vr(V_T+u)}, {2*u}, {vr(X+6)}", [X + 6], [V_T + u]))
        P.add(V(f"v_lshl_add_u32 {vr(V_T+u)}, {vr(V_T+u)}, 4, {vr(X)}", [V_T + u, X], [V_T + u]))
    P.add(V(f"v_bfe_u32 {vr(X)}, {vr(V_LANE16)}, 7, 3", [V_LANE16], [X]))
    P.add(V(f"v_bfe_u32 {vr(X+1)}, {vr(V_LANE16)}, 4, 3", [V_LANE16], [X + 1]))
    P.add(V(f"v_xor_b32 {vr(X+1)}, {vr(X+1)}, {vr(X)}", [X, X + 1], [X + 1]))
    P.add(V(f"v_lshlrev_b32 {vr(X)}, 8, {vr(X)}", [X], [X]))
    P.add(V(f"v_lshl_add_u32 {vr(V_TC)}, {vr(X+1)}, 4, {vr(X)}", [X, X + 1], [V_TC]))
    P.add(V(f"v_add_u32 {vr(X+9)}, s{base}, {vr(V_LANE16)}", [V_LANE16], [X + 9]))
    u = 0
    for di, dt in enumerate(keep):
        for kp in range(2):
            pack_unit(P, t, dt, kp, HS, V_S + 12 * (u % 4), V_T + u, addsrc=V_NB + 16 * di + 8 * kp, scale2=HS + 2)
            u += 1
    P.lgkm0()
    for a in range(4):
        P.add(Ins(f"ds_read_b128 {vr(V_FREE+4*a,4)}, {vr(X+9)} offset:{a*1024}", "lds", {f"v{X+9}"}, rs("v", V_FREE + 4 * a, 4)))
    P.add(salu(f"s_add_u32 s{S_SO+2}, s{S_QH}, {128*par}")); P.add(salu(f"s_add_u32 s{S_SO+3}, s{S_QH}, {128*par+4096}"))
    P.lgkm0()
    nt = (" " + OPT["stf"].replace("_", " ")) if OPT["stf"] else ""
    return [[Ins(f"buffer_store_dwordx4 {vr(V_FREE+4*a,4)}, {vr(V_TC)}, s[{SRD_O}:{SRD_O+3}], s{S_SO+2+a//2} offen offset:{(a%2)*2048}{nt}", "vmem",
                 rs("v", V_FREE + 4 * a, 4) | {f"v{V_TC}"}, (), 8, tag="store")] for a in range(4)]

def clears(P, nt):
    for i in range(8):
        P.add(V(f"v_mov_b32 {vr(V_P+8+i)}, 0", [], [V_P + 8 + i]))
    for t in range(nt):
        for i in range(16):
            if i % 4 == 0:
                P.add(mfma("a", A_O + 64 * t + 4 * i, "v", V_VF, "v", V_P + 8, czero=True))
            P.add(V(f"v_mov_b32 {vr(V_NB+16*t+i)}, 0", [], [V_NB + 16 * t + i]))
        P.add(V(f"v_mov_b32 {vr(V_L+t)}, 0", [], [V_L + t]))

def post_A(P, par, tag):
    allp = list(range(8)); sq = S_QA
    bar = lambda: (P.lgkm0(), P.add(other("s_barrier")))
    h1(P, par)
    P.add(salu(f"s_add_u32 s{S_DRL}, s{S_RB}, s{S_W4K}"))
    P.add(salu(f"s_cmp_lg_u32 s{S_ITEM}, 0"))
    P.add(other(f"s_cbranch_scc1 L_last_{tag}"))
    P.add(salu(f"s_mov_b32 s{S_IMG1}, s{S_M0}")); P.add(salu(f"s_mov_b32 s{S_DRG}, s{sq}")); P.add(salu(f"s_mov_b32 s{S_DRK}, 0"))
    hd, body = q_setup_tile("B", 0, absaddr=True, clear=False)
    P.add(hd); P.add(body)
    bar()
    h2(P, par)
    P.add(pack_tile(0))
    bar()
    h3(P)
    hd, body = q_setup_tile("B", 1, absaddr=True, clear=False)
    P.add(hd); P.add(body)
    bar()
    st_h = h4(P, par, S_M0)
    P.add(image_addrs())
    P.add(weave(pack_tile(1), st_h))
    P.add(salu(f"s_mov_b32 s{S_RSPAN}, {3*SLOT}"))
    P.add(salu(f"s_add_u32 s{S_M0}, s{S_W4K}, {2*SLOT}"))
    clears(P, 2)
    P.lgkm0()
    P.add(drain_read())
    stamp(P, ("item", 5))
    P.add(salu(f"s_mov_b32 s{S_ITEM}, 1"))
    P.add(other("s_branch L_go_B"))
    P.add(label(f"L_last_{tag}"))
    P.ldsq = []
    P.add(image_addrs(S_RB))
    P.add(pack_tile(0))
    image_readback(P, allp, V_KF, S_DRL)
    P.add(salu(f"s_mov_b32 s{S_SO}, s{sq}")); P.add(salu(f"s_add_u32 s{S_SO+1}, s{sq}, 4096"))
    bar()
    h2(P, par)
    P.add(weave(pack_tile(1), image_stores(allp, V_KF, S_SO, S_SO + 1)))
    image_readback(P, allp, V_VF, S_DRL)
    P.add(salu(f"s_add_u32 s{S_SO}, s{sq}, 8192")); P.add(salu(f"s_add_u32 s{S_SO+1}, s{sq}, 12288"))
    bar()
    h3(P)
    C = L()
    C.ldsq = []
    st_h = h4(C, par, S_DRL)
    P.add(weave(C.ins, image_stores(allp, V_VF, S_SO, S_SO + 1), 0.0, 0.8))
    P.add(sum(st_h, []))
    stamp(P, ("item", 5))
    P.add(other("s_branch L_fin"))

def item_code(P, typ, par):
    tag = f"{typ}{par}" if typ == "A" else "B"
    if typ == "A":
        ring = [(0, 0), (0, 1), (0, 2), (1, 0), (1, 1)] if par == 0 else [(0, 0), (0, 1), (1, 0), (1, 1), (1, 2)]
        steps = [(0, s, t) for s, t in ring] + [(1, s, t) for s, t in ring]
    else:
        steps = [(0, 0, 0), (0, 0, 1), (0, 1, 0), (0, 1, 1)]
    P.add(label(f"L_item_{tag}"))
    stamp(P, ("item", 2))
    item_begin(P, typ)
    P.add(qk_group(typ, 0, 0))
    stamp(P, ("item", 3))
    P.add(label(f"L_loop_{tag}"))
    assert not P.ldsq
    build_body(P, typ, steps)
    P.ldsq = []
    P.add(salu(f"s_and_b32 s{S_T2}, s{S_N}, 7"))
    P.add(salu(f"s_cmp_lg_u32 s{S_T2}, 0"))
    P.add(other(f"s_cbranch_scc1 L_loop_{tag}"))
    stamp(P, ("item", 4))
    r, sub, t = steps[-1]
    P.add(pv_group(t, (len(steps) - 1) % 2))
    P.add(other(f"s_waitcnt vmcnt({8 if typ == 'A' else 0})"))
    P.lgkm0()
    P.add(salu(f"s_sub_u32 s{S_VCUR}, s{S_VCUR}, s{S_DELTA}"))
    sq = S_QA if typ == "A" else S_QB
    if typ == "A":
        post_A(P, par, tag)
        return
    P.add(other("s_barrier")); st_h = []
    allp = list(range(8))
    P.add(image_addrs())
    P.add(weave(pack_tile(0), st_h))
    P.add(salu(f"s_cmp_lg_u32 s{S_ITEM}, 0"))
    P.add(other(f"s_cbranch_scc1 L_last_{tag}"))
    ntyp = "B" if typ == "A" else "A"
    nn = 3 if ntyp == "A" else 2
    P.add(salu(f"s_mov_b32 s{S_DRL}, s{S_M0}")); P.add(salu(f"s_mov_b32 s{S_DRG}, s{sq}")); P.add(salu(f"s_mov_b32 s{S_DRK}, 0"))
    P.add(salu(f"s_add_u32 s{S_IMG1}, s{S_RB}, s{S_W4K}"))
    for i in range(8):
        P.add(V(f"v_mov_b32 {vr(V_KF+i)}, 0", [], [V_KF + i]))
    hd, body = q_setup_tile(ntyp, 0, absaddr=True)
    P.add(hd); P.add(zb(body))
    P.add(pack_tile(1))
    if typ == "A":
        P.add(salu(f"s_mov_b32 s{S_RSPAN}, {3*SLOT}"))
        P.add(salu(f"s_add_u32 s{S_M0}, s{S_W4K}, {2*SLOT}"))
    else:
        P.add(salu(f"s_add_u32 s{S_M0}, s{S_W4K}, {1*SLOT}"))
    for t in range(1, nn):
        hd, body = q_setup_tile(ntyp, t, absaddr=True)
        P.add(hd)
        if typ == "B" and t == 2:
            P.add(salu(f"s_mov_b32 s{S_RHI}, {4*SLOT}")); P.add(salu(f"s_mov_b32 s{S_RSPAN}, {3*SLOT}"))
            P.add(weave(zb(body), pieces_of(sum(entry_issue(), []) + kv_next()), 0.0, 0.9))
        else:
            P.add(zb(body))
    for i in range(8):
        P.add(V(f"v_mov_b32 {vr(V_P+8+i)}, 0", [], [V_P + 8 + i]))
    P.lgkm0()
    P.add(drain_read())
    stamp(P, ("item", 5))
    P.add(salu(f"s_mov_b32 s{S_ITEM}, 1"))
    P.add(other("s_branch L_go_B" if typ == "A" else "s_branch L_go_A"))
    P.add(label(f"L_last_{tag}"))
    image_readback(P, allp, V_KF)
    P.add(salu(f"s_mov_b32 s{S_SO}, s{sq}")); P.add(salu(f"s_add_u32 s{S_SO+1}, s{sq}, 4096"))
    P.add(weave(pack_tile(1), image_stores(allp, V_KF, S_SO, S_SO + 1)))
    image_readback(P, allp, V_VF)
    P.add(salu(f"s_add_u32 s{S_SO+2}, s{sq}, 8192")); P.add(salu(f"s_add_u32 s{S_SO+3}, s{sq}, 12288"))
    P.add(sum(image_stores(allp, V_VF, S_SO + 2, S_SO + 3), []))
    stamp(P, ("item", 5))
    P.add(other("s_branch L_fin"))

def zb(body):
    out = []
    for x in body:
        if x.kind == "mfma":
            d = int(x.text.split("a[")[1].split(":")[0])
            out.append(mfma("a", d, "v", V_VF, "v", V_KF, czero=True))
        else:
            out.append(x)
    return out

def prologue(P):
    P.add(salu(f"s_cmp_ge_u32 s{S_WG}, 256")); P.add(other("s_cbranch_scc1 L_done"))
    stamp(P, 0)
    if OPT["stamp"] and not OPT["barstat"]:
        P.add(other("s_memrealtime s[88:89]")); P.add(other("s_waitcnt lgkmcnt(0)"))
    P.add(other("s_load_dwordx4 s[4:7], s[0:1], 0")); P.add(other("s_load_dwordx4 s[8:11], s[0:1], 16"))
    X = V_X
    lane, key, h = X, X + 1, X + 2
    P.add(V(f"v_lshrrev_b32 {vr(X+3)}, 6, v0", [0], [X + 3]))
    P.add(V(f"v_and_b32 {vr(lane)}, 63, v0", [0], [lane]))
    P.add(Ins(f"v_readfirstlane_b32 s{S_W}, {vr(X+3)}", "rfl", {f"v{X+3}"}, {f"s{S_W}"}))
    A = lambda text, rd, wr: P.add(V(text, rd, wr))
    rr, pp = X + 4, X + 5
    A(f"v_lshrrev_b32 {vr(rr)}, 4, {vr(lane)}", [lane], [rr])
    A(f"v_and_b32 {vr(pp)}, 15, {vr(lane)}", [lane], [pp])
    A(f"v_lshlrev_b32 {vr(X+6)}, 8, {vr(rr)}", [rr], [X + 6])
    A(f"v_xor_b32 {vr(X+7)}, {vr(pp)}, {vr(rr)}", [pp, rr], [X + 7])
    for a in range(4):
        A(f"v_xor_b32 {vr(X+8)}, {4*a}, {vr(X+7)}", [X + 7], [X + 8])
        A(f"v_lshl_add_u32 {vr(V_DK+a)}, {vr(X+8)}, 4, {vr(X+6)}", [X + 8, X + 6], [V_DK + a])
    A(f"v_lshlrev_b32 {vr(X+7)}, 2, {vr(rr)}", [rr], [X + 7])
    A(f"v_xor_b32 {vr(X+7)}, {vr(pp)}, {vr(X+7)}", [pp, X + 7], [X + 7])
    A(f"v_lshl_add_u32 {vr(V_DV)}, {vr(X+7)}, 4, {vr(X+6)}", [X + 7, X + 6], [V_DV])
    S = lambda t: P.add(salu(t))
    S(f"s_and_b32 s{S_T0}, s{S_WG}, 7"); S(f"s_lshr_b32 s{S_T1}, s{S_WG}, 4"); S(f"s_lshl_b32 s{S_T1}, s{S_T1}, 3")
    S(f"s_add_u32 s{S_T0}, s{S_T0}, s{S_T1}")
    S(f"s_lshr_b32 s{S_ROLE}, s{S_WG}, 3"); S(f"s_and_b32 s{S_ROLE}, s{S_ROLE}, 1")
    S(f"s_lshl_b32 s{S_P0}, s{S_T0}, 18"); S(f"s_lshl_b32 s{S_W4K}, s{S_W}, 12"); S(f"s_mov_b32 s{S_M0}, s{S_W4K}")
    S(f"s_mov_b32 s{S_KV}, s{S_W4K}")
    S(f"s_lshl_b32 s{S_T0}, s{S_T0}, 1")
    S(f"s_add_u32 s{S_T1}, s{S_T0}, s{S_ROLE}"); S(f"s_mul_i32 s{S_T1}, s{S_T1}, 147456")
    S(f"s_lshl_b32 s{S_T2}, s{S_W}, 14"); S(f"s_add_u32 s{S_QA}, s{S_T1}, s{S_T2}")
    S(f"s_lshr_b32 s{S_QH}, s{S_W}, 1"); S(f"s_lshl_b32 s{S_QH}, s{S_QH}, 13"); S(f"s_add_u32 s{S_QH}, s{S_QH}, s{S_T1}")
    S(f"s_add_u32 s{S_QH}, s{S_QH}, {8*8192}")
    S(f"s_xor_b32 s{S_T1}, s{S_ROLE}, 1"); S(f"s_add_u32 s{S_T1}, s{S_T0}, s{S_T1}"); S(f"s_mul_i32 s{S_T1}, s{S_T1}, 147456")
    S(f"s_add_u32 s{S_QB}, s{S_T1}, s{S_T2}"); S(f"s_add_u32 s{S_QB}, s{S_QB}, {10*8192}")
    c = (128 ** -0.5) * math.log2(math.e)
    S(f"s_mov_b32 s{S_C}, 0x{f32bits(c):08x}"); S(f"s_mov_b32 s{S_C2}, s{S_C}"); S(f"s_mov_b32 s{S_C2+1}, s{S_C}")
    S(f"s_mov_b32 s{S_HI}, 0x{f32bits(65536.0):08x}")
    S(f"s_mov_b32 s{S_MASK}, 0xffff0000")
    S("s_mov_b32 s86, 0"); S("s_mov_b32 s87, 0")
    S(f"s_mov_b32 s{S_HI+1}, {sum(1 << i for i in (2, 3, 4, 5, 6, 8, 9, 10))}")
    S(f"s_mov_b32 s{S_HI+2}, {sum(1 << i for i in (2, 3, 4, 5, 8, 9, 10))}")
    S(f"s_mov_b32 s{S_MSK1}, 0x0f03")
    S(f"s_mov_b32 s{S_RHI}, {5*SLOT}"); S(f"s_mov_b32 s{S_RSPAN}, {5*SLOT}")
    S(f"s_mov_b32 s{S_HI+3}, 0x1fe02")
    for r_ in (S_N, S_RB, S_ITEM, S_DELTA, S_KCUR, S_VCUR): S(f"s_mov_b32 s{r_}, 0")
    S(f"s_mov_b32 s{S_E1+3}, 0x20000"); S(f"s_mov_b32 s{S_E2+3}, 0x20000")
    S(f"s_mov_b32 s{SRD_O+2}, {QBYTES}"); S(f"s_mov_b32 s{SRD_O+3}, 0x20000")
    P.add(other("s_waitcnt lgkmcnt(0)"))
    S(f"s_mov_b32 s{SRD_O}, s{S_PO}"); S(f"s_mov_b32 s{SRD_O+1}, s{S_PO+1}")
    S(f"s_add_u32 s{S_PK}, s{S_PK}, s{S_P0}"); S(f"s_addc_u32 s{S_PK+1}, s{S_PK+1}, 0")
    S(f"s_add_u32 s{S_PV}, s{S_PV}, s{S_P0}"); S(f"s_addc_u32 s{S_PV+1}, s{S_PV+1}, 0")
    def qlist(typ):
        if typ == "A":
            S(f"s_mov_b32 s{S_Q2}, s{S_QA}"); S(f"s_add_u32 s{S_Q2+1}, s{S_QA}, 8192"); S(f"s_mov_b32 s{S_Q2+2}, s{S_QH}"); S(f"s_mov_b32 s{S_QLEFT}, 3")
        else:
            S(f"s_mov_b32 s{S_Q2}, s{S_QB}"); S(f"s_add_u32 s{S_Q2+1}, s{S_QB}, 8192"); S(f"s_mov_b32 s{S_Q2+2}, s{S_QB}"); S(f"s_mov_b32 s{S_QLEFT}, 2")
    def rest():
        A(f"v_and_b32 {vr(key)}, 31, {vr(lane)}", [lane], [key])
        A(f"v_lshrrev_b32 {vr(h)}, 5, {vr(lane)}", [lane], [h])
        A(f"v_lshlrev_b32 {vr(V_LANE8)}, 3, {vr(lane)}", [lane], [V_LANE8])
        A(f"v_lshlrev_b32 {vr(V_LANE16)}, 4, {vr(lane)}", [lane], [V_LANE16])
        A(f"v_lshlrev_b32 {vr(X+3)}, 8, {vr(key)}", [key], [X + 3])
        A(f"v_and_b32 {vr(X+4)}, 15, {vr(key)}", [key], [X + 4])
        A(f"v_xor_b32 {vr(X+4)}, {vr(X+4)}, {vr(h)}", [X + 4, h], [X + 4])
        for s in range(8):
            A(f"v_xor_b32 {vr(X+5)}, {2*s}, {vr(X+4)}", [X + 4], [X + 5])
            A(f"v_lshl_add_u32 {vr(V_KA+s)}, {vr(X+5)}, 4, {vr(X+3)}", [X + 5, X + 3], [V_KA + s])
        A(f"v_and_b32 {vr(X+5)}, 15, {vr(key)}", [key], [X + 5])
        A(f"v_lshlrev_b32 {vr(X+6)}, 8, {vr(X+5)}", [X + 5], [X + 6])
        A(f"v_bfe_u32 {vr(X+7)}, {vr(key)}, 4, 1", [key], [X + 7])
        A(f"v_lshl_add_u32 {vr(X+6)}, {vr(X+7)}, 14, {vr(X+6)}", [X + 7, X + 6], [X + 6])
        A(f"v_add_u32 {vr(V_QBASE)}, s{S_W4K}, {vr(X+6)}", [X + 6], [V_QBASE])
        A(f"v_and_b32 {vr(X+6)}, 3, {vr(key)}", [key], [X + 6])
        A(f"v_lshlrev_b32 {vr(X+6)}, 2, {vr(X+6)}", [X + 6], [X + 6])
        P.add(valu(f"v_cmp_ne_u32 vcc, 0, {vr(X+7)}", {f"v{X+7}"}, {"vcc"}))
        P.add(valu(f"v_cndmask_b32 {vr(X+5)}, {vr(X+5)}, {vr(X+6)}, vcc", {f"v{X+5}", f"v{X+6}", "vcc"}, {f"v{X+5}"}))
        A(f"v_xor_b32 {vr(V_QXOR)}, {vr(X+5)}, {vr(h)}", [X + 5, h], [V_QXOR])
        r_, cq, dsel = X + 4, X + 5, X + 6
        A(f"v_bfe_u32 {vr(r_)}, {vr(lane)}, 2, 2", [lane], [r_])
        A(f"v_and_b32 {vr(cq)}, 3, {vr(lane)}", [lane], [cq])
        A(f"v_bfe_u32 {vr(dsel)}, {vr(lane)}, 4, 1", [lane], [dsel])
        A(f"v_lshl_add_u32 {vr(X+7)}, {vr(h)}, 2, {vr(r_)}", [h, r_], [X + 7])
        A(f"v_lshlrev_b32 {vr(X+7)}, 8, {vr(X+7)}", [X + 7], [X + 7])
        A(f"v_lshl_add_u32 {vr(X+7)}, {vr(dsel)}, 5, {vr(X+7)}", [dsel, X + 7], [X + 7])
        A(f"v_lshl_add_u32 {vr(X+7)}, {vr(cq)}, 3, {vr(X+7)}", [cq, X + 7], [X + 7])
        A(f"v_add_u32 {vr(X+7)}, 16384, {vr(X+7)}", [X + 7], [X + 7])
        for dt in range(4):
            A(f"v_xor_b32 {vr(X+8)}, {dt}, {vr(r_)}", [r_], [X + 8])
            A(f"v_lshl_add_u32 {vr(V_VA+dt)}, {vr(X+8)}, 6, {vr(X+7)}", [X + 8, X + 7], [V_VA + dt])
        for i in range(32):
            P.add(V(f"v_mov_b32 {vr(V_VF+i)}, 0", [], [V_VF + i]))
    S(f"s_cmp_lg_u32 s{S_ROLE}, 0"); P.add(other("s_cbranch_scc1 L_pro_B"))
    for typ in ("A", "B"):
        if typ == "B": P.add(label("L_pro_B"))
        nq = 3 if typ == "A" else 2
        qlist(typ)
        for e in range(2):
            P.add(set_q(S_Q2 + e)); P.add(sum(entry_issue(), []))
        rest()
        P.add(q_setup_pre())
        later = []
        if typ == "A":
            later.append(set_q(S_Q2 + 2) + sum(entry_issue(), []))
        later.append(set_kv() + sum(entry_issue(), []) + kv_next())
        later.append(sum(entry_issue(), []) + kv_next())
        for t in range(nq):
            P.add(other(f"s_waitcnt vmcnt({8 if t < 2 else 8})"))
            hd, body = q_setup_tile(typ, t)
            P.add(hd)
            if t < len(later):
                ops = later[t]
                P.add(weave(body, pieces_of(ops), 0.0, 0.9))
            else:
                P.add(body)
        qlist("B" if typ == "A" else "A")
        P.add(other("s_waitcnt vmcnt(8)"))
        P.add(other("s_barrier"))
        stamp(P, 1)
        P.add(other(f"s_branch L_go_{typ}"))
    P.add(label("L_go_A"))
    S(f"s_and_b32 s{S_T0}, s{S_W}, 1"); S(f"s_cmp_lg_u32 s{S_T0}, 0")
    P.add(other("s_cbranch_scc1 L_item_A1")); P.add(other("s_branch L_item_A0"))
    P.add(label("L_go_B")); P.add(other("s_branch L_item_B"))

def main():
    P = Prog()
    prologue(P)
    item_code(P, "A", 0)
    item_code(P, "A", 1)
    item_code(P, "B", 0)
    P.add(label("L_fin"))
    stamp_out(P)
    P.add(label("L_done")); P.add(other("s_endpgm"))
    for blk in outline:
        P.add(blk)
    for st, ro, rt in stubs:
        P.add(label(st)); P.add(other(f"s_call_b64 s[{S_RET}:{S_RET+1}], {ro}")); P.add(other(f"s_branch {rt}"))
    used = sorted(set(ro for _, ro, _ in stubs))
    for ro in used:
        _, _, t, sb = ro.split("_")
        slow_routine(P, int(t), int(sb))
    head = open("standalone__gqa_softmax__near_ridge.s.ref").read().split("; @launch")[0]
    out = head + "; @launch grid=(256,1,1) block=(256,1,1) lds=163840\n"
    out += '.amdgcn_target "amdgcn-amd-amdhsa--gfx950"\n.text\n.globl %s\n.p2align 8\n.type %s,@function\n%s:\n' % (NAME, NAME, NAME)
    out += P.text() + "\n"
    out += '''.section .rodata,"a"
.p2align 6
.amdhsa_kernel %s
  .amdhsa_next_free_vgpr 512
  .amdhsa_next_free_sgpr 100
  .amdhsa_accum_offset 256
  .amdhsa_group_segment_fixed_size 0
  .amdhsa_kernarg_size 48
  .amdhsa_user_sgpr_count 2
  .amdhsa_user_sgpr_kernarg_segment_ptr 1
  .amdhsa_system_sgpr_workgroup_id_x 1
.end_amdhsa_kernel
''' % NAME
    open(sys.argv[1] if len(sys.argv) > 1 else "k2.s", "w").write(out)

main()
```

```python
import sys, math, struct

OPT = dict(
    ld_nt=True, st_nt=False, ldf='nt', stf='sc1_nt',
    no_sm=False, no_lds=False, no_exp=False, no_chk=False, no_dma=False, no_mfma=False, stamp=0, no_bar=False, no_sc=False, barstat=0, pvdt=False, dbg=False,
)
for a in sys.argv[2:]:
    k, v = a.split("=")
    OPT[k] = type(OPT[k])(int(v)) if not isinstance(OPT[k], str) else v

NAME = "standalone__gqa_softmax__near_ridge_kernel"
QBYTES = 37748736
KBYTES = 33554432
SLOT = 32768

def f32bits(x):
    return struct.unpack("<I", struct.pack("<f", x))[0]

V_Q0 = 0
V_NB = 32
V_FREE = 80
V_KF = 96
V_VF = 128
V_S = 160
V_P = 192
V_T = 208
V_L = 219
V_TS = 222
V_KA = 223
V_VA = 231
V_DK = 235
V_DV = 239
V_QBASE = 240
V_QXOR = 241
V_X = 242
V_TC = 253
V_LANE8 = 254
V_LANE16 = 255
A_O = 0
A_Q1 = 192
S_WG, S_W = 2, 3
S_PQ, S_PK, S_PV, S_PO = 4, 6, 8, 10
S_E1, S_E2, SRD_O = 12, 16, 24
S_O1, S_O2 = 20, 21
S_C = 28
S_LO, S_RANGE = 29, 22
S_RET = 30
S_N = 32
S_KV = 33
S_M0 = 34
S_RB = 35
S_DELTA = 36
S_QA = 37
S_QH = 38
S_QB = 39
S_KVN = 40
S_QPOS = 41
S_QLEFT = 42
S_ROLE = 43
S_ITEM = 44
S_T0, S_T1, S_T2 = 45, 46, 47
S_Q2 = 48
S_KCUR, S_VCUR = 51, 52
S_XME, S_XPART = 53, 54
S_W4K = 55
S_HI = 56
S_P0, S_P1, S_P2 = 60, 61, 62
S_MASK = 63
S_MSK1 = 23
S_LIM, S_ADJ, S_NDELTA = 43, 100, 101
S_SO = 96
S_C2 = 94
S_RHI, S_RSPAN = 40, 41
S_DRL, S_DRG, S_DRK, S_IMG1 = 42, 53, 61, 62
S_STAMP = 64

def vr(b, n=1):
    return f"v{b}" if n == 1 else f"v[{b}:{b+n-1}]"
def ar(b, n=1):
    return f"a{b}" if n == 1 else f"a[{b}:{b+n-1}]"
def rs(p, b, n):
    return {f"{p}{i}" for i in range(b, b + n)}

class Ins:
    __slots__ = ("text", "kind", "rd", "wr", "cost", "srcc", "tag", "skip", "likely")
    def __init__(self, text, kind, rd=(), wr=(), cost=4, srcc=(), tag=None):
        self.text, self.kind, self.rd, self.wr, self.cost, self.srcc, self.tag = text, kind, set(rd), set(wr), cost, set(srcc), tag
        self.skip = False
        self.likely = True

def R(kind, b, n=1):
    return (vr(b, n) if kind == "v" else ar(b, n)), rs(kind, b, n)

def mfma(dk, d, ak, a, bk, b, czero=False, cblk=None):
    dt, ds_ = R(dk, d, 16); at, as_ = R(ak, a, 4); bt, bs_ = R(bk, b, 4)
    if cblk is not None:
        c, cs = R(dk, cblk, 16)
    elif czero:
        c, cs = "0", set()
    else:
        c, cs = dt, ds_
    return Ins(f"v_mfma_f32_32x32x16_bf16 {dt}, {at}, {bt}, {c}", "mfma", as_ | bs_ | cs, ds_, 8, srcc=cs)
def valu(text, rd, wr, trans=False, cost=None):
    return Ins(text, "trans" if trans else "valu", rd, wr, cost or (8 if trans else 4))
def salu(text, rd=(), wr=()):
    return Ins(text, "salu", rd, wr, 4)
def other(text, cost=4):
    return Ins(text, "other", (), (), cost)
def label(name):
    return Ins(name + ":", "label", (), (), 0)
def V(text, rd, wr, **kw):
    return valu(text, {f"v{r}" for r in rd}, {f"v{w}" for w in wr}, **kw)
def perm(a, b):
    return Ins(f"v_permlane32_swap_b32 {vr(a)}, {vr(b)}", "perm", {f"v{a}", f"v{b}"}, {f"v{a}", f"v{b}"})

class Prog:
    def __init__(self):
        self.ins = []
        self.ldsq = []
    def states_back(self, inrun=False):
        d = 0
        for i in reversed(self.ins):
            if i.kind == "label":
                inrun = False
                continue
            yield i, d
            if not i.skip:
                inrun = False
            if i.skip and not inrun:
                continue
            if i.text.startswith("s_nop"):
                d += int(i.text.split()[1]) + 1
            else:
                d += 1
            if d > 24:
                return
    def need(self, x):
        n = 0
        for p, d in self.states_back(x.skip):
            req = 0
            if p.kind == "mfma":
                if x.kind == "mfma":
                    if p.wr & (x.rd - x.srcc): req = 12
                    elif (p.wr & x.srcc) and (p.wr != x.srcc): req = 10
                    elif (p.wr & x.wr) and not (p.wr & x.srcc): req = 12
                elif x.kind in ("valu", "trans", "lds", "vmem", "perm"):
                    if p.wr & (x.rd | x.wr): req = 12
                    if x.kind in ("valu", "trans", "perm") and (p.srcc & x.wr): req = max(req, 7)
            elif p.kind in ("valu", "trans", "perm"):
                if x.kind == "mfma" and (p.wr & x.rd): req = 2
                if x.kind == "perm" and (p.wr & x.rd): req = 2
                if p.kind == "perm" and x.kind in ("valu", "trans") and (p.wr & x.rd): req = max(req, 2)
                if p.kind == "trans" and x.kind in ("valu", "perm") and (p.wr & x.rd): req = max(req, 1)
                if x.kind in ("valu", "trans") and any(r.startswith("s") or r == "vcc" for r in (p.wr & x.rd)): req = max(req, 2)
                if x.kind == "vmem" and any(r.startswith("s") for r in (p.wr & x.rd)): req = max(req, 5)
                if x.kind == "rfl" and (p.wr & x.rd): req = max(req, 1)
            elif p.kind == "rfl":
                if x.kind in ("valu", "trans") and (p.wr & x.rd): req = 2
                if x.kind == "vmem" and (p.wr & x.rd): req = 5
                if x.kind == "salu" and (p.wr & x.rd): req = 2
            elif p.kind == "vmem" and p.tag == "store":
                if x.kind in ("valu", "trans", "perm", "lds") and (p.rd & x.wr): req = 2
            elif p.kind == "salu" and "m0" in p.wr:
                if x.kind == "vmem" and "m0" in x.rd: req = 1
            if req > d:
                n = max(n, req - d)
        return n
    def add(self, x):
        if isinstance(x, (list, tuple)):
            for y in x: self.add(y)
            return
        if x.text == "s_waitcnt lgkmcnt(0)":
            self.ins.append(x); self.ldsq = []
            return
        if x.kind in ("mfma", "valu", "trans", "vmem", "perm", "lds"):
            use = x.rd | x.wr
            last = -1
            for i, (dst, tg) in enumerate(self.ldsq):
                if dst & use: last = i
            if last >= 0 and self.ldsq[last][1] is not None and x.kind == "mfma":
                tg = self.ldsq[last][1]
                while last + 1 < len(self.ldsq) and self.ldsq[last + 1][1] == tg: last += 1
            if last >= 0:
                n = len(self.ldsq) - 1 - last
                n = min(n, 15)
                self.ins.append(other(f"s_waitcnt lgkmcnt({n})"))
                self.ldsq = self.ldsq[len(self.ldsq) - n:] if n else []
        n = self.need(x)
        while n > 0:
            k = min(n, 16)
            self.ins.append(other(f"s_nop {k-1}", 4 * k))
            self.ins[-1].skip = x.skip
            n -= k
        self.ins.append(x)
        if x.kind == "lds":
            self.ldsq.append((set(x.wr), x.tag))
    def lgkm0(self):
        self.add(other("s_waitcnt lgkmcnt(0)"))
    def text(self):
        return "\n".join(i.text if i.kind == "label" else "    " + i.text for i in self.ins)

class L:
    def __init__(self): self.ins = []
    def add(self, x):
        if isinstance(x, (list, tuple)):
            for y in x: self.add(y)
        else: self.ins.append(x)
    def lgkm0(self): self.add(other("s_waitcnt lgkmcnt(0)"))

def weave(stream, extras, lead=0.05, end=0.95):
    tot = sum(x.cost for x in stream) or 1
    out = []; acc = 0; k = 0; n = len(extras)
    for x in stream:
        while k < n and acc >= tot * (lead + (end - lead) * k / max(1, n)):
            out += extras[k]; k += 1
        out.append(x); acc += x.cost
    while k < n:
        out += extras[k]; k += 1
    return out

def cond(ops, likely=False):
    for o in ops:
        o.skip = True; o.likely = likely
    return ops
lbl_n = [0]
def newlbl(p="L"):
    lbl_n[0] += 1
    return f"{p}{lbl_n[0]}"

def q_reg(typ, t):
    return ("v", V_Q0) if t == 0 else ("a", A_Q1 + 32 * (t - 1))

def qk_group(typ, t, sb):
    qk, qb = q_reg(typ, t)
    return [mfma("v", V_S + 16 * sb, "v", V_KF + 4 * s, qk, qb + 4 * s, cblk=(V_NB + 16 * t if s == 0 else None)) for s in range(8)]

def pv_order():
    return [(dt, ks) for dt in range(4) for ks in range(2)] if OPT["pvdt"] else [(dt, ks) for ks in range(2) for dt in range(4)]

def pv_group(t, pb):
    return [mfma("a", A_O + 64 * t + 16 * dt, "v", V_VF + 8 * dt + 4 * ks, "v", V_P + 8 * pb + 4 * ks) for dt, ks in pv_order()]

def k_load(s, sub):
    return Ins(f"ds_read_b128 {vr(V_KF+4*s,4)}, {vr(V_KA+s)} offset:{sub*8192}", "lds", {f"v{V_KA+s}"}, rs("v", V_KF + 4 * s, 4), 6, tag="K")

def v_load(dt, ks, e4, sub):
    d = V_VF + 8 * dt + 4 * ks + 2 * e4
    return Ins(f"ds_read_b64_tr_b16 {vr(d,2)}, {vr(V_VA+dt)} offset:{sub*8192+ks*4096+e4*2048}", "lds", {f"v{V_VA+dt}"}, rs("v", d, 2), 4, tag="V")

def softmax_ops(t, sb, with_cmp=True, sub=None):
    S = V_S + 16 * sb; P = V_P + 8 * sb; T = V_T; ts = V_TS
    ops = []; tail = []
    for k in range(19):
        if k < 16:
            if sub is not None:
                ops.append(V(f"v_sub_f32 {vr(T+k%8)}, {vr(S+k)}, {vr(sub)}", [S + k, sub], [T + k % 8]))
                ops.append(V(f"v_exp_f32 {vr(T+k%8)}, {vr(T+k%8)}", [T + k % 8], [T + k % 8], trans=True))
            else:
                ops.append(V(f"v_exp_f32 {vr(T+k%8)}, {vr(S+k)}", [S + k], [T + k % 8], trans=True))
        r = k - 2
        if 1 <= r < 16:
            if r == 1:
                ops.append(V(f"v_add_f32 {vr(ts)}, {vr(T)}, {vr(T+1)}", [T, T + 1], [ts]))
            else:
                ops.append(V(f"v_add_f32 {vr(ts)}, {vr(ts)}, {vr(T+r%8)}", [ts, T + r % 8], [ts]))
            if r % 2 == 1:
                a, b = T + (r - 1) % 8, T + r % 8
                c = V(f"v_cvt_pk_bf16_f32 {vr(P+r//2)}, {vr(a)}, {vr(b)}", [a, b], [P + r // 2], cost=5)
                (tail if r >= 11 else ops).append(c)
    if with_cmp:
        ops.append(V(f"v_subrev_u32 {vr(V_TC)}, s{S_LO}, {vr(ts)}", [ts], [V_TC]))
        ops.append(valu(f"v_cmp_lt_u32 vcc, s{S_RANGE}, {vr(V_TC)}", {f"v{V_TC}"}, {"vcc"}))
    return ops + tail

stubs = []
site_n = [0]
def check_ops(t, sb, adj=0):
    k = site_n[0]; site_n[0] += 1
    stubs.append((f"L_stub{k}", f"L_slow_{t}_{sb}", f"L_ret{k}", adj))
    return [other(f"s_cbranch_vccnz L_stub{k}", 10),
            label(f"L_ret{k}"),
            V(f"v_add_f32 {vr(V_L+t)}, {vr(V_L+t)}, {vr(V_TS)}", [V_L + t, V_TS], [V_L + t])]

def entry_issue():
    nt = (" " + OPT["ldf"].replace("_", " ")) if OPT["ldf"] else ""
    u = []
    for half, (e, so) in enumerate(((S_E1, S_O1), (S_E2, S_O2))):
        for a in range(4):
            vo = V_DK + a if half == 0 else V_DV
            x = []
            if a == 0:
                x.append(salu(f"s_mov_b32 m0, s{S_M0}", (), {"m0"}) if half == 0 else salu(f"s_add_u32 m0, s{S_M0}, 16384", (), {"m0"}))
            x.append(Ins(f"buffer_load_dwordx4 {vr(vo)}, s[{e}:{e+3}], s{so} offen offset:{a*1024}{nt} lds", "vmem", {f"v{vo}", "m0"}, (), 8))
            u.append(x)
    u.append([salu(f"s_add_u32 s{S_M0}, s{S_M0}, {SLOT}"),
              salu(f"s_cmp_ge_u32 s{S_M0}, s{S_RHI}"),
              salu(f"s_cselect_b32 s{S_P0}, s{S_RSPAN}, 0"),
              salu(f"s_sub_u32 s{S_M0}, s{S_M0}, s{S_P0}")])
    return u

def kv_next():
    return [salu(f"s_add_u32 s{S_O1}, s{S_O1}, 16384"), salu(f"s_add_u32 s{S_O2}, s{S_O2}, 16384")]

def set_q(sreg):
    return [salu(f"s_mov_b64 s[{S_E1}:{S_E1+1}], s[{S_PQ}:{S_PQ+1}]"), salu(f"s_mov_b64 s[{S_E2}:{S_E2+1}], s[{S_PQ}:{S_PQ+1}]"),
            salu(f"s_mov_b32 s{S_E1+2}, {QBYTES}"), salu(f"s_mov_b32 s{S_E2+2}, {QBYTES}"),
            salu(f"s_mov_b32 s{S_O1}, s{sreg}"), salu(f"s_add_u32 s{S_O2}, s{sreg}, 4096")]

def set_kv():
    return [salu(f"s_mov_b64 s[{S_E1}:{S_E1+1}], s[{S_PK}:{S_PK+1}]"), salu(f"s_mov_b64 s[{S_E2}:{S_E2+1}], s[{S_PV}:{S_PV+1}]"),
            salu(f"s_mov_b32 s{S_E1+2}, 262144"), salu(f"s_mov_b32 s{S_E2+2}, 262144"),
            salu(f"s_mov_b32 s{S_O1}, s{S_KV}"), salu(f"s_mov_b32 s{S_O2}, s{S_KV}")]

outline = []
def drain_read():
    A = V_X + 10
    return [V(f"v_add_u32 {vr(A)}, s{S_DRL}, {vr(V_LANE16)}", [V_LANE16], [A])] + \
           [Ins(f"ds_read_b128 {vr(V_FREE+4*a,4)}, {vr(A)} offset:{a*1024}", "other") for a in range(4)]

def drain_store(back):
    nt = (" " + OPT["stf"].replace("_", " ")) if OPT["stf"] else ""
    lodd = newlbl("L_do")
    def st(vo): return [Ins(f"buffer_store_dwordx4 {vr(V_FREE+4*a,4)}, {vr(vo(a))}, s[{SRD_O}:{SRD_O+3}], s{S_DRG} offen offset:{a*1024}{nt}", "other") for a in range(4)]
    return [other("s_waitcnt lgkmcnt(0)"), salu(f"s_bitcmp1_b32 s{S_DRK}, 0"), other(f"s_cbranch_scc1 {lodd}")] + \
           st(lambda a: V_DK + a) + [salu(f"s_add_u32 s{S_DRL}, s{S_DRL}, 16384"), salu(f"s_add_u32 s{S_DRG}, s{S_DRG}, 4096"),
                                     salu(f"s_add_u32 s{S_DRK}, s{S_DRK}, 1"), other(f"s_branch {back}"), label(lodd)] + \
           st(lambda a: V_DV) + [salu(f"s_mov_b32 s{S_DRL}, s{S_IMG1}"), salu(f"s_add_u32 s{S_DRG}, s{S_DRG}, 4096"),
                                 salu(f"s_add_u32 s{S_DRK}, s{S_DRK}, 1"), other(f"s_branch {back}")]

DR0 = 8
def special_site(typ):
    lo, lr = newlbl("L_sp"), newlbl("L_spr")
    nq2 = 2 if typ == "A" else 3
    blk = [label(lo)]
    def case(p, ops):
        l = newlbl("L_c")
        return [salu(f"s_cmp_lg_u32 s{S_N}, {p}"), other(f"s_cbranch_scc1 {l}")] + ops + [other(f"s_branch {lr}"), label(l)]
    blk += case(3, [salu(f"s_mov_b32 s{S_KV}, s{S_O1}")] + set_q(S_Q2))
    for j in range(1, nq2):
        blk += case(3 + j, set_q(S_Q2 + j))
    blk += case(3 + nq2, set_kv())
    lo_off = [salu(f"s_mov_b32 s{S_LO}, 0"), salu(f"s_mov_b32 s{S_RANGE}, s{S_HI}")]
    blk += case(2, lo_off)
    blk += case(10, [salu(f"s_mov_b32 s{S_LO}, 0"), salu(f"s_mov_b32 s{S_RANGE}, s{S_HI}")] + drain_read())
    blk += drain_read() + [other(f"s_branch {lr}")]
    outline.append(blk)
    msk = S_HI + 2 if typ == "A" else S_HI + 1
    return kv_next() + [salu(f"s_bitcmp1_b32 s{msk}, s{S_N}"), other(f"s_cbranch_scc1 {lo}", 10), label(lr)]

def extra_site(first):
    lo, lr = newlbl("L_ex"), newlbl("L_exr")
    blk = [label(lo)]
    if first:
        l = newlbl("L_c")
        blk += [salu(f"s_cmp_lt_u32 s{S_N}, 2"), other(f"s_cbranch_scc1 {l}")] + drain_store(lr) + [label(l)]
    blk += sum(entry_issue(), []) + kv_next() + [other(f"s_branch {lr}")]
    outline.append(blk)
    return [salu(f"s_bitcmp1_b32 s{S_HI+3 if not first else S_MSK1}, s{S_N}"), other(f"s_cbranch_scc1 {lo}", 10), label(lr)]

def rb_advance():
    return [salu(f"s_add_u32 s{S_RB}, s{S_RB}, {SLOT}"),
            salu(f"s_cmp_ge_u32 s{S_RB}, s{S_RHI}"),
            salu(f"s_cselect_b32 s{S_T1}, s{S_RSPAN}, 0"),
            salu(f"s_sub_u32 s{S_RB}, s{S_RB}, s{S_T1}")]

def rebase(base, n, sreg=S_DELTA):
    return [V(f"v_add_u32 {vr(base+i)}, s{sreg}, {vr(base+i)}", [base + i], [base + i]) for i in range(n)]

def build_body(P, typ, steps, loop_label):
    n = len(steps)
    assert n % 2 == 0
    def st(k): return steps[k % n]
    groups = []
    for k in range(n):
        r, sub, t = st(k - 1)
        groups.append(dict(mf=pv_group(t, (k - 1) % 2), fixed=[[] for _ in range(8)], pre=[], kind="pv", k=k - 1))
        r, sub, t = st(k + 1)
        groups.append(dict(mf=qk_group(typ, t, (k + 1) % 2), fixed=[[] for _ in range(8)], pre=[], kind="qk", k=k + 1))
    ng = len(groups)
    def step_id(k):
        r, sub, t = st(k)
        return (k // n, r, sub)
    bar_groups = []
    for gi, g in enumerate(groups):
        j = g["k"]
        if g["kind"] == "pv" and step_id(j + 1) != step_id(j):
            nsub = st(j + 1)[1]
            if nsub == 0:
                g["pre"] += rebase(V_VA, 4)
            for m, (dt, ks) in enumerate(pv_order()):
                g["fixed"][m] += [v_load(dt, ks, 0, nsub), v_load(dt, ks, 1, nsub)]
        if g["kind"] == "qk" and step_id(j + 1) != step_id(j):
            nsub = st(j + 1)[1]
            if nsub == 1:
                for s in range(8):
                    g["fixed"][s] += [k_load(s, 1)]
            else:
                bar_groups.append((gi + 1) % ng)
                adv = rb_advance() + [salu(f"s_sub_u32 s{S_DELTA}, s{S_RB}, s{S_KCUR}"), salu(f"s_mov_b32 s{S_KCUR}, s{S_RB}"),
                                      salu(f"s_mov_b32 s{S_VCUR}, s{S_RB}"), salu(f"s_add_u32 s{S_N}, s{S_N}, 1")]
                g["fixed"][0] += adv[:4]; g["fixed"][1] += adv[4:]
                rb = rebase(V_KA, 8)
                for i in range(8):
                    g["fixed"][2 + i * 6 // 8] += [rb[i]]
    nx = 2
    for bi, gi in enumerate(bar_groups):
        g = groups[gi]
        if OPT["barstat"]:
            lw, lwr = newlbl("L_bw"), newlbl("L_bwr")
            outline.append([label(lw), other("s_waitcnt vmcnt(8)"), other(f"s_branch {lwr}")])
            cmpi = f"s_cmp_ge_u32 s{S_N}, 9" if OPT["barstat"] == 1 else f"s_cmp_lt_u32 s{S_N}, 9"
            g["pre"] = [other("s_waitcnt lgkmcnt(0)"), other("s_memtime s[88:89]"), other("s_waitcnt lgkmcnt(0)"),
                        salu(f"s_bitcmp1_b32 s{S_HI+3}, s{S_N}"), other(f"s_cbranch_scc1 {lw}", 10), other("s_waitcnt vmcnt(24)"), label(lwr),
                        other("s_memtime s[90:91]"), other("s_waitcnt lgkmcnt(0)"), other("s_barrier"), other("s_memtime s[92:93]"), other("s_waitcnt lgkmcnt(0)"),
                        salu("s_sub_u32 s88, s90, s88"), salu("s_sub_u32 s90, s92, s90"),
                        salu(cmpi), salu("s_cselect_b32 s88, s88, 0"), salu("s_cselect_b32 s90, s90, 0"),
                        salu("s_add_u32 s86, s86, s88"), salu("s_add_u32 s87, s87, s90")] + g["pre"]
        else:
            lw, lwr = newlbl("L_bw"), newlbl("L_bwr")
            outline.append([label(lw), other("s_waitcnt vmcnt(8)"), other(f"s_branch {lwr}")])
            g["fixed"][0] = [other("s_waitcnt lgkmcnt(0)"), salu(f"s_bitcmp1_b32 s{S_HI+3}, s{S_N}"), other(f"s_cbranch_scc1 {lw}", 10),
                             other("s_waitcnt vmcnt(24)"), label(lwr), other("s_barrier")] + g["fixed"][0]
        for s_ in range(8):
            g["fixed"][(0 if OPT["barstat"] else 1) + s_ // 3] += [k_load(s_, 0)]
        last = (bi == len(bar_groups) - 1)
        e = entry_issue()
        units = [e[0] + e[1], e[2] + e[3], e[4] + e[5], e[6] + e[7], e[8], special_site(typ)]
        units = [extra_site(True)] + units
        slots = []
        cnt = (bar_groups[(bi + 1) % len(bar_groups)] - gi) % ng or ng
        for off in range(cnt):
            idx = (gi + off) % ng
            gg = groups[idx]
            if last and idx >= gi: continue
            if gg["kind"] == "pv":
                sl = [4] if off == 0 else [0, 1]
            else:
                sl = [3] if off + 1 < cnt else []
            slots += [(gg, i) for i in sl]
        assign = [[] for _ in slots]
        for ui, u_ in enumerate(units):
            assign[min(len(slots) - 1, ui * len(slots) // len(units))] += u_
        for (gg, i), blk in zip(slots, assign):
            gg["fixed"][i] += blk
    for k in range(n):
        r, sub, t = st(k)
        ops = softmax_ops(t, k % 2)
        g0, g1 = groups[2 * k], groups[2 * k + 1]
        gaps = [(g0, i) for i in range(2, 8)] + [(g1, i) for i in range(8)]
        fixed = [sum(x.cost for x in g["fixed"][i] if x.likely) for g, i in gaps]
        tot = sum(x.cost for x in ops) + 14 + sum(fixed)
        per = tot / len(gaps)
        cum = 0.0; placed = 0.0; oi = 0
        for gi, (g, i) in enumerate(gaps):
            cum += per
            placed += fixed[gi]
            lst = g.setdefault("flex", [[] for _ in range(8)])[i]
            while oi < len(ops) and (placed + ops[oi].cost / 2 <= cum or gi == len(gaps) - 1):
                lst.append(ops[oi]); placed += ops[oi].cost; oi += 1
        g1["flex"][7] += check_ops(t, k % 2)
    import copy
    first = [copy.copy(x) for x in groups[0]["pre"]] + [copy.copy(groups[0]["mf"][0])]
    for gi, g in enumerate(groups):
        P.add([x for x in g["pre"] if not (OPT["no_bar"] and ("barrier" in x.text or "vmcnt" in x.text))])
        for i in range(8):
            if not OPT["no_mfma"]: P.add(g["mf"][i])
            if gi == 0 and i == 0:
                P.add(label(loop_label))
            fx = g["fixed"][i]
            if OPT["no_sc"]: fx = [x for x in fx if not (x.text.startswith("s_cbranch") or x.text.startswith("s_bitcmp"))]
            if OPT["no_lds"]: fx = [x for x in fx if x.kind != "lds"]
            if OPT["no_dma"]: fx = [x for x in fx if x.kind != "vmem"]
            P.add(fx)
            fl = g.get("flex", [[] for _ in range(8)])[i]
            if OPT["no_sm"]: fl = [x for x in fl if x.kind == "label"]
            if OPT["no_exp"]: fl = [x for x in fl if x.kind != "trans"]
            if OPT["no_chk"]: fl = [x for x in fl if "vcc" not in x.text]
            P.add(fl)
    P.add(first)
    P.add(salu(f"s_cmp_lg_u32 s{S_N}, s{S_LIM}"))
    P.add(other(f"s_cbranch_scc1 {loop_label}"))

def build_tail(P, typ, par, prev_t):
    U = [(r, sub, 0) for r in range(2) for sub in range(2)]
    for r in range(2):
        for sub in range(2):
            U.append((r, sub, 1))
            if typ == "A" and sub == par: U.append((r, sub, 2))
    m = len(U)
    G = lambda mf, kind, k: dict(mf=mf, fixed=[[] for _ in range(8)], flex=[[] for _ in range(8)], pre=[], post=[], kind=kind, k=k)
    groups = [G(pv_group(prev_t, 1), "pv", -1)]
    for k in range(m - 1):
        groups.append(G(qk_group(typ, U[k + 1][2], (k + 1) % 2), "qk", k + 1))
        groups.append(G(pv_group(U[k][2], k % 2), "pv", k))
    groups.append(G([None] * 8, "bare", m))
    groups.append(G(pv_group(U[m - 1][2], (m - 1) % 2), "pv", m - 1))
    qk_of = {g["k"]: g for g in groups if g["kind"] == "qk"}
    pv_of = {g["k"]: g for g in groups if g["kind"] == "pv"}
    g0 = groups[0]
    g0["fixed"][1] += [salu(f"s_mov_b32 s{S_KCUR}, s{S_RB}")] + rb_advance() + [salu(f"s_sub_u32 s{S_DELTA}, s{S_RB}, s{S_KCUR}"),
                       salu(f"s_sub_u32 s{S_NDELTA}, s{S_KCUR}, s{S_RB}"), salu(f"s_mov_b32 s{S_RB}, s{S_KCUR}")]
    g0["fixed"][4] += [other("s_waitcnt vmcnt(0)"), other("s_barrier")]
    kr = 0
    for k in range(m - 1):
        a_, b_ = U[k], U[k + 1]
        if a_[:2] == b_[:2]: continue
        if b_[0] != kr:
            rb = rebase(V_KA, 8, S_DELTA if b_[0] == 1 else S_NDELTA)
            gg = pv_of[k - 2] if k >= 2 else g0
            for i in range(8): gg["fixed"][4 + i // 2] += [rb[i]]
            kr = b_[0]
        if k == 0:
            for s_ in range(8): g0["fixed"][1 + s_ // 3] += [k_load(s_, b_[1])]
        else:
            for s_ in range(8): qk_of[k]["fixed"][s_] += [k_load(s_, b_[1])]
    vr_ = 0
    for k in range(-1, m - 1):
        b_ = U[k + 1]
        if k >= 0 and U[k][:2] == b_[:2]: continue
        g = pv_of[k]
        if b_[0] != vr_:
            g["pre"] += rebase(V_VA, 4, S_DELTA if b_[0] == 1 else S_NDELTA)
            vr_ = b_[0]
        for mi, (dt, ks) in enumerate(pv_order()):
            g["fixed"][mi] += [v_load(dt, ks, 0, b_[1]), v_load(dt, ks, 1, b_[1])]
    sq = S_QA if typ == "A" else S_QB
    C = L()
    C.add(salu(f"s_sub_u32 s{S_T0}, s{S_IMG1}, s{S_W4K}"))
    C.add(image_addrs(S_T0, 24)); C.add(pack_tile(0, 0, 2, 24))
    image_readback(C, list(range(8)), 0, S_IMG1)
    C.add(salu(f"s_mov_b32 s{S_SO}, s{sq}")); C.add(salu(f"s_add_u32 s{S_SO+1}, s{sq}, 4096"))
    pv_of[3]["post"] = C.ins
    sts = image_stores(list(range(8)), 0, S_SO, S_SO + 1)
    gi = groups.index(pv_of[3]) + 1
    slots = [(groups[j], i) for j in range(gi, gi + 4) for i in ((3, 6) if groups[j]["kind"] == "qk" else (0, 1))]
    for st_, (gg, i) in zip(sts, slots): gg["fixed"][i] += st_
    for k in range(m):
        ops = softmax_ops(U[k][2], k % 2)
        ga = pv_of[k - 1]; gb = qk_of[k + 1] if k + 1 < m else groups[-2]
        gaps = [(ga, i) for i in range(2, 8)] + [(gb, i) for i in range(8)]
        if k + 1 == m: gaps = gaps[:7]
        fixed = [sum(x.cost for x in g["fixed"][i]) for g, i in gaps]
        tot = sum(x.cost for x in ops) + 14 + sum(fixed)
        per = tot / len(gaps) if k + 1 < m else 24
        cum = 0.0; placed = 0.0; oi = 0
        for gi_, (g, i) in enumerate(gaps):
            cum += per; placed += fixed[gi_]
            while oi < len(ops) and (placed + ops[oi].cost / 2 <= cum or gi_ == len(gaps) - 1):
                g["flex"][i].append(ops[oi]); placed += ops[oi].cost; oi += 1
        adj = 1 if (k + 1 < m and U[k + 1][2] == U[k][2]) else 0
        gaps[-1][0]["flex"][gaps[-1][1]] += check_ops(U[k][2], k % 2, adj)
    for gi_, g in enumerate(groups):
        P.add(g["pre"])
        for i in range(8):
            if g["mf"][i] is not None and not (gi_ == 0 and i == 0): P.add(g["mf"][i])
            P.add(g["fixed"][i]); P.add(g["flex"][i])
        P.add(g["post"])

def slow_routine(P, t, sb):
    S = V_S + 16 * sb; nb = V_NB + 16 * t; X = V_X
    P.add(label(f"L_slow_{t}_{sb}"))
    P.add(other("s_nop 15", 64))
    P.add(V(f"v_max3_f32 {vr(X)}, {vr(S)}, {vr(S+1)}, {vr(S+2)}", [S, S + 1, S + 2], [X]))
    for i in range(3, 15, 2):
        P.add(V(f"v_max3_f32 {vr(X)}, {vr(X)}, {vr(S+i)}, {vr(S+i+1)}", [X, S + i, S + i + 1], [X]))
    P.add(V(f"v_max_f32 {vr(X)}, {vr(X)}, {vr(S+15)}", [X, S + 15], [X]))
    P.add(V(f"v_mov_b32 {vr(X+1)}, {vr(X)}", [X], [X + 1]))
    P.add(perm(X, X + 1))
    P.add(V(f"v_max_f32 {vr(X)}, {vr(X)}, {vr(X+1)}", [X, X + 1], [X]))
    P.add(V(f"v_mov_b32 {vr(X+2)}, {vr(V_L+t)}", [V_L + t], [X + 2]))
    P.add(V(f"v_mov_b32 {vr(X+3)}, {vr(V_L+t)}", [V_L + t], [X + 3]))
    P.add(perm(X + 2, X + 3))
    P.add(V(f"v_add_f32 {vr(X+2)}, {vr(X+2)}, {vr(X+3)}", [X + 2, X + 3], [X + 2]))
    P.add(valu(f"v_cmp_neq_f32 vcc, 0, {vr(X+2)}", {f"v{X+2}"}, {"vcc"}))
    P.add(V(f"v_max_f32 {vr(X+3)}, 0, {vr(X)}", [X], [X + 3]))
    P.add(valu(f"v_cndmask_b32 {vr(X)}, {vr(X)}, {vr(X+3)}, vcc", {f"v{X}", f"v{X+3}", "vcc"}, {f"v{X}"}))
    P.add(V(f"v_exp_f32 {vr(X+1)}, -{vr(X+3)}", [X + 3], [X + 1], trans=True))
    for i in range(16):
        P.add(V(f"v_sub_f32 {vr(nb+i)}, {vr(nb+i)}, {vr(X)}", [nb + i, X], [nb + i]))
    P.add(V(f"v_mul_f32 {vr(V_L+t)}, {vr(V_L+t)}, {vr(X+1)}", [V_L + t, X + 1], [V_L + t]))
    la = newlbl("L_na")
    So = V_S + 16 * (1 - sb)
    P.add(salu(f"s_cmp_eq_u32 s{S_ADJ}, 0")); P.add(other(f"s_cbranch_scc1 {la}"))
    for i in range(16):
        P.add(V(f"v_sub_f32 {vr(So+i)}, {vr(So+i)}, {vr(X)}", [So + i, X], [So + i]))
    P.add(label(la))
    l = newlbl("L_sk")
    P.add(other(f"s_cbranch_vccz {l}"))
    for i in range(0, 64, 4):
        for j in range(4):
            P.add(valu(f"v_accvgpr_read_b32 {vr(X+4+j)}, {ar(A_O+64*t+i+j)}", {f"a{A_O+64*t+i+j}"}, {f"v{X+4+j}"}))
        for j in range(4):
            P.add(V(f"v_mul_f32 {vr(X+4+j)}, {vr(X+4+j)}, {vr(X+1)}", [X + 4 + j, X + 1], [X + 4 + j]))
        for j in range(4):
            P.add(valu(f"v_accvgpr_write_b32 {ar(A_O+64*t+i+j)}, {vr(X+4+j)}", {f"v{X+4+j}"}, {f"a{A_O+64*t+i+j}"}))
    P.add(label(l))
    P.add(softmax_ops(t, sb, with_cmp=False, sub=X))
    P.add(other("s_nop 3", 16))
    P.add(other(f"s_setpc_b64 s[{S_RET}:{S_RET+1}]"))

def stamp(P, idx_expr):
    if not OPT["stamp"]: return
    if OPT["stamp"] == 2 and idx_expr not in (0, 10): return
    if isinstance(idx_expr, int):
        P.add(other(f"s_memtime s[{S_STAMP+2*idx_expr}:{S_STAMP+2*idx_expr+1}]"))
        P.add(other("s_waitcnt lgkmcnt(0)"))
    else:
        base = idx_expr[1]
        l1, l2 = newlbl("L_st"), newlbl("L_st")
        P.add(salu(f"s_cmp_lg_u32 s{S_ITEM}, 0")); P.add(other(f"s_cbranch_scc1 {l1}"))
        P.add(other(f"s_memtime s[{S_STAMP+2*base}:{S_STAMP+2*base+1}]")); P.add(other(f"s_branch {l2}"))
        P.add(label(l1)); P.add(other(f"s_memtime s[{S_STAMP+2*(base+4)}:{S_STAMP+2*(base+4)+1}]"))
        P.add(label(l2)); P.add(other("s_waitcnt lgkmcnt(0)"))

def stamp_out(P):
    if not OPT["stamp"]: return
    P.add(other("s_waitcnt vmcnt(0)"))
    stamp(P, 10)
    if not OPT["barstat"]:
        P.add(other("s_memrealtime s[90:91]")); P.add(other("s_waitcnt lgkmcnt(0)"))
        P.add(salu("s_mov_b32 s86, s88")); P.add(salu("s_mov_b32 s87, s90"))
    if OPT["dbg"]:
        P.add(other("s_load_dwordx2 s[4:5], s[0:1], 32")); P.add(other("s_waitcnt lgkmcnt(0)"))
        P.add(salu("s_mov_b32 s6, 64")); P.add(salu("s_mov_b32 s7, 0x20000"))
        for i in range(10, 0, -1):
            P.add(salu(f"s_sub_u32 s{S_STAMP+2*i}, s{S_STAMP+2*i}, s{S_STAMP}"))
        P.add(salu("s_sub_u32 s87, s87, s86"))
    else:
        P.add(other("s_load_dwordx2 s[4:5], s[0:1], 40")); P.add(other("s_waitcnt lgkmcnt(0)"))
        P.add(salu("s_mov_b32 s6, 268435456")); P.add(salu("s_mov_b32 s7, 0x20000"))
    P.add(salu(f"s_lshl_b32 s8, s{S_WG}, 2")); P.add(salu(f"s_add_u32 s8, s8, s{S_W}")); P.add(salu("s_lshl_b32 s8, s8, 6"))
    P.add(valu("v_mov_b32 v1, 0", (), {"v1"}))
    for i in range(13):
        P.add(valu(f"v_mov_b32 v2, s{S_STAMP+2*i if i < 11 else 86 + i - 11}", (), {"v2"}))
        P.add(Ins(f"buffer_store_dword v2, v1, s[4:7], s8 offen offset:{4*i}", "vmem", {"v1", "v2"}, ()))
        P.add(other("s_waitcnt vmcnt(0)"))

def img_addr(P, dst, chunk_even, sbase):
    P.add(V(f"v_xor_b32 {vr(dst)}, {chunk_even}, {vr(V_QXOR)}", [V_QXOR], [dst]))
    P.add(V(f"v_lshl_add_u32 {vr(dst)}, {vr(dst)}, 4, {vr(V_QBASE)}", [dst, V_QBASE], [dst]))
    P.add(V(f"v_add_u32 {vr(dst)}, s{sbase}, {vr(dst)}", [dst], [dst]))

def q_setup_tile(typ, t, absaddr=False, clear=True):
    C = L()
    AD = V_T
    qk, qb = q_reg(typ, t)
    RAW = V_S
    if absaddr:
        C.add(image_addrs(S_RB))
        for s in range(8):
            C.add(Ins(f"ds_read_b128 {vr(RAW+4*s,4)}, {vr(AD+s)}", "lds", {f"v{AD+s}"}, rs("v", RAW + 4 * s, 4)))
    else:
        for s in range(8):
            C.add(V(f"v_add_u32 {vr(V_X+s)}, s{S_RB}, {vr(AD+s)}", [AD + s], [V_X + s]))
        for s in range(8):
            C.add(Ins(f"ds_read_b128 {vr(RAW+4*s,4)}, {vr(V_X+s)}", "lds", {f"v{V_X+s}"}, rs("v", RAW + 4 * s, 4)))
    C.add(rb_advance())
    head = C.ins; C = L()
    if clear:
        for i in range(16):
            C.add(V(f"v_mov_b32 {vr(V_NB+16*t+i)}, 0", [], [V_NB + 16 * t + i]))
        C.add(V(f"v_mov_b32 {vr(V_L+t)}, 0", [], [V_L + t]))
    TMP = V_FREE
    for r0 in range(0, 32, 4):
        if r0 % 8 == 0 and clear:
            C.add(mfma("a", A_O + 64 * t + 2 * r0, "v", V_VF, "v", V_P + 8, czero=True))
        for j in range(4):
            r = RAW + r0 + j
            C.add(V(f"v_lshlrev_b32 {vr(TMP+2*j)}, 16, {vr(r)}", [r], [TMP + 2 * j]))
            C.add(V(f"v_and_b32 {vr(TMP+2*j+1)}, s{S_MASK}, {vr(r)}", [r], [TMP + 2 * j + 1]))
        for j in range(0, 8, 2):
            C.add(V(f"v_pk_mul_f32 {vr(TMP+j,2)}, {vr(TMP+j,2)}, s[{S_C2}:{S_C2+1}]", [TMP + j, TMP + j + 1], [TMP + j, TMP + j + 1], cost=6))
        for j in range(4):
            d = qb + r0 + j if qk == "v" else TMP + 8 + j
            C.add(V(f"v_cvt_pk_bf16_f32 {vr(d)}, {vr(TMP+2*j)}, {vr(TMP+2*j+1)}", [TMP + 2 * j, TMP + 2 * j + 1], [d]))
        if qk == "a":
            for j in range(4):
                C.add(valu(f"v_accvgpr_write_b32 {ar(qb+r0+j)}, {vr(TMP+8+j)}", {f"v{TMP+8+j}"}, {f"a{qb+r0+j}"}))
    return head, C.ins

def pieces_of(ops):
    pieces = []; cur = []
    for x in ops:
        cur.append(x)
        if x.kind == "vmem": pieces.append(cur); cur = []
    pieces[-1] += cur
    return pieces

def q_setup_pre():
    C = L()
    for i in range(8):
        C.add(V(f"v_mov_b32 {vr(V_P+8+i)}, 0", [], [V_P + 8 + i]))
    for s in range(8):
        C.add(V(f"v_xor_b32 {vr(V_T+s)}, {2*s}, {vr(V_QXOR)}", [V_QXOR], [V_T + s]))
        C.add(V(f"v_lshl_add_u32 {vr(V_T+s)}, {vr(V_T+s)}, 4, {vr(V_QBASE)}", [V_T + s, V_QBASE], [V_T + s]))
    return C.ins

def item_begin(P, typ):
    P.add(salu(f"s_sub_u32 s{S_DELTA}, s{S_RB}, s{S_KCUR}")); P.add(salu(f"s_mov_b32 s{S_KCUR}, s{S_RB}"))
    P.add(rebase(V_KA, 8))
    for s in range(8): P.add(k_load(s, 0))
    P.add(salu(f"s_sub_u32 s{S_DELTA}, s{S_RB}, s{S_VCUR}")); P.add(salu(f"s_mov_b32 s{S_VCUR}, s{S_RB}"))
    lo = f32bits(2.0 ** -20); hi = f32bits(65536.0)
    P.add(salu(f"s_mov_b32 s{S_LO}, 0x{lo:08x}")); P.add(salu(f"s_mov_b32 s{S_RANGE}, 0x{hi-lo:08x}"))
    P.lgkm0()

def lsum(P, lreg, dst, X):
    P.add(V(f"v_mov_b32 {vr(X)}, {vr(lreg)}", [lreg], [X]))
    P.add(V(f"v_mov_b32 {vr(X+1)}, {vr(lreg)}", [lreg], [X + 1]))
    P.add(perm(X, X + 1))
    P.add(V(f"v_add_f32 {vr(dst)}, {vr(X)}, {vr(X+1)}", [X, X + 1], [dst]))

def pack_unit(P, t, dt, kp, scale, B, addr, addsrc=None, scale2=None, woff=0):
    a0 = A_O + 64 * t + 16 * dt + 8 * kp
    for j in range(8):
        P.add(valu(f"v_accvgpr_read_b32 {vr(B+j)}, {ar(a0+j)}", {f"a{a0+j}"}, {f"v{B+j}"}))
    for j in range(0, 8, 2):
        P.add(V(f"v_pk_mul_f32 {vr(B+j,2)}, {vr(B+j,2)}, {vr(scale,2)}", [B + j, B + j + 1, scale, scale + 1], [B + j, B + j + 1], cost=6))
    if addsrc is not None:
        for j in range(0, 8, 2):
            P.add(V(f"v_pk_fma_f32 {vr(B+j,2)}, {vr(addsrc+j,2)}, {vr(scale2,2)}, {vr(B+j,2)}",
                    [B + j, B + j + 1, addsrc + j, addsrc + j + 1, scale2, scale2 + 1], [B + j, B + j + 1], cost=6))
    for j in range(4):
        P.add(V(f"v_cvt_pk_bf16_f32 {vr(B+8+j)}, {vr(B+2*j)}, {vr(B+2*j+1)}", [B + 2 * j, B + 2 * j + 1], [B + 8 + j]))
    P.add(perm(B + 8, B + 10)); P.add(perm(B + 9, B + 11))
    P.add(Ins(f"ds_write_b128 {vr(addr)}, {vr(B+8,4)} offset:{woff}", "lds", rs("v", B + 8, 4) | {f"v{addr}"}, ()))

def image_readback(C, pieces, RB, base_sreg=None):
    X = V_X
    C.add(V(f"v_add_u32 {vr(X+8)}, s{base_sreg if base_sreg is not None else S_M0}, {vr(V_LANE16)}", [V_LANE16], [X + 8]))
    C.lgkm0()
    for i, a in enumerate(pieces):
        off = (a % 4) * 1024 + (16384 if a >= 4 else 0)
        C.add(Ins(f"ds_read_b128 {vr(RB+4*i,4)}, {vr(X+8)} offset:{off}", "lds", {f"v{X+8}"}, rs("v", RB + 4 * i, 4)))

def image_stores(pieces, RB, so_lo, so_hi):
    nt = (" " + OPT["stf"].replace("_", " ")) if OPT["stf"] else ""
    out = []
    for i, a in enumerate(pieces):
        vo = V_DK + a if a < 4 else V_DV
        so = so_lo if a < 4 else so_hi
        out.append([Ins(f"buffer_store_dwordx4 {vr(RB+4*i,4)}, {vr(vo)}, s[{SRD_O}:{SRD_O+3}], s{so} offen offset:{(a%4)*1024}{nt}", "vmem",
                        rs("v", RB + 4 * i, 4) | {f"v{vo}"}, (), 8, tag="store")])
    return out

def image_addrs(slot_sreg=None, dst=V_T):
    C = L()
    if slot_sreg is None:
        C.add(salu(f"s_sub_u32 s{S_T0}, s{S_M0}, s{S_W4K}")); slot_sreg = S_T0
    C.add(V(f"v_add_u32 {vr(V_X+9)}, s{slot_sreg}, {vr(V_QBASE)}", [V_QBASE], [V_X + 9]))
    for u in range(8):
        C.add(V(f"v_xor_b32 {vr(dst+u)}, {2*u}, {vr(V_QXOR)}", [V_QXOR], [dst + u]))
        C.add(V(f"v_lshl_add_u32 {vr(dst+u)}, {vr(dst+u)}, 4, {vr(V_X+9)}", [dst + u, V_X + 9], [dst + u]))
    return C.ins

def pack_tile(t, scratch=V_S, nbuf=4, addr=V_T):
    C = L(); X = V_X
    lsum(C, V_L + t, X + 2, X)
    C.add(V(f"v_rcp_f32 {vr(X+2)}, {vr(X+2)}", [X + 2], [X + 2], trans=True))
    C.add(V(f"v_mov_b32 {vr(X+3)}, {vr(X+2)}", [X + 2], [X + 3]))
    u = 0
    for dt in range(4):
        for kp in range(2):
            pack_unit(C, t, dt, kp, X + 2, scratch + 12 * (u % nbuf), addr + u)
            u += 1
    return C.ins

HS = V_NB + 36
def koff(u): return (u % 4) * 1024 + (16384 if u >= 4 else 0)
def h_payload(par, u):
    send = [2 * (1 - par), 2 * (1 - par) + 1]
    a0 = A_O + 128 + 16 * send[u // 4] + 4 * (u % 4)
    return Ins(f"ds_write_b128 {vr(HS+5)}, {ar(a0,4)} offset:{koff(u)}", "lds", rs("a", a0, 4) | {f"v{HS+5}"}, ())

def h1(P, par):
    X = V_X; t = 2
    P.add(salu(f"s_xor_b32 s{S_XPART}, s{S_M0}, 4096"))
    P.add(V(f"v_mov_b32 {vr(HS+6)}, {vr(V_NB+16*t)}", [V_NB + 16 * t], [HS + 6]))
    lsum(P, V_L + t, HS + 7, X)
    P.add(V(f"v_add_u32 {vr(X+4)}, s{S_XPART}, {vr(V_LANE8)}", [V_LANE8], [X + 4]))
    P.add(Ins(f"ds_write_b64 {vr(X+4)}, {vr(HS+6,2)}", "lds", {f"v{X+4}", f"v{HS+6}", f"v{HS+7}"}, ()))
    P.add(V(f"v_add_u32 {vr(HS+4)}, s{S_XPART}, {vr(V_LANE16)}", [V_LANE16], [HS + 4]))
    P.add(V(f"v_add_u32 {vr(HS+5)}, s{S_M0}, {vr(V_LANE16)}", [V_LANE16], [HS + 5]))
    for u in range(1, 8): P.add(h_payload(par, u))

def h2(P, par):
    X = V_X
    P.add(V(f"v_add_u32 {vr(X+5)}, s{S_M0}, {vr(V_LANE8)}", [V_LANE8], [X + 5]))
    P.add(Ins(f"ds_read_b64 {vr(X+6,2)}, {vr(X+5)}", "lds", {f"v{X+5}"}, {f"v{X+6}", f"v{X+7}"}))
    P.lgkm0()
    P.add(h_payload(par, 0))
    P.add(V(f"v_min_f32 {vr(X)}, {vr(HS+6)}, {vr(X+6)}", [HS + 6, X + 6], [X]))
    P.add(V(f"v_sub_f32 {vr(X+1)}, {vr(X)}, {vr(HS+6)}", [X, HS + 6], [X + 1]))
    P.add(V(f"v_sub_f32 {vr(X)}, {vr(X)}, {vr(X+6)}", [X, X + 6], [X]))
    P.add(V(f"v_exp_f32 {vr(X+1)}, {vr(X+1)}", [X + 1], [X + 1], trans=True))
    P.add(V(f"v_exp_f32 {vr(X)}, {vr(X)}", [X], [X], trans=True))
    P.add(V(f"v_mul_f32 {vr(X+3)}, {vr(HS+7)}, {vr(X+1)}", [HS + 7, X + 1], [X + 3]))
    P.add(V(f"v_fma_f32 {vr(X+3)}, {vr(X+7)}, {vr(X)}, {vr(X+3)}", [X + 7, X, X + 3], [X + 3]))
    P.add(V(f"v_rcp_f32 {vr(X+3)}, {vr(X+3)}", [X + 3], [X + 3], trans=True))
    P.add(V(f"v_mul_f32 {vr(HS+2)}, {vr(X+3)}, {vr(X)}", [X + 3, X], [HS + 2]))
    P.add(V(f"v_mul_f32 {vr(HS)}, {vr(X+3)}, {vr(X+1)}", [X + 3, X + 1], [HS]))
    P.add(V(f"v_mov_b32 {vr(HS+3)}, {vr(HS+2)}", [HS + 2], [HS + 3]))
    P.add(V(f"v_mov_b32 {vr(HS+1)}, {vr(HS)}", [HS], [HS + 1]))

def h3(P):
    for u in range(8):
        P.add(Ins(f"ds_read_b128 {vr(V_NB+4*u,4)}, {vr(HS+4)} offset:{koff(u)}", "lds", {f"v{HS+4}"}, rs("v", V_NB + 4 * u, 4)))

def h4(P, par, base):
    X = V_X; t = 2
    keep = [2 * par, 2 * par + 1]
    P.add(V(f"v_bfe_u32 {vr(X)}, {vr(V_LANE16)}, 4, 5", [V_LANE16], [X]))
    P.add(V(f"v_bfe_u32 {vr(X+1)}, {vr(V_LANE16)}, 9, 1", [V_LANE16], [X + 1]))
    P.add(V(f"v_and_b32 {vr(X+6)}, 7, {vr(X)}", [X], [X + 6]))
    P.add(V(f"v_xor_b32 {vr(X+6)}, {vr(X+6)}, {vr(X+1)}", [X + 6, X + 1], [X + 6]))
    P.add(V(f"v_lshlrev_b32 {vr(X)}, 7, {vr(X)}", [X], [X]))
    P.add(V(f"v_add_u32 {vr(X)}, s{base}, {vr(X)}", [X], [X]))
    for u in range(4):
        P.add(V(f"v_xor_b32 {vr(V_T+u)}, {2*u}, {vr(X+6)}", [X + 6], [V_T + u]))
        P.add(V(f"v_lshl_add_u32 {vr(V_T+u)}, {vr(V_T+u)}, 4, {vr(X)}", [V_T + u, X], [V_T + u]))
    P.add(V(f"v_bfe_u32 {vr(X)}, {vr(V_LANE16)}, 7, 3", [V_LANE16], [X]))
    P.add(V(f"v_bfe_u32 {vr(X+1)}, {vr(V_LANE16)}, 4, 3", [V_LANE16], [X + 1]))
    P.add(V(f"v_xor_b32 {vr(X+1)}, {vr(X+1)}, {vr(X)}", [X, X + 1], [X + 1]))
    P.add(V(f"v_lshlrev_b32 {vr(X)}, 8, {vr(X)}", [X], [X]))
    P.add(V(f"v_lshl_add_u32 {vr(V_TC)}, {vr(X+1)}, 4, {vr(X)}", [X, X + 1], [V_TC]))
    P.add(V(f"v_add_u32 {vr(X+9)}, s{base}, {vr(V_LANE16)}", [V_LANE16], [X + 9]))
    u = 0
    for di, dt in enumerate(keep):
        for kp in range(2):
            pack_unit(P, t, dt, kp, HS, V_S + 12 * (u % 4), V_T + u, addsrc=V_NB + 16 * di + 8 * kp, scale2=HS + 2)
            u += 1
    P.lgkm0()
    for a in range(4):
        P.add(Ins(f"ds_read_b128 {vr(V_FREE+4*a,4)}, {vr(X+9)} offset:{a*1024}", "lds", {f"v{X+9}"}, rs("v", V_FREE + 4 * a, 4)))
    P.add(salu(f"s_add_u32 s{S_SO+2}, s{S_QH}, {128*par}")); P.add(salu(f"s_add_u32 s{S_SO+3}, s{S_QH}, {128*par+4096}"))
    P.lgkm0()
    nt = (" " + OPT["stf"].replace("_", " ")) if OPT["stf"] else ""
    return [[Ins(f"buffer_store_dwordx4 {vr(V_FREE+4*a,4)}, {vr(V_TC)}, s[{SRD_O}:{SRD_O+3}], s{S_SO+2+a//2} offen offset:{(a%2)*2048}{nt}", "vmem",
                 rs("v", V_FREE + 4 * a, 4) | {f"v{V_TC}"}, (), 8, tag="store")] for a in range(4)]

def clears(P, nt):
    for i in range(8):
        P.add(V(f"v_mov_b32 {vr(V_P+8+i)}, 0", [], [V_P + 8 + i]))
    for t in range(nt):
        for i in range(16):
            if i % 4 == 0:
                P.add(mfma("a", A_O + 64 * t + 4 * i, "v", V_VF, "v", V_P + 8, czero=True))
            P.add(V(f"v_mov_b32 {vr(V_NB+16*t+i)}, 0", [], [V_NB + 16 * t + i]))
        P.add(V(f"v_mov_b32 {vr(V_L+t)}, 0", [], [V_L + t]))

def post_A(P, par, tag, prev_t):
    allp = list(range(8)); sq = S_QA
    bar = lambda: (P.lgkm0(), P.add(other("s_barrier")))
    h1(P, par)
    P.add(salu(f"s_add_u32 s{S_DRL}, s{S_RB}, s{S_W4K}"))
    P.add(salu(f"s_mov_b32 s{S_IMG1}, s{S_M0}")); P.add(salu(f"s_mov_b32 s{S_DRG}, s{sq}")); P.add(salu(f"s_mov_b32 s{S_DRK}, 0"))
    hd, body = q_setup_tile("B", 0, absaddr=True, clear=False)
    P.add(hd); P.add(body)
    bar()
    h2(P, par)
    P.add(pack_tile(0))
    bar()
    h3(P)
    hd, body = q_setup_tile("B", 1, absaddr=True, clear=False)
    P.add(hd); P.add(body)
    bar()
    st_h = h4(P, par, S_M0)
    P.add(image_addrs())
    P.add(weave(pack_tile(1), st_h))
    P.add(salu(f"s_mov_b32 s{S_RSPAN}, {3*SLOT}"))
    P.add(salu(f"s_add_u32 s{S_M0}, s{S_W4K}, {2*SLOT}"))
    clears(P, 2)
    P.lgkm0()
    P.add(drain_read())
    stamp(P, ("item", 5))
    P.add(salu(f"s_mov_b32 s{S_ITEM}, 1")); P.add(salu(f"s_mov_b32 s{S_LIM}, 14"))
    P.add(other("s_branch L_go_B"))
    P.add(label(f"L_last_{tag}"))
    P.ldsq = []
    build_tail(P, "A", par, prev_t)
    P.lgkm0()
    h1(P, par)
    P.add(salu(f"s_add_u32 s{S_DRL}, s{S_RB}, s{S_W4K}"))
    P.add(image_addrs(S_RB))
    bar()
    h2(P, par)
    P.add(pack_tile(1))
    image_readback(P, allp, V_VF, S_DRL)
    P.add(salu(f"s_add_u32 s{S_SO}, s{sq}, 8192")); P.add(salu(f"s_add_u32 s{S_SO+1}, s{sq}, 12288"))
    bar()
    h3(P)
    C = L()
    st_h = h4(C, par, S_DRL)
    P.add(weave(C.ins, image_stores(allp, V_VF, S_SO, S_SO + 1), 0.0, 0.8))
    P.add(sum(st_h, []))
    stamp(P, ("item", 5))
    P.add(other("s_branch L_fin"))

def item_code(P, typ, par):
    tag = f"{typ}{par}" if typ == "A" else "B"
    if typ == "A":
        ring = [(0, 0), (0, 1), (0, 2), (1, 0), (1, 1)] if par == 0 else [(0, 0), (0, 1), (1, 0), (1, 1), (1, 2)]
        steps = [(0, s, t) for s, t in ring] + [(1, s, t) for s, t in ring]
    else:
        steps = [(0, 0, 0), (0, 0, 1), (0, 1, 0), (0, 1, 1)]
    P.add(label(f"L_item_{tag}"))
    stamp(P, ("item", 2))
    item_begin(P, typ)
    P.add(qk_group(typ, 0, 0))
    stamp(P, ("item", 3))
    assert not P.ldsq
    build_body(P, typ, steps, f"L_loop_{tag}")
    P.ldsq = []
    stamp(P, ("item", 4))
    r, sub, t = steps[-1]
    P.add(salu(f"s_cmp_lg_u32 s{S_ITEM}, 0"))
    P.add(other(f"s_cbranch_scc1 L_last_{tag}"))
    P.add(pv_group(t, (len(steps) - 1) % 2)[1:])
    P.add(other(f"s_waitcnt vmcnt({8 if typ == 'A' else 0})"))
    P.lgkm0()
    sq = S_QA if typ == "A" else S_QB
    if typ == "A":
        post_A(P, par, tag, t)
        return
    P.add(other("s_barrier")); st_h = []
    allp = list(range(8))
    P.add(image_addrs())
    P.add(weave(pack_tile(0), st_h))
    ntyp = "B" if typ == "A" else "A"
    nn = 3 if ntyp == "A" else 2
    P.add(salu(f"s_mov_b32 s{S_DRL}, s{S_M0}")); P.add(salu(f"s_mov_b32 s{S_DRG}, s{sq}")); P.add(salu(f"s_mov_b32 s{S_DRK}, 0"))
    P.add(salu(f"s_add_u32 s{S_IMG1}, s{S_RB}, s{S_W4K}"))
    for i in range(8):
        P.add(V(f"v_mov_b32 {vr(V_KF+i)}, 0", [], [V_KF + i]))
    hd, body = q_setup_tile(ntyp, 0, absaddr=True)
    P.add(hd); P.add(zb(body))
    P.add(pack_tile(1))
    if typ == "A":
        P.add(salu(f"s_mov_b32 s{S_RSPAN}, {3*SLOT}"))
        P.add(salu(f"s_add_u32 s{S_M0}, s{S_W4K}, {2*SLOT}"))
    else:
        P.add(salu(f"s_add_u32 s{S_M0}, s{S_W4K}, {1*SLOT}"))
    for t in range(1, nn):
        hd, body = q_setup_tile(ntyp, t, absaddr=True)
        P.add(hd)
        if typ == "B" and t == 2:
            P.add(salu(f"s_mov_b32 s{S_RHI}, {4*SLOT}")); P.add(salu(f"s_mov_b32 s{S_RSPAN}, {3*SLOT}"))
            P.add(weave(zb(body), pieces_of(sum(entry_issue(), []) + kv_next()), 0.0, 0.9))
        else:
            P.add(zb(body))
    for i in range(8):
        P.add(V(f"v_mov_b32 {vr(V_P+8+i)}, 0", [], [V_P + 8 + i]))
    P.lgkm0()
    P.add(drain_read())
    stamp(P, ("item", 5))
    P.add(salu(f"s_mov_b32 s{S_ITEM}, 1")); P.add(salu(f"s_mov_b32 s{S_LIM}, 14"))
    P.add(other("s_branch L_go_B" if typ == "A" else "s_branch L_go_A"))
    P.add(label(f"L_last_{tag}"))
    P.ldsq = []
    build_tail(P, "B", 0, steps[-1][2])
    P.lgkm0()
    P.add(image_addrs())
    P.add(pack_tile(1))
    image_readback(P, allp, V_VF)
    P.add(salu(f"s_add_u32 s{S_SO+2}, s{sq}, 8192")); P.add(salu(f"s_add_u32 s{S_SO+3}, s{sq}, 12288"))
    P.add(sum(image_stores(allp, V_VF, S_SO + 2, S_SO + 3), []))
    stamp(P, ("item", 5))
    P.add(other("s_branch L_fin"))

def zb(body):
    out = []
    for x in body:
        if x.kind == "mfma":
            d = int(x.text.split("a[")[1].split(":")[0])
            out.append(mfma("a", d, "v", V_VF, "v", V_KF, czero=True))
        else:
            out.append(x)
    return out

def prologue(P):
    P.add(salu(f"s_cmp_ge_u32 s{S_WG}, 256")); P.add(other("s_cbranch_scc1 L_done"))
    stamp(P, 0)
    if OPT["stamp"] and not OPT["barstat"]:
        P.add(other("s_memrealtime s[88:89]")); P.add(other("s_waitcnt lgkmcnt(0)"))
    P.add(other("s_load_dwordx4 s[4:7], s[0:1], 0")); P.add(other("s_load_dwordx4 s[8:11], s[0:1], 16"))
    X = V_X
    lane, key, h = X, X + 1, X + 2
    P.add(V(f"v_lshrrev_b32 {vr(X+3)}, 6, v0", [0], [X + 3]))
    P.add(V(f"v_and_b32 {vr(lane)}, 63, v0", [0], [lane]))
    P.add(Ins(f"v_readfirstlane_b32 s{S_W}, {vr(X+3)}", "rfl", {f"v{X+3}"}, {f"s{S_W}"}))
    A = lambda text, rd, wr: P.add(V(text, rd, wr))
    rr, pp = X + 4, X + 5
    A(f"v_lshrrev_b32 {vr(rr)}, 4, {vr(lane)}", [lane], [rr])
    A(f"v_and_b32 {vr(pp)}, 15, {vr(lane)}", [lane], [pp])
    A(f"v_lshlrev_b32 {vr(X+6)}, 8, {vr(rr)}", [rr], [X + 6])
    A(f"v_xor_b32 {vr(X+7)}, {vr(pp)}, {vr(rr)}", [pp, rr], [X + 7])
    for a in range(4):
        A(f"v_xor_b32 {vr(X+8)}, {4*a}, {vr(X+7)}", [X + 7], [X + 8])
        A(f"v_lshl_add_u32 {vr(V_DK+a)}, {vr(X+8)}, 4, {vr(X+6)}", [X + 8, X + 6], [V_DK + a])
    A(f"v_lshlrev_b32 {vr(X+7)}, 2, {vr(rr)}", [rr], [X + 7])
    A(f"v_xor_b32 {vr(X+7)}, {vr(pp)}, {vr(X+7)}", [pp, X + 7], [X + 7])
    A(f"v_lshl_add_u32 {vr(V_DV)}, {vr(X+7)}, 4, {vr(X+6)}", [X + 7, X + 6], [V_DV])
    S = lambda t: P.add(salu(t))
    S(f"s_and_b32 s{S_T0}, s{S_WG}, 7"); S(f"s_lshr_b32 s{S_T1}, s{S_WG}, 4"); S(f"s_lshl_b32 s{S_T1}, s{S_T1}, 3")
    S(f"s_add_u32 s{S_T0}, s{S_T0}, s{S_T1}")
    S(f"s_lshr_b32 s{S_ROLE}, s{S_WG}, 3"); S(f"s_and_b32 s{S_ROLE}, s{S_ROLE}, 1")
    S(f"s_lshl_b32 s{S_P0}, s{S_T0}, 18"); S(f"s_lshl_b32 s{S_W4K}, s{S_W}, 12"); S(f"s_mov_b32 s{S_M0}, s{S_W4K}")
    S(f"s_mov_b32 s{S_KV}, s{S_W4K}")
    S(f"s_lshl_b32 s{S_T0}, s{S_T0}, 1")
    S(f"s_add_u32 s{S_T1}, s{S_T0}, s{S_ROLE}"); S(f"s_mul_i32 s{S_T1}, s{S_T1}, 147456")
    S(f"s_lshl_b32 s{S_T2}, s{S_W}, 14"); S(f"s_add_u32 s{S_QA}, s{S_T1}, s{S_T2}")
    S(f"s_lshr_b32 s{S_QH}, s{S_W}, 1"); S(f"s_lshl_b32 s{S_QH}, s{S_QH}, 13"); S(f"s_add_u32 s{S_QH}, s{S_QH}, s{S_T1}")
    S(f"s_add_u32 s{S_QH}, s{S_QH}, {8*8192}")
    S(f"s_xor_b32 s{S_T1}, s{S_ROLE}, 1"); S(f"s_add_u32 s{S_T1}, s{S_T0}, s{S_T1}"); S(f"s_mul_i32 s{S_T1}, s{S_T1}, 147456")
    S(f"s_add_u32 s{S_QB}, s{S_T1}, s{S_T2}"); S(f"s_add_u32 s{S_QB}, s{S_QB}, {10*8192}")
    c = (128 ** -0.5) * math.log2(math.e)
    S(f"s_mov_b32 s{S_C}, 0x{f32bits(c):08x}"); S(f"s_mov_b32 s{S_C2}, s{S_C}"); S(f"s_mov_b32 s{S_C2+1}, s{S_C}")
    S(f"s_mov_b32 s{S_HI}, 0x{f32bits(65536.0):08x}")
    S(f"s_mov_b32 s{S_MASK}, 0xffff0000")
    S("s_mov_b32 s86, 0"); S("s_mov_b32 s87, 0")
    S(f"s_mov_b32 s{S_HI+1}, {sum(1 << i for i in (2, 3, 4, 5, 6, 8, 9, 10))}")
    S(f"s_mov_b32 s{S_HI+2}, {sum(1 << i for i in (2, 3, 4, 5, 8, 9, 10))}")
    S(f"s_mov_b32 s{S_MSK1}, 0x0f03")
    S(f"s_mov_b32 s{S_RHI}, {5*SLOT}"); S(f"s_mov_b32 s{S_RSPAN}, {5*SLOT}")
    S(f"s_mov_b32 s{S_HI+3}, 0x1fe02")
    for r_ in (S_N, S_RB, S_ITEM, S_DELTA, S_KCUR, S_VCUR): S(f"s_mov_b32 s{r_}, 0")
    S(f"s_mov_b32 s{S_E1+3}, 0x20000"); S(f"s_mov_b32 s{S_E2+3}, 0x20000")
    S(f"s_mov_b32 s{SRD_O+2}, {QBYTES}"); S(f"s_mov_b32 s{SRD_O+3}, 0x20000")
    P.add(other("s_waitcnt lgkmcnt(0)"))
    S(f"s_mov_b32 s{SRD_O}, s{S_PO}"); S(f"s_mov_b32 s{SRD_O+1}, s{S_PO+1}")
    S(f"s_add_u32 s{S_PK}, s{S_PK}, s{S_P0}"); S(f"s_addc_u32 s{S_PK+1}, s{S_PK+1}, 0")
    S(f"s_add_u32 s{S_PV}, s{S_PV}, s{S_P0}"); S(f"s_addc_u32 s{S_PV+1}, s{S_PV+1}, 0")
    def qlist(typ):
        if typ == "A":
            S(f"s_mov_b32 s{S_Q2}, s{S_QA}"); S(f"s_add_u32 s{S_Q2+1}, s{S_QA}, 8192"); S(f"s_mov_b32 s{S_Q2+2}, s{S_QH}"); S(f"s_mov_b32 s{S_QLEFT}, 3")
        else:
            S(f"s_mov_b32 s{S_Q2}, s{S_QB}"); S(f"s_add_u32 s{S_Q2+1}, s{S_QB}, 8192"); S(f"s_mov_b32 s{S_Q2+2}, s{S_QB}"); S(f"s_mov_b32 s{S_QLEFT}, 2")
    def rest():
        A(f"v_and_b32 {vr(key)}, 31, {vr(lane)}", [lane], [key])
        A(f"v_lshrrev_b32 {vr(h)}, 5, {vr(lane)}", [lane], [h])
        A(f"v_lshlrev_b32 {vr(V_LANE8)}, 3, {vr(lane)}", [lane], [V_LANE8])
        A(f"v_lshlrev_b32 {vr(V_LANE16)}, 4, {vr(lane)}", [lane], [V_LANE16])
        A(f"v_lshlrev_b32 {vr(X+3)}, 8, {vr(key)}", [key], [X + 3])
        A(f"v_and_b32 {vr(X+4)}, 15, {vr(key)}", [key], [X + 4])
        A(f"v_xor_b32 {vr(X+4)}, {vr(X+4)}, {vr(h)}", [X + 4, h], [X + 4])
        for s in range(8):
            A(f"v_xor_b32 {vr(X+5)}, {2*s}, {vr(X+4)}", [X + 4], [X + 5])
            A(f"v_lshl_add_u32 {vr(V_KA+s)}, {vr(X+5)}, 4, {vr(X+3)}", [X + 5, X + 3], [V_KA + s])
        A(f"v_and_b32 {vr(X+5)}, 15, {vr(key)}", [key], [X + 5])
        A(f"v_lshlrev_b32 {vr(X+6)}, 8, {vr(X+5)}", [X + 5], [X + 6])
        A(f"v_bfe_u32 {vr(X+7)}, {vr(key)}, 4, 1", [key], [X + 7])
        A(f"v_lshl_add_u32 {vr(X+6)}, {vr(X+7)}, 14, {vr(X+6)}", [X + 7, X + 6], [X + 6])
        A(f"v_add_u32 {vr(V_QBASE)}, s{S_W4K}, {vr(X+6)}", [X + 6], [V_QBASE])
        A(f"v_and_b32 {vr(X+6)}, 3, {vr(key)}", [key], [X + 6])
        A(f"v_lshlrev_b32 {vr(X+6)}, 2, {vr(X+6)}", [X + 6], [X + 6])
        P.add(valu(f"v_cmp_ne_u32 vcc, 0, {vr(X+7)}", {f"v{X+7}"}, {"vcc"}))
        P.add(valu(f"v_cndmask_b32 {vr(X+5)}, {vr(X+5)}, {vr(X+6)}, vcc", {f"v{X+5}", f"v{X+6}", "vcc"}, {f"v{X+5}"}))
        A(f"v_xor_b32 {vr(V_QXOR)}, {vr(X+5)}, {vr(h)}", [X + 5, h], [V_QXOR])
        r_, cq, dsel = X + 4, X + 5, X + 6
        A(f"v_bfe_u32 {vr(r_)}, {vr(lane)}, 2, 2", [lane], [r_])
        A(f"v_and_b32 {vr(cq)}, 3, {vr(lane)}", [lane], [cq])
        A(f"v_bfe_u32 {vr(dsel)}, {vr(lane)}, 4, 1", [lane], [dsel])
        A(f"v_lshl_add_u32 {vr(X+7)}, {vr(h)}, 2, {vr(r_)}", [h, r_], [X + 7])
        A(f"v_lshlrev_b32 {vr(X+7)}, 8, {vr(X+7)}", [X + 7], [X + 7])
        A(f"v_lshl_add_u32 {vr(X+7)}, {vr(dsel)}, 5, {vr(X+7)}", [dsel, X + 7], [X + 7])
        A(f"v_lshl_add_u32 {vr(X+7)}, {vr(cq)}, 3, {vr(X+7)}", [cq, X + 7], [X + 7])
        A(f"v_add_u32 {vr(X+7)}, 16384, {vr(X+7)}", [X + 7], [X + 7])
        for dt in range(4):
            A(f"v_xor_b32 {vr(X+8)}, {dt}, {vr(r_)}", [r_], [X + 8])
            A(f"v_lshl_add_u32 {vr(V_VA+dt)}, {vr(X+8)}, 6, {vr(X+7)}", [X + 8, X + 7], [V_VA + dt])
        for i in range(32):
            P.add(V(f"v_mov_b32 {vr(V_VF+i)}, 0", [], [V_VF + i]))
    S(f"s_cmp_lg_u32 s{S_ROLE}, 0"); P.add(other("s_cbranch_scc1 L_pro_B"))
    for typ in ("A", "B"):
        if typ == "B": P.add(label("L_pro_B"))
        nq = 3 if typ == "A" else 2
        qlist(typ)
        for e in range(2):
            P.add(set_q(S_Q2 + e)); P.add(sum(entry_issue(), []))
        rest()
        P.add(q_setup_pre())
        later = []
        if typ == "A":
            later.append(set_q(S_Q2 + 2) + sum(entry_issue(), []))
        later.append(set_kv() + sum(entry_issue(), []) + kv_next())
        later.append(sum(entry_issue(), []) + kv_next())
        for t in range(nq):
            P.add(other(f"s_waitcnt vmcnt({8 if t < 2 else 8})"))
            hd, body = q_setup_tile(typ, t)
            P.add(hd)
            if t < len(later):
                ops = later[t]
                P.add(weave(body, pieces_of(ops), 0.0, 0.9))
            else:
                P.add(body)
        qlist("B" if typ == "A" else "A")
        P.add(salu(f"s_mov_b32 s{S_LIM}, 8"))
        P.add(other("s_waitcnt vmcnt(8)"))
        P.add(other("s_barrier"))
        stamp(P, 1)
        P.add(other(f"s_branch L_go_{typ}"))
    P.add(label("L_go_A"))
    S(f"s_and_b32 s{S_T0}, s{S_W}, 1"); S(f"s_cmp_lg_u32 s{S_T0}, 0")
    P.add(other("s_cbranch_scc1 L_item_A1")); P.add(other("s_branch L_item_A0"))
    P.add(label("L_go_B")); P.add(other("s_branch L_item_B"))

def main():
    P = Prog()
    prologue(P)
    item_code(P, "A", 0)
    item_code(P, "A", 1)
    item_code(P, "B", 0)
    P.add(label("L_fin"))
    stamp_out(P)
    P.add(label("L_done")); P.add(other("s_endpgm"))
    for blk in outline:
        P.add(blk)
    for st, ro, rt, adj in stubs:
        P.add(label(st)); P.add(salu(f"s_mov_b32 s{S_ADJ}, {adj}"))
        P.add(other(f"s_call_b64 s[{S_RET}:{S_RET+1}], {ro}")); P.add(other(f"s_branch {rt}"))
    used = sorted(set(x[1] for x in stubs))
    for ro in used:
        _, _, t, sb = ro.split("_")
        slow_routine(P, int(t), int(sb))
    head = open("standalone__gqa_softmax__near_ridge.s.ref").read().split("; @launch")[0]
    out = head + "; @launch grid=(256,1,1) block=(256,1,1) lds=163840\n"
    out += '.amdgcn_target "amdgcn-amd-amdhsa--gfx950"\n.text\n.globl %s\n.p2align 8\n.type %s,@function\n%s:\n' % (NAME, NAME, NAME)
    out += P.text() + "\n"
    out += '''.section .rodata,"a"
.p2align 6
.amdhsa_kernel %s
  .amdhsa_next_free_vgpr 512
  .amdhsa_next_free_sgpr 102
  .amdhsa_accum_offset 256
  .amdhsa_group_segment_fixed_size 0
  .amdhsa_kernarg_size 48
  .amdhsa_user_sgpr_count 2
  .amdhsa_user_sgpr_kernarg_segment_ptr 1
  .amdhsa_system_sgpr_workgroup_id_x 1
.end_amdhsa_kernel
''' % NAME
    open(sys.argv[1] if len(sys.argv) > 1 else "k2.s", "w").write(out)

main()
```

```python
import sys, math, struct

OPT = dict(
    ld_nt=True, st_nt=False, ldf='nt', stf='sc1_nt',
    no_sm=False, no_lds=False, no_exp=False, no_chk=False, no_dma=False, no_mfma=False, stamp=0, no_bar=False, no_sc=False, barstat=0, pvdt=False, dbg=False,
)
for a in sys.argv[2:]:
    k, v = a.split("=")
    OPT[k] = type(OPT[k])(int(v)) if not isinstance(OPT[k], str) else v

NAME = "standalone__gqa_softmax__near_ridge_kernel"
QBYTES = 37748736
KBYTES = 33554432
SLOT = 32768

def f32bits(x):
    return struct.unpack("<I", struct.pack("<f", x))[0]

V_Q0 = 0
V_NB = 32
V_FREE = 80
V_KF = 96
V_VF = 128
V_S = 160
V_P = 192
V_T = 208
V_L = 219
V_TS = 222
V_KA = 223
V_VA = 231
V_DK = 235
V_DV = 239
V_QBASE = 240
V_QXOR = 241
V_X = 242
V_TC = 253
V_LANE8 = 254
V_LANE16 = 255
A_O = 0
A_Q1 = 192
S_WG, S_W = 2, 3
S_PQ, S_PK, S_PV, S_PO = 4, 6, 8, 10
S_E1, S_E2, SRD_O = 12, 16, 24
S_O1, S_O2 = 20, 21
S_C = 28
S_LO, S_RANGE = 29, 22
S_RET = 30
S_N = 32
S_KV = 33
S_M0 = 34
S_RB = 35
S_DELTA = 36
S_QA = 37
S_QH = 38
S_QB = 39
S_KVN = 40
S_QPOS = 41
S_QLEFT = 42
S_ROLE = 43
S_ITEM = 44
S_T0, S_T1, S_T2 = 45, 46, 47
S_Q2 = 48
S_KCUR, S_VCUR = 51, 52
S_XME, S_XPART = 53, 54
S_W4K = 55
S_HI = 56
S_P0, S_P1, S_P2 = 60, 61, 62
S_MASK = 63
S_MSK1 = 23
S_LIM, S_ADJ, S_NDELTA = 43, 100, 101
S_SO = 96
S_C2 = 94
S_RHI, S_RSPAN = 40, 41
S_DRL, S_DRG, S_DRK, S_IMG1 = 42, 53, 61, 62
S_STAMP = 64

def vr(b, n=1):
    return f"v{b}" if n == 1 else f"v[{b}:{b+n-1}]"
def ar(b, n=1):
    return f"a{b}" if n == 1 else f"a[{b}:{b+n-1}]"
def rs(p, b, n):
    return {f"{p}{i}" for i in range(b, b + n)}

class Ins:
    __slots__ = ("text", "kind", "rd", "wr", "cost", "srcc", "tag", "skip", "likely")
    def __init__(self, text, kind, rd=(), wr=(), cost=4, srcc=(), tag=None):
        self.text, self.kind, self.rd, self.wr, self.cost, self.srcc, self.tag = text, kind, set(rd), set(wr), cost, set(srcc), tag
        self.skip = False
        self.likely = True

def R(kind, b, n=1):
    return (vr(b, n) if kind == "v" else ar(b, n)), rs(kind, b, n)

def mfma(dk, d, ak, a, bk, b, czero=False, cblk=None):
    dt, ds_ = R(dk, d, 16); at, as_ = R(ak, a, 4); bt, bs_ = R(bk, b, 4)
    if cblk is not None:
        c, cs = R(dk, cblk, 16)
    elif czero:
        c, cs = "0", set()
    else:
        c, cs = dt, ds_
    return Ins(f"v_mfma_f32_32x32x16_bf16 {dt}, {at}, {bt}, {c}", "mfma", as_ | bs_ | cs, ds_, 8, srcc=cs)
def valu(text, rd, wr, trans=False, cost=None):
    return Ins(text, "trans" if trans else "valu", rd, wr, cost or (8 if trans else 4))
def salu(text, rd=(), wr=()):
    return Ins(text, "salu", rd, wr, 4)
def other(text, cost=4):
    return Ins(text, "other", (), (), cost)
def label(name):
    return Ins(name + ":", "label", (), (), 0)
def V(text, rd, wr, **kw):
    return valu(text, {f"v{r}" for r in rd}, {f"v{w}" for w in wr}, **kw)
def perm(a, b):
    return Ins(f"v_permlane32_swap_b32 {vr(a)}, {vr(b)}", "perm", {f"v{a}", f"v{b}"}, {f"v{a}", f"v{b}"})

class Prog:
    def __init__(self):
        self.ins = []
        self.ldsq = []
    def states_back(self, inrun=False):
        d = 0
        for i in reversed(self.ins):
            if i.kind == "label":
                inrun = False
                continue
            yield i, d
            if not i.skip:
                inrun = False
            if i.skip and not inrun:
                continue
            if i.text.startswith("s_nop"):
                d += int(i.text.split()[1]) + 1
            else:
                d += 1
            if d > 24:
                return
    def need(self, x):
        n = 0
        for p, d in self.states_back(x.skip):
            req = 0
            if p.kind == "mfma":
                if x.kind == "mfma":
                    if p.wr & (x.rd - x.srcc): req = 12
                    elif (p.wr & x.srcc) and (p.wr != x.srcc): req = 10
                    elif (p.wr & x.wr) and not (p.wr & x.srcc): req = 12
                elif x.kind in ("valu", "trans", "lds", "vmem", "perm"):
                    if p.wr & (x.rd | x.wr): req = 12
                    if x.kind in ("valu", "trans", "perm") and (p.srcc & x.wr): req = max(req, 7)
            elif p.kind in ("valu", "trans", "perm"):
                if x.kind == "mfma" and (p.wr & x.rd): req = 2
                if x.kind == "perm" and (p.wr & x.rd): req = 2
                if p.kind == "perm" and x.kind in ("valu", "trans") and (p.wr & x.rd): req = max(req, 2)
                if p.kind == "trans" and x.kind in ("valu", "perm") and (p.wr & x.rd): req = max(req, 1)
                if x.kind in ("valu", "trans") and any(r.startswith("s") or r == "vcc" for r in (p.wr & x.rd)): req = max(req, 2)
                if x.kind == "vmem" and any(r.startswith("s") for r in (p.wr & x.rd)): req = max(req, 5)
                if x.kind == "rfl" and (p.wr & x.rd): req = max(req, 1)
            elif p.kind == "rfl":
                if x.kind in ("valu", "trans") and (p.wr & x.rd): req = 2
                if x.kind == "vmem" and (p.wr & x.rd): req = 5
                if x.kind == "salu" and (p.wr & x.rd): req = 2
            elif p.kind == "vmem" and p.tag == "store":
                if x.kind in ("valu", "trans", "perm", "lds") and (p.rd & x.wr): req = 2
            elif p.kind == "salu" and "m0" in p.wr:
                if x.kind == "vmem" and "m0" in x.rd: req = 1
            if req > d:
                n = max(n, req - d)
        return n
    def add(self, x):
        if isinstance(x, (list, tuple)):
            for y in x: self.add(y)
            return
        if x.text == "s_waitcnt lgkmcnt(0)":
            self.ins.append(x); self.ldsq = []
            return
        if x.kind in ("mfma", "valu", "trans", "vmem", "perm", "lds"):
            use = x.rd | x.wr
            last = -1
            for i, (dst, tg) in enumerate(self.ldsq):
                if dst & use: last = i
            if last >= 0 and self.ldsq[last][1] is not None and x.kind == "mfma":
                tg = self.ldsq[last][1]
                while last + 1 < len(self.ldsq) and self.ldsq[last + 1][1] == tg: last += 1
            if last >= 0:
                n = len(self.ldsq) - 1 - last
                n = min(n, 15)
                self.ins.append(other(f"s_waitcnt lgkmcnt({n})"))
                self.ldsq = self.ldsq[len(self.ldsq) - n:] if n else []
        n = self.need(x)
        while n > 0:
            k = min(n, 16)
            self.ins.append(other(f"s_nop {k-1}", 4 * k))
            self.ins[-1].skip = x.skip
            n -= k
        self.ins.append(x)
        if x.kind == "lds":
            self.ldsq.append((set(x.wr), x.tag))
    def lgkm0(self):
        self.add(other("s_waitcnt lgkmcnt(0)"))
    def text(self):
        return "\n".join(i.text if i.kind == "label" else "    " + i.text for i in self.ins)

class L:
    def __init__(self): self.ins = []
    def add(self, x):
        if isinstance(x, (list, tuple)):
            for y in x: self.add(y)
        else: self.ins.append(x)
    def lgkm0(self): self.add(other("s_waitcnt lgkmcnt(0)"))

def weave(stream, extras, lead=0.05, end=0.95):
    tot = sum(x.cost for x in stream) or 1
    out = []; acc = 0; k = 0; n = len(extras)
    for x in stream:
        while k < n and acc >= tot * (lead + (end - lead) * k / max(1, n)):
            out += extras[k]; k += 1
        out.append(x); acc += x.cost
    while k < n:
        out += extras[k]; k += 1
    return out

def cond(ops, likely=False):
    for o in ops:
        o.skip = True; o.likely = likely
    return ops
lbl_n = [0]
def newlbl(p="L"):
    lbl_n[0] += 1
    return f"{p}{lbl_n[0]}"

def q_reg(typ, t):
    return ("v", V_Q0) if t == 0 else ("a", A_Q1 + 32 * (t - 1))

def qk_group(typ, t, sb):
    qk, qb = q_reg(typ, t)
    return [mfma("v", V_S + 16 * sb, "v", V_KF + 4 * s, qk, qb + 4 * s, cblk=(V_NB + 16 * t if s == 0 else None)) for s in range(8)]

def pv_order():
    return [(dt, ks) for dt in range(4) for ks in range(2)] if OPT["pvdt"] else [(dt, ks) for ks in range(2) for dt in range(4)]

def pv_group(t, pb):
    return [mfma("a", A_O + 64 * t + 16 * dt, "v", V_VF + 8 * dt + 4 * ks, "v", V_P + 8 * pb + 4 * ks) for dt, ks in pv_order()]

def k_load(s, sub):
    return Ins(f"ds_read_b128 {vr(V_KF+4*s,4)}, {vr(V_KA+s)} offset:{sub*8192}", "lds", {f"v{V_KA+s}"}, rs("v", V_KF + 4 * s, 4), 6, tag="K")

def v_load(dt, ks, e4, sub):
    d = V_VF + 8 * dt + 4 * ks + 2 * e4
    return Ins(f"ds_read_b64_tr_b16 {vr(d,2)}, {vr(V_VA+dt)} offset:{sub*8192+ks*4096+e4*2048}", "lds", {f"v{V_VA+dt}"}, rs("v", d, 2), 4, tag="V")

def softmax_ops(t, sb, with_cmp=True, sub=None):
    S = V_S + 16 * sb; P = V_P + 8 * sb; T = V_T; ts = V_TS
    ops = []; tail = []
    for k in range(19):
        if k < 16:
            if sub is not None:
                ops.append(V(f"v_sub_f32 {vr(T+k%8)}, {vr(S+k)}, {vr(sub)}", [S + k, sub], [T + k % 8]))
                ops.append(V(f"v_exp_f32 {vr(T+k%8)}, {vr(T+k%8)}", [T + k % 8], [T + k % 8], trans=True))
            else:
                ops.append(V(f"v_exp_f32 {vr(T+k%8)}, {vr(S+k)}", [S + k], [T + k % 8], trans=True))
        r = k - 2
        if 1 <= r < 16:
            if r == 1:
                ops.append(V(f"v_add_f32 {vr(ts)}, {vr(T)}, {vr(T+1)}", [T, T + 1], [ts]))
            else:
                ops.append(V(f"v_add_f32 {vr(ts)}, {vr(ts)}, {vr(T+r%8)}", [ts, T + r % 8], [ts]))
            if r % 2 == 1:
                a, b = T + (r - 1) % 8, T + r % 8
                c = V(f"v_cvt_pk_bf16_f32 {vr(P+r//2)}, {vr(a)}, {vr(b)}", [a, b], [P + r // 2], cost=5)
                (tail if r >= 11 else ops).append(c)
    if with_cmp:
        ops.append(V(f"v_subrev_u32 {vr(V_TC)}, s{S_LO}, {vr(ts)}", [ts], [V_TC]))
        ops.append(valu(f"v_cmp_lt_u32 vcc, s{S_RANGE}, {vr(V_TC)}", {f"v{V_TC}"}, {"vcc"}))
    return ops + tail

stubs = []
site_n = [0]
def check_ops(t, sb, adj=0):
    k = site_n[0]; site_n[0] += 1
    stubs.append((f"L_stub{k}", f"L_slow_{t}_{sb}", f"L_ret{k}", adj))
    return [other(f"s_cbranch_vccnz L_stub{k}", 10),
            label(f"L_ret{k}"),
            V(f"v_add_f32 {vr(V_L+t)}, {vr(V_L+t)}, {vr(V_TS)}", [V_L + t, V_TS], [V_L + t])]

def entry_issue():
    nt = (" " + OPT["ldf"].replace("_", " ")) if OPT["ldf"] else ""
    u = []
    for half, (e, so) in enumerate(((S_E1, S_O1), (S_E2, S_O2))):
        for a in range(4):
            vo = V_DK + a if half == 0 else V_DV
            x = []
            if a == 0:
                x.append(salu(f"s_mov_b32 m0, s{S_M0}", (), {"m0"}) if half == 0 else salu(f"s_add_u32 m0, s{S_M0}, 16384", (), {"m0"}))
            x.append(Ins(f"buffer_load_dwordx4 {vr(vo)}, s[{e}:{e+3}], s{so} offen offset:{a*1024}{nt} lds", "vmem", {f"v{vo}", "m0"}, (), 8))
            u.append(x)
    u.append([salu(f"s_add_u32 s{S_M0}, s{S_M0}, {SLOT}"),
              salu(f"s_cmp_ge_u32 s{S_M0}, s{S_RHI}"),
              salu(f"s_cselect_b32 s{S_P0}, s{S_RSPAN}, 0"),
              salu(f"s_sub_u32 s{S_M0}, s{S_M0}, s{S_P0}")])
    return u

def kv_next():
    return [salu(f"s_add_u32 s{S_O1}, s{S_O1}, 16384"), salu(f"s_add_u32 s{S_O2}, s{S_O2}, 16384")]

def set_q(sreg):
    return [salu(f"s_mov_b64 s[{S_E1}:{S_E1+1}], s[{S_PQ}:{S_PQ+1}]"), salu(f"s_mov_b64 s[{S_E2}:{S_E2+1}], s[{S_PQ}:{S_PQ+1}]"),
            salu(f"s_mov_b32 s{S_E1+2}, {QBYTES}"), salu(f"s_mov_b32 s{S_E2+2}, {QBYTES}"),
            salu(f"s_mov_b32 s{S_O1}, s{sreg}"), salu(f"s_add_u32 s{S_O2}, s{sreg}, 4096")]

def set_kv():
    return [salu(f"s_mov_b64 s[{S_E1}:{S_E1+1}], s[{S_PK}:{S_PK+1}]"), salu(f"s_mov_b64 s[{S_E2}:{S_E2+1}], s[{S_PV}:{S_PV+1}]"),
            salu(f"s_mov_b32 s{S_E1+2}, 262144"), salu(f"s_mov_b32 s{S_E2+2}, 262144"),
            salu(f"s_mov_b32 s{S_O1}, s{S_KV}"), salu(f"s_mov_b32 s{S_O2}, s{S_KV}")]

outline = []
def drain_read():
    A = V_X + 10
    return [V(f"v_add_u32 {vr(A)}, s{S_DRL}, {vr(V_LANE16)}", [V_LANE16], [A])] + \
           [Ins(f"ds_read_b128 {vr(V_FREE+4*a,4)}, {vr(A)} offset:{a*1024}", "other") for a in range(4)]

def drain_store(back):
    nt = (" " + OPT["stf"].replace("_", " ")) if OPT["stf"] else ""
    lodd = newlbl("L_do")
    def st(vo): return [Ins(f"buffer_store_dwordx4 {vr(V_FREE+4*a,4)}, {vr(vo(a))}, s[{SRD_O}:{SRD_O+3}], s{S_DRG} offen offset:{a*1024}{nt}", "other") for a in range(4)]
    return [other("s_waitcnt lgkmcnt(0)"), salu(f"s_bitcmp1_b32 s{S_DRK}, 0"), other(f"s_cbranch_scc1 {lodd}")] + \
           st(lambda a: V_DK + a) + [salu(f"s_add_u32 s{S_DRL}, s{S_DRL}, 16384"), salu(f"s_add_u32 s{S_DRG}, s{S_DRG}, 4096"),
                                     salu(f"s_add_u32 s{S_DRK}, s{S_DRK}, 1"), other(f"s_branch {back}"), label(lodd)] + \
           st(lambda a: V_DV) + [salu(f"s_mov_b32 s{S_DRL}, s{S_IMG1}"), salu(f"s_add_u32 s{S_DRG}, s{S_DRG}, 4096"),
                                 salu(f"s_add_u32 s{S_DRK}, s{S_DRK}, 1"), other(f"s_branch {back}")]

DR0 = 8
def special_site(typ):
    lo, lr = newlbl("L_sp"), newlbl("L_spr")
    nq2 = 2 if typ == "A" else 3
    blk = [label(lo)]
    def case(p, ops):
        l = newlbl("L_c")
        return [salu(f"s_cmp_lg_u32 s{S_N}, {p}"), other(f"s_cbranch_scc1 {l}")] + ops + [other(f"s_branch {lr}"), label(l)]
    blk += case(3, [salu(f"s_mov_b32 s{S_KV}, s{S_O1}")] + set_q(S_Q2))
    for j in range(1, nq2):
        blk += case(3 + j, set_q(S_Q2 + j))
    blk += case(3 + nq2, set_kv())
    lo_off = [salu(f"s_mov_b32 s{S_LO}, 0"), salu(f"s_mov_b32 s{S_RANGE}, s{S_HI}")]
    blk += case(2, lo_off)
    blk += case(10, [salu(f"s_mov_b32 s{S_LO}, 0"), salu(f"s_mov_b32 s{S_RANGE}, s{S_HI}")] + drain_read())
    blk += drain_read() + [other(f"s_branch {lr}")]
    outline.append(blk)
    msk = S_HI + 2 if typ == "A" else S_HI + 1
    return kv_next() + [salu(f"s_bitcmp1_b32 s{msk}, s{S_N}"), other(f"s_cbranch_scc1 {lo}", 10), label(lr)]

def extra_site(first):
    lo, lr = newlbl("L_ex"), newlbl("L_exr")
    blk = [label(lo)]
    if first:
        l = newlbl("L_c")
        blk += [salu(f"s_cmp_lt_u32 s{S_N}, 2"), other(f"s_cbranch_scc1 {l}")] + drain_store(lr) + [label(l)]
    blk += sum(entry_issue(), []) + kv_next() + [other(f"s_branch {lr}")]
    outline.append(blk)
    return [salu(f"s_bitcmp1_b32 s{S_HI+3 if not first else S_MSK1}, s{S_N}"), other(f"s_cbranch_scc1 {lo}", 10), label(lr)]

def rb_advance():
    return [salu(f"s_add_u32 s{S_RB}, s{S_RB}, {SLOT}"),
            salu(f"s_cmp_ge_u32 s{S_RB}, s{S_RHI}"),
            salu(f"s_cselect_b32 s{S_T1}, s{S_RSPAN}, 0"),
            salu(f"s_sub_u32 s{S_RB}, s{S_RB}, s{S_T1}")]

def rebase(base, n, sreg=S_DELTA):
    return [V(f"v_add_u32 {vr(base+i)}, s{sreg}, {vr(base+i)}", [base + i], [base + i]) for i in range(n)]

def build_body(P, typ, steps, loop_label):
    n = len(steps)
    assert n % 2 == 0
    def st(k): return steps[k % n]
    groups = []
    for k in range(n):
        r, sub, t = st(k - 1)
        groups.append(dict(mf=pv_group(t, (k - 1) % 2), fixed=[[] for _ in range(8)], pre=[], kind="pv", k=k - 1))
        r, sub, t = st(k + 1)
        groups.append(dict(mf=qk_group(typ, t, (k + 1) % 2), fixed=[[] for _ in range(8)], pre=[], kind="qk", k=k + 1))
    ng = len(groups)
    def step_id(k):
        r, sub, t = st(k)
        return (k // n, r, sub)
    bar_groups = []
    for gi, g in enumerate(groups):
        j = g["k"]
        if g["kind"] == "pv" and step_id(j + 1) != step_id(j):
            nsub = st(j + 1)[1]
            if nsub == 0:
                g["pre"] += rebase(V_VA, 4)
            for m, (dt, ks) in enumerate(pv_order()):
                g["fixed"][m] += [v_load(dt, ks, 0, nsub), v_load(dt, ks, 1, nsub)]
        if g["kind"] == "qk" and step_id(j + 1) != step_id(j):
            nsub = st(j + 1)[1]
            if nsub == 1:
                for s in range(8):
                    g["fixed"][s] += [k_load(s, 1)]
            else:
                bar_groups.append((gi + 1) % ng)
                adv = rb_advance() + [salu(f"s_sub_u32 s{S_DELTA}, s{S_RB}, s{S_KCUR}"), salu(f"s_mov_b32 s{S_KCUR}, s{S_RB}"),
                                      salu(f"s_mov_b32 s{S_VCUR}, s{S_RB}"), salu(f"s_add_u32 s{S_N}, s{S_N}, 1")]
                g["fixed"][0] += adv[:4]; g["fixed"][1] += adv[4:]
                rb = rebase(V_KA, 8)
                for i in range(8):
                    g["fixed"][2 + i * 6 // 8] += [rb[i]]
    nx = 2
    for bi, gi in enumerate(bar_groups):
        g = groups[gi]
        if OPT["barstat"]:
            lw, lwr = newlbl("L_bw"), newlbl("L_bwr")
            outline.append([label(lw), other("s_waitcnt vmcnt(8)"), other(f"s_branch {lwr}")])
            cmpi = f"s_cmp_ge_u32 s{S_N}, 9" if OPT["barstat"] == 1 else f"s_cmp_lt_u32 s{S_N}, 9"
            g["pre"] = [other("s_waitcnt lgkmcnt(0)"), other("s_memtime s[88:89]"), other("s_waitcnt lgkmcnt(0)"),
                        salu(f"s_bitcmp1_b32 s{S_HI+3}, s{S_N}"), other(f"s_cbranch_scc1 {lw}", 10), other("s_waitcnt vmcnt(24)"), label(lwr),
                        other("s_memtime s[90:91]"), other("s_waitcnt lgkmcnt(0)"), other("s_barrier"), other("s_memtime s[92:93]"), other("s_waitcnt lgkmcnt(0)"),
                        salu("s_sub_u32 s88, s90, s88"), salu("s_sub_u32 s90, s92, s90"),
                        salu(cmpi), salu("s_cselect_b32 s88, s88, 0"), salu("s_cselect_b32 s90, s90, 0"),
                        salu("s_add_u32 s86, s86, s88"), salu("s_add_u32 s87, s87, s90")] + g["pre"]
        else:
            lw, lwr = newlbl("L_bw"), newlbl("L_bwr")
            outline.append([label(lw), other("s_waitcnt vmcnt(8)"), other(f"s_branch {lwr}")])
            g["fixed"][0] = [other("s_waitcnt lgkmcnt(0)"), salu(f"s_bitcmp1_b32 s{S_HI+3}, s{S_N}"), other(f"s_cbranch_scc1 {lw}", 10),
                             other("s_waitcnt vmcnt(24)"), label(lwr), other("s_barrier")] + g["fixed"][0]
        for s_ in range(8):
            g["fixed"][(0 if OPT["barstat"] else 1) + s_ // 3] += [k_load(s_, 0)]
        last = (bi == len(bar_groups) - 1)
        e = entry_issue()
        units = [e[0] + e[1], e[2] + e[3], e[4] + e[5], e[6] + e[7], e[8], special_site(typ)]
        units = [extra_site(True)] + units
        slots = []
        cnt = (bar_groups[(bi + 1) % len(bar_groups)] - gi) % ng or ng
        for off in range(cnt):
            idx = (gi + off) % ng
            gg = groups[idx]
            if last and idx >= gi: continue
            if gg["kind"] == "pv":
                sl = [4] if off == 0 else [0, 1]
            else:
                sl = [3] if off + 1 < cnt else []
            slots += [(gg, i) for i in sl]
        assign = [[] for _ in slots]
        for ui, u_ in enumerate(units):
            assign[min(len(slots) - 1, ui * len(slots) // len(units))] += u_
        for (gg, i), blk in zip(slots, assign):
            gg["fixed"][i] += blk
    for k in range(n):
        r, sub, t = st(k)
        ops = softmax_ops(t, k % 2)
        g0, g1 = groups[2 * k], groups[2 * k + 1]
        gaps = [(g0, i) for i in range(2, 8)] + [(g1, i) for i in range(8)]
        fixed = [sum(x.cost for x in g["fixed"][i] if x.likely) for g, i in gaps]
        tot = sum(x.cost for x in ops) + 14 + sum(fixed)
        per = tot / len(gaps)
        cum = 0.0; placed = 0.0; oi = 0
        for gi, (g, i) in enumerate(gaps):
            cum += per
            placed += fixed[gi]
            lst = g.setdefault("flex", [[] for _ in range(8)])[i]
            while oi < len(ops) and (placed + ops[oi].cost / 2 <= cum or gi == len(gaps) - 1):
                lst.append(ops[oi]); placed += ops[oi].cost; oi += 1
        g1["flex"][7] += check_ops(t, k % 2)
    import copy
    first = [copy.copy(x) for x in groups[0]["pre"]] + [copy.copy(groups[0]["mf"][0])]
    for gi, g in enumerate(groups):
        P.add([x for x in g["pre"] if not (OPT["no_bar"] and ("barrier" in x.text or "vmcnt" in x.text))])
        for i in range(8):
            if not OPT["no_mfma"]: P.add(g["mf"][i])
            if gi == 0 and i == 0:
                P.add(label(loop_label))
            fx = g["fixed"][i]
            if OPT["no_sc"]: fx = [x for x in fx if not (x.text.startswith("s_cbranch") or x.text.startswith("s_bitcmp"))]
            if OPT["no_lds"]: fx = [x for x in fx if x.kind != "lds"]
            if OPT["no_dma"]: fx = [x for x in fx if x.kind != "vmem"]
            P.add(fx)
            fl = g.get("flex", [[] for _ in range(8)])[i]
            if OPT["no_sm"]: fl = [x for x in fl if x.kind == "label"]
            if OPT["no_exp"]: fl = [x for x in fl if x.kind != "trans"]
            if OPT["no_chk"]: fl = [x for x in fl if "vcc" not in x.text]
            P.add(fl)
    P.add(first)
    P.add(salu(f"s_cmp_lg_u32 s{S_N}, s{S_LIM}"))
    P.add(other(f"s_cbranch_scc1 {loop_label}"))

def build_tail(P, typ, par, prev_t):
    U = [(r, sub, 0) for r in range(2) for sub in range(2)]
    for r in range(2):
        for sub in range(2):
            U.append((r, sub, 1))
            if typ == "A" and sub == par: U.append((r, sub, 2))
    m = len(U)
    G = lambda mf, kind, k: dict(mf=mf, fixed=[[] for _ in range(8)], flex=[[] for _ in range(8)], pre=[], post=[], kind=kind, k=k)
    groups = [G(pv_group(prev_t, 1), "pv", -1)]
    for k in range(m - 1):
        groups.append(G(qk_group(typ, U[k + 1][2], (k + 1) % 2), "qk", k + 1))
        groups.append(G(pv_group(U[k][2], k % 2), "pv", k))
    groups.append(G([None] * 8, "bare", m))
    groups.append(G(pv_group(U[m - 1][2], (m - 1) % 2), "pv", m - 1))
    qk_of = {g["k"]: g for g in groups if g["kind"] == "qk"}
    pv_of = {g["k"]: g for g in groups if g["kind"] == "pv"}
    g0 = groups[0]
    g0["fixed"][1] += [salu(f"s_mov_b32 s{S_KCUR}, s{S_RB}")] + rb_advance() + [salu(f"s_sub_u32 s{S_DELTA}, s{S_RB}, s{S_KCUR}"),
                       salu(f"s_sub_u32 s{S_NDELTA}, s{S_KCUR}, s{S_RB}"), salu(f"s_mov_b32 s{S_RB}, s{S_KCUR}")]
    g0["fixed"][4] += [other("s_waitcnt vmcnt(0)"), other("s_barrier")]
    kr = 0
    for k in range(m - 1):
        a_, b_ = U[k], U[k + 1]
        if a_[:2] == b_[:2]: continue
        if b_[0] != kr:
            rb = rebase(V_KA, 8, S_DELTA if b_[0] == 1 else S_NDELTA)
            gg = pv_of[k - 2] if k >= 2 else g0
            for i in range(8): gg["fixed"][4 + i // 2] += [rb[i]]
            kr = b_[0]
        if k == 0:
            for s_ in range(8): g0["fixed"][1 + s_ // 3] += [k_load(s_, b_[1])]
        else:
            for s_ in range(8): qk_of[k]["fixed"][s_] += [k_load(s_, b_[1])]
    vr_ = 0
    for k in range(-1, m - 1):
        b_ = U[k + 1]
        if k >= 0 and U[k][:2] == b_[:2]: continue
        g = pv_of[k]
        if b_[0] != vr_:
            g["pre"] += rebase(V_VA, 4, S_DELTA if b_[0] == 1 else S_NDELTA)
            vr_ = b_[0]
        for mi, (dt, ks) in enumerate(pv_order()):
            g["fixed"][mi] += [v_load(dt, ks, 0, b_[1]), v_load(dt, ks, 1, b_[1])]
    sq = S_QA if typ == "A" else S_QB
    C = L()
    C.add(salu(f"s_sub_u32 s{S_T0}, s{S_IMG1}, s{S_W4K}"))
    C.add(image_addrs(S_T0, 24)); C.add(pack_tile(0, 0, 2, 24))
    image_readback(C, list(range(8)), 0, S_IMG1)
    C.add(salu(f"s_mov_b32 s{S_SO}, s{sq}")); C.add(salu(f"s_add_u32 s{S_SO+1}, s{sq}, 4096"))
    pv_of[3]["post"] = C.ins
    sts = image_stores(list(range(8)), 0, S_SO, S_SO + 1)
    gi = groups.index(pv_of[3]) + 1
    slots = [(groups[j], i) for j in range(gi, gi + 4) for i in ((3, 6) if groups[j]["kind"] == "qk" else (0, 1))]
    for st_, (gg, i) in zip(sts, slots): gg["fixed"][i] += st_
    for k in range(m):
        ops = softmax_ops(U[k][2], k % 2)
        ga = pv_of[k - 1]; gb = qk_of[k + 1] if k + 1 < m else groups[-2]
        gaps = [(ga, i) for i in range(2, 8)] + [(gb, i) for i in range(8)]
        if k + 1 == m: gaps = gaps[:7]
        fixed = [sum(x.cost for x in g["fixed"][i]) for g, i in gaps]
        tot = sum(x.cost for x in ops) + 14 + sum(fixed)
        per = tot / len(gaps) if k + 1 < m else 24
        cum = 0.0; placed = 0.0; oi = 0
        for gi_, (g, i) in enumerate(gaps):
            cum += per; placed += fixed[gi_]
            while oi < len(ops) and (placed + ops[oi].cost / 2 <= cum or gi_ == len(gaps) - 1):
                g["flex"][i].append(ops[oi]); placed += ops[oi].cost; oi += 1
        adj = 1 if (k + 1 < m and U[k + 1][2] == U[k][2]) else 0
        gaps[-1][0]["flex"][gaps[-1][1]] += check_ops(U[k][2], k % 2, adj)
    for gi_, g in enumerate(groups):
        P.add(g["pre"])
        for i in range(8):
            if g["mf"][i] is not None and not (gi_ == 0 and i == 0): P.add(g["mf"][i])
            P.add(g["fixed"][i]); P.add(g["flex"][i])
        P.add(g["post"])

def slow_routine(P, t, sb):
    S = V_S + 16 * sb; nb = V_NB + 16 * t; X = V_X
    P.add(label(f"L_slow_{t}_{sb}"))
    P.add(other("s_nop 15", 64))
    P.add(V(f"v_max3_f32 {vr(X)}, {vr(S)}, {vr(S+1)}, {vr(S+2)}", [S, S + 1, S + 2], [X]))
    for i in range(3, 15, 2):
        P.add(V(f"v_max3_f32 {vr(X)}, {vr(X)}, {vr(S+i)}, {vr(S+i+1)}", [X, S + i, S + i + 1], [X]))
    P.add(V(f"v_max_f32 {vr(X)}, {vr(X)}, {vr(S+15)}", [X, S + 15], [X]))
    P.add(V(f"v_mov_b32 {vr(X+1)}, {vr(X)}", [X], [X + 1]))
    P.add(perm(X, X + 1))
    P.add(V(f"v_max_f32 {vr(X)}, {vr(X)}, {vr(X+1)}", [X, X + 1], [X]))
    P.add(V(f"v_mov_b32 {vr(X+2)}, {vr(V_L+t)}", [V_L + t], [X + 2]))
    P.add(V(f"v_mov_b32 {vr(X+3)}, {vr(V_L+t)}", [V_L + t], [X + 3]))
    P.add(perm(X + 2, X + 3))
    P.add(V(f"v_add_f32 {vr(X+2)}, {vr(X+2)}, {vr(X+3)}", [X + 2, X + 3], [X + 2]))
    P.add(valu(f"v_cmp_neq_f32 vcc, 0, {vr(X+2)}", {f"v{X+2}"}, {"vcc"}))
    P.add(V(f"v_max_f32 {vr(X+3)}, 0, {vr(X)}", [X], [X + 3]))
    P.add(valu(f"v_cndmask_b32 {vr(X)}, {vr(X)}, {vr(X+3)}, vcc", {f"v{X}", f"v{X+3}", "vcc"}, {f"v{X}"}))
    P.add(V(f"v_exp_f32 {vr(X+1)}, -{vr(X+3)}", [X + 3], [X + 1], trans=True))
    for i in range(16):
        P.add(V(f"v_sub_f32 {vr(nb+i)}, {vr(nb+i)}, {vr(X)}", [nb + i, X], [nb + i]))
    P.add(V(f"v_mul_f32 {vr(V_L+t)}, {vr(V_L+t)}, {vr(X+1)}", [V_L + t, X + 1], [V_L + t]))
    la = newlbl("L_na")
    So = V_S + 16 * (1 - sb)
    P.add(salu(f"s_cmp_eq_u32 s{S_ADJ}, 0")); P.add(other(f"s_cbranch_scc1 {la}"))
    for i in range(16):
        P.add(V(f"v_sub_f32 {vr(So+i)}, {vr(So+i)}, {vr(X)}", [So + i, X], [So + i]))
    P.add(label(la))
    l = newlbl("L_sk")
    P.add(other(f"s_cbranch_vccz {l}"))
    for i in range(0, 64, 4):
        for j in range(4):
            P.add(valu(f"v_accvgpr_read_b32 {vr(X+4+j)}, {ar(A_O+64*t+i+j)}", {f"a{A_O+64*t+i+j}"}, {f"v{X+4+j}"}))
        for j in range(4):
            P.add(V(f"v_mul_f32 {vr(X+4+j)}, {vr(X+4+j)}, {vr(X+1)}", [X + 4 + j, X + 1], [X + 4 + j]))
        for j in range(4):
            P.add(valu(f"v_accvgpr_write_b32 {ar(A_O+64*t+i+j)}, {vr(X+4+j)}", {f"v{X+4+j}"}, {f"a{A_O+64*t+i+j}"}))
    P.add(label(l))
    P.add(softmax_ops(t, sb, with_cmp=False, sub=X))
    P.add(other("s_nop 3", 16))
    P.add(other(f"s_setpc_b64 s[{S_RET}:{S_RET+1}]"))

def stamp(P, idx_expr):
    if not OPT["stamp"]: return
    if OPT["stamp"] == 2 and idx_expr not in (0, 10): return
    if isinstance(idx_expr, int):
        P.add(other(f"s_memtime s[{S_STAMP+2*idx_expr}:{S_STAMP+2*idx_expr+1}]"))
        P.add(other("s_waitcnt lgkmcnt(0)"))
    else:
        base = idx_expr[1]
        l1, l2 = newlbl("L_st"), newlbl("L_st")
        P.add(salu(f"s_cmp_lg_u32 s{S_ITEM}, 0")); P.add(other(f"s_cbranch_scc1 {l1}"))
        P.add(other(f"s_memtime s[{S_STAMP+2*base}:{S_STAMP+2*base+1}]")); P.add(other(f"s_branch {l2}"))
        P.add(label(l1)); P.add(other(f"s_memtime s[{S_STAMP+2*(base+4)}:{S_STAMP+2*(base+4)+1}]"))
        P.add(label(l2)); P.add(other("s_waitcnt lgkmcnt(0)"))

def stamp_out(P):
    if not OPT["stamp"]: return
    P.add(other("s_waitcnt vmcnt(0)"))
    stamp(P, 10)
    if not OPT["barstat"]:
        P.add(other("s_memrealtime s[90:91]")); P.add(other("s_waitcnt lgkmcnt(0)"))
        P.add(salu("s_mov_b32 s86, s88")); P.add(salu("s_mov_b32 s87, s90"))
    if OPT["dbg"]:
        P.add(other("s_load_dwordx2 s[4:5], s[0:1], 32")); P.add(other("s_waitcnt lgkmcnt(0)"))
        P.add(salu("s_mov_b32 s6, 64")); P.add(salu("s_mov_b32 s7, 0x20000"))
        for i in range(10, 0, -1):
            P.add(salu(f"s_sub_u32 s{S_STAMP+2*i}, s{S_STAMP+2*i}, s{S_STAMP}"))
        P.add(salu("s_sub_u32 s87, s87, s86"))
    else:
        P.add(other("s_load_dwordx2 s[4:5], s[0:1], 40")); P.add(other("s_waitcnt lgkmcnt(0)"))
        P.add(salu("s_mov_b32 s6, 268435456")); P.add(salu("s_mov_b32 s7, 0x20000"))
    P.add(salu(f"s_lshl_b32 s8, s{S_WG}, 2")); P.add(salu(f"s_add_u32 s8, s8, s{S_W}")); P.add(salu("s_lshl_b32 s8, s8, 6"))
    P.add(valu("v_mov_b32 v1, 0", (), {"v1"}))
    for i in range(13):
        P.add(valu(f"v_mov_b32 v2, s{S_STAMP+2*i if i < 11 else 86 + i - 11}", (), {"v2"}))
        P.add(Ins(f"buffer_store_dword v2, v1, s[4:7], s8 offen offset:{4*i}", "vmem", {"v1", "v2"}, ()))
        P.add(other("s_waitcnt vmcnt(0)"))

def img_addr(P, dst, chunk_even, sbase):
    P.add(V(f"v_xor_b32 {vr(dst)}, {chunk_even}, {vr(V_QXOR)}", [V_QXOR], [dst]))
    P.add(V(f"v_lshl_add_u32 {vr(dst)}, {vr(dst)}, 4, {vr(V_QBASE)}", [dst, V_QBASE], [dst]))
    P.add(V(f"v_add_u32 {vr(dst)}, s{sbase}, {vr(dst)}", [dst], [dst]))

def q_setup_tile(typ, t, absaddr=False, clear=True):
    C = L()
    AD = V_T
    qk, qb = q_reg(typ, t)
    RAW = V_S
    if absaddr:
        C.add(image_addrs(S_RB))
        for s in range(8):
            C.add(Ins(f"ds_read_b128 {vr(RAW+4*s,4)}, {vr(AD+s)}", "lds", {f"v{AD+s}"}, rs("v", RAW + 4 * s, 4)))
    else:
        for s in range(8):
            C.add(V(f"v_add_u32 {vr(V_X+s)}, s{S_RB}, {vr(AD+s)}", [AD + s], [V_X + s]))
        for s in range(8):
            C.add(Ins(f"ds_read_b128 {vr(RAW+4*s,4)}, {vr(V_X+s)}", "lds", {f"v{V_X+s}"}, rs("v", RAW + 4 * s, 4)))
    C.add(rb_advance())
    head = C.ins; C = L()
    if clear:
        for i in range(16):
            C.add(V(f"v_mov_b32 {vr(V_NB+16*t+i)}, 0", [], [V_NB + 16 * t + i]))
        C.add(V(f"v_mov_b32 {vr(V_L+t)}, 0", [], [V_L + t]))
    TMP = V_FREE
    for r0 in range(0, 32, 4):
        if r0 % 8 == 0 and clear:
            C.add(mfma("a", A_O + 64 * t + 2 * r0, "v", V_VF, "v", V_P + 8, czero=True))
        for j in range(4):
            r = RAW + r0 + j
            C.add(V(f"v_lshlrev_b32 {vr(TMP+2*j)}, 16, {vr(r)}", [r], [TMP + 2 * j]))
            C.add(V(f"v_and_b32 {vr(TMP+2*j+1)}, s{S_MASK}, {vr(r)}", [r], [TMP + 2 * j + 1]))
        for j in range(0, 8, 2):
            C.add(V(f"v_pk_mul_f32 {vr(TMP+j,2)}, {vr(TMP+j,2)}, s[{S_C2}:{S_C2+1}]", [TMP + j, TMP + j + 1], [TMP + j, TMP + j + 1], cost=6))
        for j in range(4):
            d = qb + r0 + j if qk == "v" else TMP + 8 + j
            C.add(V(f"v_cvt_pk_bf16_f32 {vr(d)}, {vr(TMP+2*j)}, {vr(TMP+2*j+1)}", [TMP + 2 * j, TMP + 2 * j + 1], [d]))
        if qk == "a":
            for j in range(4):
                C.add(valu(f"v_accvgpr_write_b32 {ar(qb+r0+j)}, {vr(TMP+8+j)}", {f"v{TMP+8+j}"}, {f"a{qb+r0+j}"}))
    return head, C.ins

def pieces_of(ops):
    pieces = []; cur = []
    for x in ops:
        cur.append(x)
        if x.kind == "vmem": pieces.append(cur); cur = []
    pieces[-1] += cur
    return pieces

def q_setup_pre():
    C = L()
    for i in range(8):
        C.add(V(f"v_mov_b32 {vr(V_P+8+i)}, 0", [], [V_P + 8 + i]))
    for s in range(8):
        C.add(V(f"v_xor_b32 {vr(V_T+s)}, {2*s}, {vr(V_QXOR)}", [V_QXOR], [V_T + s]))
        C.add(V(f"v_lshl_add_u32 {vr(V_T+s)}, {vr(V_T+s)}, 4, {vr(V_QBASE)}", [V_T + s, V_QBASE], [V_T + s]))
    return C.ins

def item_begin(P, typ):
    P.add(salu(f"s_sub_u32 s{S_DELTA}, s{S_RB}, s{S_KCUR}")); P.add(salu(f"s_mov_b32 s{S_KCUR}, s{S_RB}"))
    P.add(rebase(V_KA, 8))
    for s in range(8): P.add(k_load(s, 0))
    P.add(salu(f"s_sub_u32 s{S_DELTA}, s{S_RB}, s{S_VCUR}")); P.add(salu(f"s_mov_b32 s{S_VCUR}, s{S_RB}"))
    lo = f32bits(2.0 ** -20); hi = f32bits(65536.0)
    P.add(salu(f"s_mov_b32 s{S_LO}, 0x{lo:08x}")); P.add(salu(f"s_mov_b32 s{S_RANGE}, 0x{hi-lo:08x}"))
    P.lgkm0()

def lsum(P, lreg, dst, X):
    P.add(V(f"v_mov_b32 {vr(X)}, {vr(lreg)}", [lreg], [X]))
    P.add(V(f"v_mov_b32 {vr(X+1)}, {vr(lreg)}", [lreg], [X + 1]))
    P.add(perm(X, X + 1))
    P.add(V(f"v_add_f32 {vr(dst)}, {vr(X)}, {vr(X+1)}", [X, X + 1], [dst]))

def pack_unit(P, t, dt, kp, scale, B, addr, addsrc=None, scale2=None, woff=0):
    a0 = A_O + 64 * t + 16 * dt + 8 * kp
    for j in range(8):
        P.add(valu(f"v_accvgpr_read_b32 {vr(B+j)}, {ar(a0+j)}", {f"a{a0+j}"}, {f"v{B+j}"}))
    for j in range(0, 8, 2):
        P.add(V(f"v_pk_mul_f32 {vr(B+j,2)}, {vr(B+j,2)}, {vr(scale,2)}", [B + j, B + j + 1, scale, scale + 1], [B + j, B + j + 1], cost=6))
    if addsrc is not None:
        for j in range(0, 8, 2):
            P.add(V(f"v_pk_fma_f32 {vr(B+j,2)}, {vr(addsrc+j,2)}, {vr(scale2,2)}, {vr(B+j,2)}",
                    [B + j, B + j + 1, addsrc + j, addsrc + j + 1, scale2, scale2 + 1], [B + j, B + j + 1], cost=6))
    for j in range(4):
        P.add(V(f"v_cvt_pk_bf16_f32 {vr(B+8+j)}, {vr(B+2*j)}, {vr(B+2*j+1)}", [B + 2 * j, B + 2 * j + 1], [B + 8 + j]))
    P.add(perm(B + 8, B + 10)); P.add(perm(B + 9, B + 11))
    P.add(Ins(f"ds_write_b128 {vr(addr)}, {vr(B+8,4)} offset:{woff}", "lds", rs("v", B + 8, 4) | {f"v{addr}"}, ()))

def image_readback(C, pieces, RB, base_sreg=None):
    X = V_X
    C.add(V(f"v_add_u32 {vr(X+8)}, s{base_sreg if base_sreg is not None else S_M0}, {vr(V_LANE16)}", [V_LANE16], [X + 8]))
    C.lgkm0()
    for i, a in enumerate(pieces):
        off = (a % 4) * 1024 + (16384 if a >= 4 else 0)
        C.add(Ins(f"ds_read_b128 {vr(RB+4*i,4)}, {vr(X+8)} offset:{off}", "lds", {f"v{X+8}"}, rs("v", RB + 4 * i, 4)))

def image_stores(pieces, RB, so_lo, so_hi):
    nt = (" " + OPT["stf"].replace("_", " ")) if OPT["stf"] else ""
    out = []
    for i, a in enumerate(pieces):
        vo = V_DK + a if a < 4 else V_DV
        so = so_lo if a < 4 else so_hi
        out.append([Ins(f"buffer_store_dwordx4 {vr(RB+4*i,4)}, {vr(vo)}, s[{SRD_O}:{SRD_O+3}], s{so} offen offset:{(a%4)*1024}{nt}", "vmem",
                        rs("v", RB + 4 * i, 4) | {f"v{vo}"}, (), 8, tag="store")])
    return out

def image_addrs(slot_sreg=None, dst=V_T):
    C = L()
    if slot_sreg is None:
        C.add(salu(f"s_sub_u32 s{S_T0}, s{S_M0}, s{S_W4K}")); slot_sreg = S_T0
    C.add(V(f"v_add_u32 {vr(V_X+9)}, s{slot_sreg}, {vr(V_QBASE)}", [V_QBASE], [V_X + 9]))
    for u in range(8):
        C.add(V(f"v_xor_b32 {vr(dst+u)}, {2*u}, {vr(V_QXOR)}", [V_QXOR], [dst + u]))
        C.add(V(f"v_lshl_add_u32 {vr(dst+u)}, {vr(dst+u)}, 4, {vr(V_X+9)}", [dst + u, V_X + 9], [dst + u]))
    return C.ins

def pack_tile(t, scratch=V_S, nbuf=4, addr=V_T):
    C = L(); X = V_X
    lsum(C, V_L + t, X + 2, X)
    C.add(V(f"v_rcp_f32 {vr(X+2)}, {vr(X+2)}", [X + 2], [X + 2], trans=True))
    C.add(V(f"v_mov_b32 {vr(X+3)}, {vr(X+2)}", [X + 2], [X + 3]))
    u = 0
    for dt in range(4):
        for kp in range(2):
            pack_unit(C, t, dt, kp, X + 2, scratch + 12 * (u % nbuf), addr + u)
            u += 1
    return C.ins

HS = V_NB + 36
def koff(u): return (u % 4) * 1024 + (16384 if u >= 4 else 0)
def h_payload(par, u):
    send = [2 * (1 - par), 2 * (1 - par) + 1]
    a0 = A_O + 128 + 16 * send[u // 4] + 4 * (u % 4)
    return Ins(f"ds_write_b128 {vr(HS+5)}, {ar(a0,4)} offset:{koff(u)}", "lds", rs("a", a0, 4) | {f"v{HS+5}"}, ())

def h1(P, par):
    X = V_X; t = 2
    P.add(salu(f"s_xor_b32 s{S_XPART}, s{S_M0}, 4096"))
    P.add(V(f"v_mov_b32 {vr(HS+6)}, {vr(V_NB+16*t)}", [V_NB + 16 * t], [HS + 6]))
    lsum(P, V_L + t, HS + 7, X)
    P.add(V(f"v_add_u32 {vr(X+4)}, s{S_XPART}, {vr(V_LANE8)}", [V_LANE8], [X + 4]))
    P.add(Ins(f"ds_write_b64 {vr(X+4)}, {vr(HS+6,2)}", "lds", {f"v{X+4}", f"v{HS+6}", f"v{HS+7}"}, ()))
    P.add(V(f"v_add_u32 {vr(HS+4)}, s{S_XPART}, {vr(V_LANE16)}", [V_LANE16], [HS + 4]))
    P.add(V(f"v_add_u32 {vr(HS+5)}, s{S_M0}, {vr(V_LANE16)}", [V_LANE16], [HS + 5]))
    for u in range(1, 8): P.add(h_payload(par, u))

def h2(P, par):
    X = V_X
    P.add(V(f"v_add_u32 {vr(X+5)}, s{S_M0}, {vr(V_LANE8)}", [V_LANE8], [X + 5]))
    P.add(Ins(f"ds_read_b64 {vr(X+6,2)}, {vr(X+5)}", "lds", {f"v{X+5}"}, {f"v{X+6}", f"v{X+7}"}))
    P.lgkm0()
    P.add(h_payload(par, 0))
    P.add(V(f"v_min_f32 {vr(X)}, {vr(HS+6)}, {vr(X+6)}", [HS + 6, X + 6], [X]))
    P.add(V(f"v_sub_f32 {vr(X+1)}, {vr(X)}, {vr(HS+6)}", [X, HS + 6], [X + 1]))
    P.add(V(f"v_sub_f32 {vr(X)}, {vr(X)}, {vr(X+6)}", [X, X + 6], [X]))
    P.add(V(f"v_exp_f32 {vr(X+1)}, {vr(X+1)}", [X + 1], [X + 1], trans=True))
    P.add(V(f"v_exp_f32 {vr(X)}, {vr(X)}", [X], [X], trans=True))
    P.add(V(f"v_mul_f32 {vr(X+3)}, {vr(HS+7)}, {vr(X+1)}", [HS + 7, X + 1], [X + 3]))
    P.add(V(f"v_fma_f32 {vr(X+3)}, {vr(X+7)}, {vr(X)}, {vr(X+3)}", [X + 7, X, X + 3], [X + 3]))
    P.add(V(f"v_rcp_f32 {vr(X+3)}, {vr(X+3)}", [X + 3], [X + 3], trans=True))
    P.add(V(f"v_mul_f32 {vr(HS+2)}, {vr(X+3)}, {vr(X)}", [X + 3, X], [HS + 2]))
    P.add(V(f"v_mul_f32 {vr(HS)}, {vr(X+3)}, {vr(X+1)}", [X + 3, X + 1], [HS]))
    P.add(V(f"v_mov_b32 {vr(HS+3)}, {vr(HS+2)}", [HS + 2], [HS + 3]))
    P.add(V(f"v_mov_b32 {vr(HS+1)}, {vr(HS)}", [HS], [HS + 1]))

def h3(P):
    for u in range(8):
        P.add(Ins(f"ds_read_b128 {vr(V_NB+4*u,4)}, {vr(HS+4)} offset:{koff(u)}", "lds", {f"v{HS+4}"}, rs("v", V_NB + 4 * u, 4)))

def h4(P, par, base):
    X = V_X; t = 2
    keep = [2 * par, 2 * par + 1]
    P.add(V(f"v_bfe_u32 {vr(X)}, {vr(V_LANE16)}, 4, 5", [V_LANE16], [X]))
    P.add(V(f"v_bfe_u32 {vr(X+1)}, {vr(V_LANE16)}, 9, 1", [V_LANE16], [X + 1]))
    P.add(V(f"v_and_b32 {vr(X+6)}, 7, {vr(X)}", [X], [X + 6]))
    P.add(V(f"v_xor_b32 {vr(X+6)}, {vr(X+6)}, {vr(X+1)}", [X + 6, X + 1], [X + 6]))
    P.add(V(f"v_lshlrev_b32 {vr(X)}, 7, {vr(X)}", [X], [X]))
    P.add(V(f"v_add_u32 {vr(X)}, s{base}, {vr(X)}", [X], [X]))
    for u in range(4):
        P.add(V(f"v_xor_b32 {vr(V_T+u)}, {2*u}, {vr(X+6)}", [X + 6], [V_T + u]))
        P.add(V(f"v_lshl_add_u32 {vr(V_T+u)}, {vr(V_T+u)}, 4, {vr(X)}", [V_T + u, X], [V_T + u]))
    P.add(V(f"v_bfe_u32 {vr(X)}, {vr(V_LANE16)}, 7, 3", [V_LANE16], [X]))
    P.add(V(f"v_bfe_u32 {vr(X+1)}, {vr(V_LANE16)}, 4, 3", [V_LANE16], [X + 1]))
    P.add(V(f"v_xor_b32 {vr(X+1)}, {vr(X+1)}, {vr(X)}", [X, X + 1], [X + 1]))
    P.add(V(f"v_lshlrev_b32 {vr(X)}, 8, {vr(X)}", [X], [X]))
    P.add(V(f"v_lshl_add_u32 {vr(V_TC)}, {vr(X+1)}, 4, {vr(X)}", [X, X + 1], [V_TC]))
    P.add(V(f"v_add_u32 {vr(X+9)}, s{base}, {vr(V_LANE16)}", [V_LANE16], [X + 9]))
    u = 0
    for di, dt in enumerate(keep):
        for kp in range(2):
            pack_unit(P, t, dt, kp, HS, V_S + 12 * (u % 4), V_T + u, addsrc=V_NB + 16 * di + 8 * kp, scale2=HS + 2)
            u += 1
    P.lgkm0()
    for a in range(4):
        P.add(Ins(f"ds_read_b128 {vr(V_FREE+4*a,4)}, {vr(X+9)} offset:{a*1024}", "lds", {f"v{X+9}"}, rs("v", V_FREE + 4 * a, 4)))
    P.add(salu(f"s_add_u32 s{S_SO+2}, s{S_QH}, {128*par}")); P.add(salu(f"s_add_u32 s{S_SO+3}, s{S_QH}, {128*par+4096}"))
    P.lgkm0()
    nt = (" " + OPT["stf"].replace("_", " ")) if OPT["stf"] else ""
    return [[Ins(f"buffer_store_dwordx4 {vr(V_FREE+4*a,4)}, {vr(V_TC)}, s[{SRD_O}:{SRD_O+3}], s{S_SO+2+a//2} offen offset:{(a%2)*2048}{nt}", "vmem",
                 rs("v", V_FREE + 4 * a, 4) | {f"v{V_TC}"}, (), 8, tag="store")] for a in range(4)]

def clears(P, nt):
    for i in range(8):
        P.add(V(f"v_mov_b32 {vr(V_P+8+i)}, 0", [], [V_P + 8 + i]))
    for t in range(nt):
        for i in range(16):
            if i % 4 == 0:
                P.add(mfma("a", A_O + 64 * t + 4 * i, "v", V_VF, "v", V_P + 8, czero=True))
            P.add(V(f"v_mov_b32 {vr(V_NB+16*t+i)}, 0", [], [V_NB + 16 * t + i]))
        P.add(V(f"v_mov_b32 {vr(V_L+t)}, 0", [], [V_L + t]))

def post_A(P, par, tag, prev_t):
    allp = list(range(8)); sq = S_QA
    bar = lambda: (P.lgkm0(), P.add(other("s_barrier")))
    h1(P, par)
    P.add(salu(f"s_add_u32 s{S_DRL}, s{S_RB}, s{S_W4K}"))
    P.add(salu(f"s_mov_b32 s{S_IMG1}, s{S_M0}")); P.add(salu(f"s_mov_b32 s{S_DRG}, s{sq}")); P.add(salu(f"s_mov_b32 s{S_DRK}, 0"))
    hd, body = q_setup_tile("B", 0, absaddr=True, clear=False)
    P.add(hd); P.add(body)
    bar()
    h2(P, par)
    P.add(pack_tile(0))
    bar()
    h3(P)
    hd, body = q_setup_tile("B", 1, absaddr=True, clear=False)
    P.add(hd); P.add(body)
    bar()
    st_h = h4(P, par, S_M0)
    P.add(image_addrs())
    P.add(weave(pack_tile(1), st_h))
    P.add(salu(f"s_mov_b32 s{S_RSPAN}, {3*SLOT}"))
    P.add(salu(f"s_add_u32 s{S_M0}, s{S_W4K}, {2*SLOT}"))
    clears(P, 2)
    P.lgkm0()
    P.add(drain_read())
    stamp(P, ("item", 5))
    P.add(salu(f"s_mov_b32 s{S_ITEM}, 1")); P.add(salu(f"s_mov_b32 s{S_LIM}, 14"))
    P.add(other("s_branch L_go_B"))
    P.add(label(f"L_last_{tag}"))
    P.ldsq = []
    build_tail(P, "A", par, prev_t)
    P.lgkm0()
    h1(P, par)
    P.add(salu(f"s_add_u32 s{S_DRL}, s{S_RB}, s{S_W4K}"))
    P.add(image_addrs(S_RB))
    bar()
    h2(P, par)
    P.add(pack_tile(1))
    image_readback(P, allp, V_VF, S_DRL)
    P.add(salu(f"s_add_u32 s{S_SO}, s{sq}, 8192")); P.add(salu(f"s_add_u32 s{S_SO+1}, s{sq}, 12288"))
    bar()
    h3(P)
    C = L()
    st_h = h4(C, par, S_DRL)
    P.add(weave(C.ins, image_stores(allp, V_VF, S_SO, S_SO + 1), 0.0, 0.8))
    P.add(sum(st_h, []))
    stamp(P, ("item", 5))
    P.add(other("s_branch L_fin"))

def item_code(P, typ, par):
    tag = f"{typ}{par}" if typ == "A" else "B"
    if typ == "A":
        ring = [(0, 0), (0, 1), (0, 2), (1, 0), (1, 1)] if par == 0 else [(0, 0), (0, 1), (1, 0), (1, 1), (1, 2)]
        steps = [(0, s, t) for s, t in ring] + [(1, s, t) for s, t in ring]
    else:
        steps = [(0, 0, 0), (0, 0, 1), (0, 1, 0), (0, 1, 1)]
    P.add(label(f"L_item_{tag}"))
    stamp(P, ("item", 2))
    item_begin(P, typ)
    P.add(qk_group(typ, 0, 0))
    stamp(P, ("item", 3))
    assert not P.ldsq
    build_body(P, typ, steps, f"L_loop_{tag}")
    P.ldsq = []
    stamp(P, ("item", 4))
    r, sub, t = steps[-1]
    P.add(salu(f"s_cmp_lg_u32 s{S_ITEM}, 0"))
    P.add(other(f"s_cbranch_scc1 L_last_{tag}"))
    P.add(pv_group(t, (len(steps) - 1) % 2)[1:])
    P.add(other(f"s_waitcnt vmcnt({8 if typ == 'A' else 0})"))
    P.lgkm0()
    sq = S_QA if typ == "A" else S_QB
    if typ == "A":
        post_A(P, par, tag, t)
        return
    P.add(other("s_barrier")); st_h = []
    allp = list(range(8))
    P.add(image_addrs())
    P.add(weave(pack_tile(0), st_h))
    ntyp = "B" if typ == "A" else "A"
    nn = 3 if ntyp == "A" else 2
    P.add(salu(f"s_mov_b32 s{S_DRL}, s{S_M0}")); P.add(salu(f"s_mov_b32 s{S_DRG}, s{sq}")); P.add(salu(f"s_mov_b32 s{S_DRK}, 0"))
    P.add(salu(f"s_add_u32 s{S_IMG1}, s{S_RB}, s{S_W4K}"))
    for i in range(8):
        P.add(V(f"v_mov_b32 {vr(V_KF+i)}, 0", [], [V_KF + i]))
    hd, body = q_setup_tile(ntyp, 0, absaddr=True)
    P.add(hd); P.add(zb(body))
    P.add(pack_tile(1))
    if typ == "A":
        P.add(salu(f"s_mov_b32 s{S_RSPAN}, {3*SLOT}"))
        P.add(salu(f"s_add_u32 s{S_M0}, s{S_W4K}, {2*SLOT}"))
    else:
        P.add(salu(f"s_add_u32 s{S_M0}, s{S_W4K}, {1*SLOT}"))
    for t in range(1, nn):
        hd, body = q_setup_tile(ntyp, t, absaddr=True)
        P.add(hd)
        if typ == "B" and t == 2:
            P.add(salu(f"s_mov_b32 s{S_RHI}, {4*SLOT}")); P.add(salu(f"s_mov_b32 s{S_RSPAN}, {3*SLOT}"))
            P.add(weave(zb(body), pieces_of(sum(entry_issue(), []) + kv_next()), 0.0, 0.9))
        else:
            P.add(zb(body))
    for i in range(8):
        P.add(V(f"v_mov_b32 {vr(V_P+8+i)}, 0", [], [V_P + 8 + i]))
    P.lgkm0()
    P.add(drain_read())
    stamp(P, ("item", 5))
    P.add(salu(f"s_mov_b32 s{S_ITEM}, 1")); P.add(salu(f"s_mov_b32 s{S_LIM}, 14"))
    P.add(other("s_branch L_go_B" if typ == "A" else "s_branch L_go_A"))
    P.add(label(f"L_last_{tag}"))
    P.ldsq = []
    build_tail(P, "B", 0, steps[-1][2])
    P.lgkm0()
    P.add(image_addrs())
    P.add(pack_tile(1))
    image_readback(P, allp, V_VF)
    P.add(salu(f"s_add_u32 s{S_SO+2}, s{sq}, 8192")); P.add(salu(f"s_add_u32 s{S_SO+3}, s{sq}, 12288"))
    P.add(sum(image_stores(allp, V_VF, S_SO + 2, S_SO + 3), []))
    stamp(P, ("item", 5))
    P.add(other("s_branch L_fin"))

def zb(body):
    out = []
    for x in body:
        if x.kind == "mfma":
            d = int(x.text.split("a[")[1].split(":")[0])
            out.append(mfma("a", d, "v", V_VF, "v", V_KF, czero=True))
        else:
            out.append(x)
    return out

def prologue(P):
    P.add(salu(f"s_cmp_ge_u32 s{S_WG}, 256")); P.add(other("s_cbranch_scc1 L_done"))
    stamp(P, 0)
    if OPT["stamp"] and not OPT["barstat"]:
        P.add(other("s_memrealtime s[88:89]")); P.add(other("s_waitcnt lgkmcnt(0)"))
    P.add(other("s_load_dwordx4 s[4:7], s[0:1], 0")); P.add(other("s_load_dwordx4 s[8:11], s[0:1], 16"))
    X = V_X
    lane, key, h = X, X + 1, X + 2
    P.add(V(f"v_lshrrev_b32 {vr(X+3)}, 6, v0", [0], [X + 3]))
    P.add(V(f"v_and_b32 {vr(lane)}, 63, v0", [0], [lane]))
    P.add(Ins(f"v_readfirstlane_b32 s{S_W}, {vr(X+3)}", "rfl", {f"v{X+3}"}, {f"s{S_W}"}))
    A = lambda text, rd, wr: P.add(V(text, rd, wr))
    rr, pp = X + 4, X + 5
    A(f"v_lshrrev_b32 {vr(rr)}, 4, {vr(lane)}", [lane], [rr])
    A(f"v_and_b32 {vr(pp)}, 15, {vr(lane)}", [lane], [pp])
    A(f"v_lshlrev_b32 {vr(X+6)}, 8, {vr(rr)}", [rr], [X + 6])
    A(f"v_xor_b32 {vr(X+7)}, {vr(pp)}, {vr(rr)}", [pp, rr], [X + 7])
    for a in range(4):
        A(f"v_xor_b32 {vr(X+8)}, {4*a}, {vr(X+7)}", [X + 7], [X + 8])
        A(f"v_lshl_add_u32 {vr(V_DK+a)}, {vr(X+8)}, 4, {vr(X+6)}", [X + 8, X + 6], [V_DK + a])
    A(f"v_lshlrev_b32 {vr(X+7)}, 2, {vr(rr)}", [rr], [X + 7])
    A(f"v_xor_b32 {vr(X+7)}, {vr(pp)}, {vr(X+7)}", [pp, X + 7], [X + 7])
    A(f"v_lshl_add_u32 {vr(V_DV)}, {vr(X+7)}, 4, {vr(X+6)}", [X + 7, X + 6], [V_DV])
    S = lambda t: P.add(salu(t))
    S(f"s_and_b32 s{S_T0}, s{S_WG}, 7"); S(f"s_lshr_b32 s{S_T1}, s{S_WG}, 4"); S(f"s_lshl_b32 s{S_T1}, s{S_T1}, 3")
    S(f"s_add_u32 s{S_T0}, s{S_T0}, s{S_T1}")
    S(f"s_lshr_b32 s{S_ROLE}, s{S_WG}, 3"); S(f"s_and_b32 s{S_ROLE}, s{S_ROLE}, 1")
    S(f"s_lshl_b32 s{S_P0}, s{S_T0}, 18"); S(f"s_lshl_b32 s{S_W4K}, s{S_W}, 12"); S(f"s_mov_b32 s{S_M0}, s{S_W4K}")
    S(f"s_mov_b32 s{S_KV}, s{S_W4K}")
    S(f"s_lshl_b32 s{S_T0}, s{S_T0}, 1")
    S(f"s_add_u32 s{S_T1}, s{S_T0}, s{S_ROLE}"); S(f"s_mul_i32 s{S_T1}, s{S_T1}, 147456")
    S(f"s_lshl_b32 s{S_T2}, s{S_W}, 14"); S(f"s_add_u32 s{S_QA}, s{S_T1}, s{S_T2}")
    S(f"s_lshr_b32 s{S_QH}, s{S_W}, 1"); S(f"s_lshl_b32 s{S_QH}, s{S_QH}, 13"); S(f"s_add_u32 s{S_QH}, s{S_QH}, s{S_T1}")
    S(f"s_add_u32 s{S_QH}, s{S_QH}, {8*8192}")
    S(f"s_xor_b32 s{S_T1}, s{S_ROLE}, 1"); S(f"s_add_u32 s{S_T1}, s{S_T0}, s{S_T1}"); S(f"s_mul_i32 s{S_T1}, s{S_T1}, 147456")
    S(f"s_add_u32 s{S_QB}, s{S_T1}, s{S_T2}"); S(f"s_add_u32 s{S_QB}, s{S_QB}, {10*8192}")
    c = (128 ** -0.5) * math.log2(math.e)
    S(f"s_mov_b32 s{S_C}, 0x{f32bits(c):08x}"); S(f"s_mov_b32 s{S_C2}, s{S_C}"); S(f"s_mov_b32 s{S_C2+1}, s{S_C}")
    S(f"s_mov_b32 s{S_HI}, 0x{f32bits(65536.0):08x}")
    S(f"s_mov_b32 s{S_MASK}, 0xffff0000")
    S("s_mov_b32 s86, 0"); S("s_mov_b32 s87, 0")
    S(f"s_mov_b32 s{S_HI+1}, {sum(1 << i for i in (2, 3, 4, 5, 6, 8, 9, 10))}")
    S(f"s_mov_b32 s{S_HI+2}, {sum(1 << i for i in (2, 3, 4, 5, 8, 9, 10))}")
    S(f"s_mov_b32 s{S_MSK1}, 0x0f03")
    S(f"s_mov_b32 s{S_RHI}, {5*SLOT}"); S(f"s_mov_b32 s{S_RSPAN}, {5*SLOT}")
    S(f"s_mov_b32 s{S_HI+3}, 0x1fe02")
    for r_ in (S_N, S_RB, S_ITEM, S_DELTA, S_KCUR, S_VCUR): S(f"s_mov_b32 s{r_}, 0")
    S(f"s_mov_b32 s{S_E1+3}, 0x20000"); S(f"s_mov_b32 s{S_E2+3}, 0x20000")
    S(f"s_mov_b32 s{SRD_O+2}, {QBYTES}"); S(f"s_mov_b32 s{SRD_O+3}, 0x20000")
    P.add(other("s_waitcnt lgkmcnt(0)"))
    S(f"s_mov_b32 s{SRD_O}, s{S_PO}"); S(f"s_mov_b32 s{SRD_O+1}, s{S_PO+1}")
    S(f"s_add_u32 s{S_PK}, s{S_PK}, s{S_P0}"); S(f"s_addc_u32 s{S_PK+1}, s{S_PK+1}, 0")
    S(f"s_add_u32 s{S_PV}, s{S_PV}, s{S_P0}"); S(f"s_addc_u32 s{S_PV+1}, s{S_PV+1}, 0")
    def qlist(typ):
        if typ == "A":
            S(f"s_mov_b32 s{S_Q2}, s{S_QA}"); S(f"s_add_u32 s{S_Q2+1}, s{S_QA}, 8192"); S(f"s_mov_b32 s{S_Q2+2}, s{S_QH}"); S(f"s_mov_b32 s{S_QLEFT}, 3")
        else:
            S(f"s_mov_b32 s{S_Q2}, s{S_QB}"); S(f"s_add_u32 s{S_Q2+1}, s{S_QB}, 8192"); S(f"s_mov_b32 s{S_Q2+2}, s{S_QB}"); S(f"s_mov_b32 s{S_QLEFT}, 2")
    def rest():
        A(f"v_and_b32 {vr(key)}, 31, {vr(lane)}", [lane], [key])
        A(f"v_lshrrev_b32 {vr(h)}, 5, {vr(lane)}", [lane], [h])
        A(f"v_lshlrev_b32 {vr(V_LANE8)}, 3, {vr(lane)}", [lane], [V_LANE8])
        A(f"v_lshlrev_b32 {vr(V_LANE16)}, 4, {vr(lane)}", [lane], [V_LANE16])
        A(f"v_lshlrev_b32 {vr(X+3)}, 8, {vr(key)}", [key], [X + 3])
        A(f"v_and_b32 {vr(X+4)}, 15, {vr(key)}", [key], [X + 4])
        A(f"v_xor_b32 {vr(X+4)}, {vr(X+4)}, {vr(h)}", [X + 4, h], [X + 4])
        for s in range(8):
            A(f"v_xor_b32 {vr(X+5)}, {2*s}, {vr(X+4)}", [X + 4], [X + 5])
            A(f"v_lshl_add_u32 {vr(V_KA+s)}, {vr(X+5)}, 4, {vr(X+3)}", [X + 5, X + 3], [V_KA + s])
        A(f"v_and_b32 {vr(X+5)}, 15, {vr(key)}", [key], [X + 5])
        A(f"v_lshlrev_b32 {vr(X+6)}, 8, {vr(X+5)}", [X + 5], [X + 6])
        A(f"v_bfe_u32 {vr(X+7)}, {vr(key)}, 4, 1", [key], [X + 7])
        A(f"v_lshl_add_u32 {vr(X+6)}, {vr(X+7)}, 14, {vr(X+6)}", [X + 7, X + 6], [X + 6])
        A(f"v_add_u32 {vr(V_QBASE)}, s{S_W4K}, {vr(X+6)}", [X + 6], [V_QBASE])
        A(f"v_and_b32 {vr(X+6)}, 3, {vr(key)}", [key], [X + 6])
        A(f"v_lshlrev_b32 {vr(X+6)}, 2, {vr(X+6)}", [X + 6], [X + 6])
        P.add(valu(f"v_cmp_ne_u32 vcc, 0, {vr(X+7)}", {f"v{X+7}"}, {"vcc"}))
        P.add(valu(f"v_cndmask_b32 {vr(X+5)}, {vr(X+5)}, {vr(X+6)}, vcc", {f"v{X+5}", f"v{X+6}", "vcc"}, {f"v{X+5}"}))
        A(f"v_xor_b32 {vr(V_QXOR)}, {vr(X+5)}, {vr(h)}", [X + 5, h], [V_QXOR])
        r_, cq, dsel = X + 4, X + 5, X + 6
        A(f"v_bfe_u32 {vr(r_)}, {vr(lane)}, 2, 2", [lane], [r_])
        A(f"v_and_b32 {vr(cq)}, 3, {vr(lane)}", [lane], [cq])
        A(f"v_bfe_u32 {vr(dsel)}, {vr(lane)}, 4, 1", [lane], [dsel])
        A(f"v_lshl_add_u32 {vr(X+7)}, {vr(h)}, 2, {vr(r_)}", [h, r_], [X + 7])
        A(f"v_lshlrev_b32 {vr(X+7)}, 8, {vr(X+7)}", [X + 7], [X + 7])
        A(f"v_lshl_add_u32 {vr(X+7)}, {vr(dsel)}, 5, {vr(X+7)}", [dsel, X + 7], [X + 7])
        A(f"v_lshl_add_u32 {vr(X+7)}, {vr(cq)}, 3, {vr(X+7)}", [cq, X + 7], [X + 7])
        A(f"v_add_u32 {vr(X+7)}, 16384, {vr(X+7)}", [X + 7], [X + 7])
        for dt in range(4):
            A(f"v_xor_b32 {vr(X+8)}, {dt}, {vr(r_)}", [r_], [X + 8])
            A(f"v_lshl_add_u32 {vr(V_VA+dt)}, {vr(X+8)}, 6, {vr(X+7)}", [X + 8, X + 7], [V_VA + dt])
        for i in range(32):
            P.add(V(f"v_mov_b32 {vr(V_VF+i)}, 0", [], [V_VF + i]))
    S(f"s_cmp_lg_u32 s{S_ROLE}, 0"); P.add(other("s_cbranch_scc1 L_pro_B"))
    for typ in ("A", "B"):
        if typ == "B": P.add(label("L_pro_B"))
        nq = 3 if typ == "A" else 2
        qlist(typ)
        for e in range(2):
            P.add(set_q(S_Q2 + e)); P.add(sum(entry_issue(), []))
        rest()
        P.add(q_setup_pre())
        later = []
        if typ == "A":
            later.append(set_q(S_Q2 + 2) + sum(entry_issue(), []))
        later.append(set_kv() + sum(entry_issue(), []) + kv_next())
        later.append(sum(entry_issue(), []) + kv_next())
        for t in range(nq):
            P.add(other(f"s_waitcnt vmcnt({8 if t < 2 else 8})"))
            hd, body = q_setup_tile(typ, t)
            P.add(hd)
            if t < len(later):
                ops = later[t]
                P.add(weave(body, pieces_of(ops), 0.0, 0.9))
            else:
                P.add(body)
        qlist("B" if typ == "A" else "A")
        P.add(salu(f"s_mov_b32 s{S_LIM}, 8"))
        P.add(other("s_waitcnt vmcnt(8)"))
        P.add(other("s_barrier"))
        stamp(P, 1)
        P.add(other(f"s_branch L_go_{typ}"))
    P.add(label("L_go_A"))
    S(f"s_and_b32 s{S_T0}, s{S_W}, 1"); S(f"s_cmp_lg_u32 s{S_T0}, 0")
    P.add(other("s_cbranch_scc1 L_item_A1")); P.add(other("s_branch L_item_A0"))
    P.add(label("L_go_B")); P.add(other("s_branch L_item_B"))

def main():
    P = Prog()
    prologue(P)
    item_code(P, "A", 0)
    item_code(P, "A", 1)
    item_code(P, "B", 0)
    P.add(label("L_fin"))
    stamp_out(P)
    P.add(label("L_done")); P.add(other("s_endpgm"))
    for blk in outline:
        P.add(blk)
    for st, ro, rt, adj in stubs:
        P.add(label(st)); P.add(salu(f"s_mov_b32 s{S_ADJ}, {adj}"))
        P.add(other(f"s_call_b64 s[{S_RET}:{S_RET+1}], {ro}")); P.add(other(f"s_branch {rt}"))
    used = sorted(set(x[1] for x in stubs))
    for ro in used:
        _, _, t, sb = ro.split("_")
        slow_routine(P, int(t), int(sb))
    head = open("standalone__gqa_softmax__near_ridge.s.ref").read().split("; @launch")[0]
    out = head + "; @launch grid=(256,1,1) block=(256,1,1) lds=163840\n"
    out += """; ---------------------------------------------------------------------------------------------------------------
;    O tiles are transposed through LDS so every global access is full-line coalesced.
; ---------------------------------------------------------------------------------------------------------------
"""
    out += '.amdgcn_target "amdgcn-amd-amdhsa--gfx950"\n.text\n.globl %s\n.p2align 8\n.type %s,@function\n%s:\n' % (NAME, NAME, NAME)
    out += P.text() + "\n"
    out += '''.section .rodata,"a"
.p2align 6
.amdhsa_kernel %s
  .amdhsa_next_free_vgpr 512
  .amdhsa_next_free_sgpr 102
  .amdhsa_accum_offset 256
  .amdhsa_group_segment_fixed_size 0
  .amdhsa_kernarg_size 48
  .amdhsa_user_sgpr_count 2
  .amdhsa_user_sgpr_kernarg_segment_ptr 1
  .amdhsa_system_sgpr_workgroup_id_x 1
.end_amdhsa_kernel
''' % NAME
    open(sys.argv[1] if len(sys.argv) > 1 else "k2.s", "w").write(out)

main()
```
